```python
import torch

def _softmax(x, axis=-1):
    return torch.softmax(x, dim=axis)
def _gelu(x):
    return torch.nn.functional.gelu(x, approximate="tanh")
def _silu(x):
    return torch.nn.functional.silu(x)
def _sigmoid(x):
    return torch.sigmoid(x)
def _layernorm(x, axis=-1, eps=1e-5):
    m = x.mean(dim=axis, keepdim=True)
    v = x.var(dim=axis, keepdim=True, unbiased=False)
    return (x - m) / torch.sqrt(v + eps)
def _scatter_add(tgt, idx, src, axis=0):
    return tgt.clone().index_add_(axis, idx, src)
def _segment_sum(src, seg, n):
    out = torch.zeros((n,) + src.shape[1:], dtype=src.dtype)
    return out.index_add_(0, seg, src)
def _pad(x, pw):
    flat = tuple(v for pair in reversed(pw) for v in pair)
    return torch.nn.functional.pad(x, flat)

kernel_name = 'sequential_preLN__sliding_block_cached__moe_arch_mod__decode'

def setup_inputs():

    _w = (lambda a: (lambda t: t.to(torch.bfloat16) if t.is_floating_point() else t)(torch.as_tensor(a)))
    def _A_setup():
        B, Sq, D = 8, 1, 640
        Hq, Hkv, Sk, Dh = 32, 32, 4096, 128
        assert Hq % Hkv == 0, (Hq, Hkv)
        return {
            "x": _w((lambda *s: torch.randn(*s, dtype=torch.bfloat16) * 0.1)(B, Sq, D)),
            "k_cache": _w((lambda *s: torch.randn(*s, dtype=torch.bfloat16) * 0.8)(B, Hkv, Sk, Dh)),
            "v_cache": _w((lambda *s: torch.randn(*s, dtype=torch.bfloat16) * 1.6)(B, Hkv, Sk, Dh)),
            "wq": _w((lambda *s: torch.randn(*s, dtype=torch.bfloat16) * 0.8)(D, Hq * Dh) * (D ** -0.5)),
            "wo": _w((lambda *s: torch.randn(*s, dtype=torch.bfloat16) * 1.6)(Hq * Dh, D) * ((Hq * Dh) ** -0.5)),
        }
    _A_in = _A_setup()

    def _B_setup():
        B, S, D, F, C = 8, 1, 640, 1728, 1
        return {
            "x": _w((lambda *s: torch.randn(*s, dtype=torch.bfloat16) * 0.1)(B, S, D)),
            "w_r": _w((lambda *s: torch.randn(*s, dtype=torch.bfloat16) * 3.2)(D)),
            "w_gate": _w((lambda *s: torch.randn(*s, dtype=torch.bfloat16) * 0.2)(D, F)),
            "w_up": _w((lambda *s: torch.randn(*s, dtype=torch.bfloat16) * 0.2)(D, F)),
            "w_down": _w((lambda *s: torch.randn(*s, dtype=torch.bfloat16) * 0.2)(F, D)),
        }
    _B_in = _B_setup()

    return {
        "A_x": _A_in["x"],
        "A_k_cache": _A_in["k_cache"],
        "A_v_cache": _A_in["v_cache"],
        "A_wq": _A_in["wq"],
        "A_wo": _A_in["wo"],
        "B_x": _B_in["x"],
        "B_w_r": _B_in["w_r"],
        "B_w_gate": _B_in["w_gate"],
        "B_w_up": _B_in["w_up"],
        "B_w_down": _B_in["w_down"],
    }

def reference(A_x, A_k_cache, A_v_cache, A_wq, A_wo, B_x, B_w_r, B_w_gate, B_w_up, B_w_down):
    def _A_ref(x, k_cache, v_cache, wq, wo):
        B, Sq, D = x.shape
        Hq, Dh = 32, 128
        Hkv, Sk = k_cache.shape[1], k_cache.shape[2]
        W = min(4096, max(256, Sk // 4))
        rep = Hq // Hkv
        q = (lambda x, *d: x.permute(*d))((x @ wq).reshape(B, Sq, Hq, Dh), 0, 2, 1, 3)
        k = (lambda x, n, axis: torch.repeat_interleave(x, n, dim=axis))(k_cache[:, :, Sk - W:, :], rep, axis=1)
        v = (lambda x, n, axis: torch.repeat_interleave(x, n, dim=axis))(v_cache[:, :, Sk - W:, :], rep, axis=1)
        scores = torch.einsum("bhqd,bhkd->bhqk", q, k) * (Dh ** -0.5)
        p = _softmax(scores, axis=-1)
        o = torch.einsum("bhqk,bhkd->bhqd", p, v)
        return (lambda x, *d: x.permute(*d))(o, 0, 2, 1, 3).reshape(B, Sq, Hq * Dh) @ wo

    def _B_ref(x, w_r, w_gate, w_up, w_down):
        B, S, D = x.shape
        C = 1
        r = x @ w_r
        idx = torch.argsort(-r, axis=-1)[:, :C]
        idx_e = (lambda x, n, axis: torch.repeat_interleave(x, n, dim=axis))(idx.reshape(B, C, 1), D, axis=2)
        x_sel = (lambda x, i, axis: torch.take_along_dim(x, i, dim=axis))(x, idx_e, axis=1)
        g = _silu(x_sel @ w_gate)
        u = x_sel @ w_up
        y = (g * u) @ w_down
        r_sel = _sigmoid((lambda x, i, axis: torch.take_along_dim(x, i, dim=axis))(r, idx, axis=1))
        y = y * r_sel.reshape(B, C, 1)
        b_off = (torch.arange(B) * S).reshape(B, 1)
        flat_idx = (idx + b_off).reshape(B * C)
        zero = (x * 0.0).reshape(B * S, D)
        upd = _scatter_add(zero, flat_idx, y.reshape(B * C, D), axis=0)
        return x + upd.reshape(B, S, D)

    x = A_x
    h = x + _A_ref(_layernorm(x, axis=-1), A_k_cache, A_v_cache, A_wq, A_wo)
    h2 = h + _B_ref(_layernorm(h, axis=-1), B_w_r, B_w_gate, B_w_up, B_w_down)
    return h2
```

```python
import re
TRANS = ("v_exp_f32", "v_log_f32", "v_rcp_f32", "v_rsq_f32", "v_sqrt_f32", "v_sin_f32", "v_cos_f32")
def regs_of(tok):
    tok = tok.strip()
    tok = tok.replace("-", "").replace("abs(", "").replace(")", "").replace("|", "") if not re.match(r"^-?\d", tok) else tok
    m = re.match(r"^([vsa])\[(\d+):(\d+)\]$", tok)
    if m: return [(m.group(1), i) for i in range(int(m.group(2)), int(m.group(3)) + 1)]
    m = re.match(r"^([vsa])(\d+)$", tok)
    if m: return [(m.group(1), int(m.group(2)))]
    if tok == "vcc": return [("s", "vcc")]
    if tok == "exec": return [("s", "exec")]
    if tok == "m0": return [("s", "m0")]
    return []
class Ins:
    def __init__(self, text):
        self.text = text
        t = text.split(";")[0].strip()
        self.label = t.endswith(":") or t.startswith(".") or t == ""
        self.op = t.split()[0] if t else ""
        rest = t[len(self.op):].strip()
        ops = []; cur = ""; d = 0
        for ch in rest:
            if ch == "[": d += 1
            if ch == "]": d -= 1
            if ch == "," and d == 0: ops.append(cur.strip()); cur = ""
            else: cur += ch
        if cur.strip(): ops.append(cur.strip())
        self.mods = ""
        if ops:
            last = ops[-1].split()
            ops[-1] = last[0]; self.mods = " ".join(last[1:])
        self.ops = ops
        op = self.op
        self.mfma = op.startswith("v_mfma")
        self.valu = op.startswith("v_") and not self.mfma
        self.ds = op.startswith("ds_")
        self.vmem = op.startswith(("buffer_", "global_"))
        self.salu = op.startswith("s_")
        self.dpp = "_dpp" in op
        self.trans = op.replace("_e32", "").replace("_e64", "") in TRANS
        self.perml = op.startswith("v_permlane")
        self.rdlane = op.startswith(("v_readlane", "v_readfirstlane"))
        R = [regs_of(o) for o in ops]
        self.w = []; self.r = []; self.srcc = []
        if self.label: return
        if self.mfma:
            self.w = R[0]; self.r = R[1] + R[2]; self.srcc = R[3]
        elif self.valu:
            if self.perml: self.w = R[0] + R[1]; self.r = R[0] + R[1]
            else:
                self.w = R[0]; self.r = sum(R[1:], [])
                if op.startswith(("v_fmac", "v_dot2c")) or (self.dpp): self.r += R[0]
                if op.startswith(("v_add_co", "v_addc_co", "v_sub_co")): self.w = R[0] + R[1]; self.r = sum(R[2:], [])
        elif self.ds:
            if op.startswith(("ds_read", "ds_bpermute", "ds_swizzle")): self.w = R[0]; self.r = sum(R[1:], [])
            else: self.r = sum(R, [])
        elif self.vmem:
            if "load" in op and "lds" not in self.mods.split() and "_lds_" not in op: self.w = R[0]; self.r = sum(R[1:], [])
            else: self.r = sum(R, [])
            if "lds" in self.mods.split() or "_lds_" in op: self.r += [("s", "m0")]
        elif self.salu:
            if op.startswith(("s_cmp", "s_cbranch", "s_branch", "s_waitcnt", "s_barrier", "s_nop", "s_sleep", "s_endpgm", "s_setprio")):
                self.r = sum(R, [])
            else:
                self.w = R[0] if R else []; self.r = sum(R[1:], [])
    def passes(self):
        if "32x32x16" in self.op or "32x32x8" in self.op: return 8
        if "16x16x4_f32" in self.op: return 8
        if "16x16x32" in self.op or "16x16x16" in self.op: return 4
        raise Exception(self.op)
    def states(self):
        if self.label: return 0
        if self.op == "s_nop": return int(self.ops[0], 0) + 1
        return 1
def need(p, c):
    n = 0
    pw = set(p.w);
    cr = set(c.r); cw = set(c.w); cc = set(c.srcc)
    if p.valu:
        vw = {x for x in pw if x[0] == "v"}; sw = {x for x in pw if x[0] == "s"}
        if c.dpp and vw & cr: n = max(n, 2)
        if c.perml and vw & cr: n = max(n, 2)
        if c.mfma and vw & (cr | cc): n = max(n, 2)
        if c.rdlane and vw & cr: n = max(n, 1)
        if p.trans and c.valu and vw & cr: n = max(n, 1)
        if p.trans and (c.mfma or c.ds or c.vmem) and vw & cr: n = max(n, 1)
        if "sdwa" in p.op and c.valu and vw & (cr | cw): n = max(n, 1)
        if sw:
            if c.valu and sw & cr: n = max(n, 4 if c.rdlane else 2)
            if c.valu and c.op.startswith("v_cndmask") and len(c.ops) == 3 and ("s", "vcc") in sw: n = max(n, 2)
            if c.vmem and sw & cr: n = max(n, 5)
            if c.salu and sw & cr: n = max(n, 1)
            if c.op in ("s_cbranch_vccz", "s_cbranch_vccnz") and ("s", "vcc") in sw: n = max(n, 1)
    if p.mfma:
        ps = p.passes(); sg = "_f32" in p.op[12:] and p.op.endswith("x4_f32")
        full = {4: 8, 8: 12}[ps] if not sg else 10
        if c.mfma:
            if pw & cr: n = max(n, full)
            if pw & cc and not (set(c.srcc) == pw and c.op == p.op): n = max(n, {4: 6, 8: 10}[ps])
            if pw & cw and not (pw & cc): n = max(n, 0)
        elif (c.valu or c.ds or c.vmem) and pw & (cr | cw): n = max(n, full)
        if c.valu and set(p.srcc) & cw: n = max(n, {4: 3, 8: 7}[ps])
    if p.vmem and "store" in p.op and ("x4" in p.op or "x3" in p.op):
        data = set(regs_of(p.ops[0] if p.op.startswith("buffer") else p.ops[1]))
        if data & cw: n = max(n, 2)
    if p.salu and ("s", "m0") in pw and c.vmem and ("s", "m0") in cr: n = max(n, 1)
    return n
class Asm:
    def __init__(self): self.L = []
    def __call__(self, s):
        for line in s.split("\n"):
            line = line.strip()
            if line: self.L.append(line)
    def finish(self):
        out = []; hist = []
        nn = 0
        for line in self.L:
            i = Ins(line)
            if not i.label:
                dist = 0; req = 0
                for p in reversed(hist):
                    r = need(p, i) - dist
                    req = max(req, r)
                    dist += p.states()
                    if dist >= 24: break
                if req > 0:
                    nop = Ins(f"s_nop {req-1}"); out.append(nop.text); hist.append(nop); nn += 1
                hist.append(i)
            out.append(line if i.label else "    " + line)
        self.nops = nn
        return "\n".join(out) + "\n"
```

```python
import sys
from asmlib import Asm
NAME = "sequential_preLN__sliding_block_cached__moe_arch_mod__decode"

WS_QPART = 0x0
WS_CLR   = 0x100000
WS_SLAB  = 0x100000
WS_HBUF  = 0x1A0000
WS_ACT   = 0x1A4000
WS_SIZE  = 0x200000
WS_STAMP = 0x4000000
L_XN    = 0
L_H     = 10496
L_YP    = 20992
L_OP    = 41472
L_RED   = 45824
L_SM    = 50176
L_SIG   = 50240
L_W     = 51200
L_TOT   = 51200 + 57344
XS = 1312
S_X, S_K, S_V, S_WQ, S_WO, S_WR, S_WG, S_WU, S_WD, S_OUT, S_DBG, S_WS = 16, 18, 20, 22, 24, 28, 30, 32, 34, 36, 38, 40
R_K, R_V, R_WQ, R_WO, R_F, R_WS, R_ACT = 44, 48, 52, 56, 60, 64, 68
S_C4K = 72
S_FOFF = 80
S_H, S_B, S_W, S_ROLE, S_IDX, S_JOB = 3, 4, 5, 6, 7, 8
S_T0, S_T1, S_T2, S_T3 = 10, 11, 12, 13
S_M = 14
S_SPIN = 9
S_ST = 88
S_2560 = 87
S_LM0 = 42
S_PAR = 43
V_L = 1
V_K, V_V, V_WOA, V_F = 2, 3, 4, 5
V_MASK = 8
V_SC = 12
V_ACC = 20
V_Q = 28
V_T = 44
V_WO = 48
V_RING = 128
DPPF = "row_mask:0xf bank_mask:0xf"
LOG2E = "0x3fb8aa3b"

def slot(t): return V_RING + 4 * t
def vr(a, n): return f"v[{a}:{a+n-1}]"

class G:
    def __init__(self, D=4, stamps=False, flagpos=14, vextra=6, ffn_at="end", D_even=None, sleep=1):
        self.A = Asm(); self.D = D; self.stamps = stamps
        self.vm = []
        self.flagpos = flagpos; self.vextra = vextra; self.ffn_at = ffn_at
        self.D_even = D_even; self.sleep = sleep
        self.done = 0
        self.uid = 0
    def issue(self, name, text):
        self.A(text); self.vm.append(name)
    def wait(self, name):
        i = len(self.vm) - 1 - self.vm[::-1].index(name)
        if i < self.done: return
        self.A(f"s_waitcnt vmcnt({len(self.vm) - 1 - i})"); self.done = i + 1
    def throttle(self, D=None):
        D = D or self.D
        if len(self.vm) - self.done > D - 1:
            self.A(f"s_waitcnt vmcnt({D-1})"); self.done = len(self.vm) - (D - 1)
        if self.D_even and D == self.D and self.D_even < D:
            self.uid += 1
            self.A(f"s_cbranch_scc1 L_thr{self.uid}\ns_waitcnt vmcnt({self.D_even-1})\nL_thr{self.uid}:")
    def setpar(self):
        if self.D_even: self.A(f"s_cmp_eq_u32 s{S_PAR}, 1")
    def waitall(self):
        self.A("s_waitcnt vmcnt(0)"); self.done = len(self.vm)
    def stamp(self, i):
        if self.stamps: self.A(f"s_memrealtime s[{S_ST+2*i}:{S_ST+2*i+1}]")
    def spin_guard(self, lab):
        A = self.A
        if self.sleep: A(f"s_sleep {self.sleep}")
        A(f"s_sub_u32 s{S_SPIN}, s{S_SPIN}, 1\ns_cmp_eq_u32 s{S_SPIN}, 0\ns_cbranch_scc0 {lab}\ns_branch L_end")

    def rnd_pair(self, a, b, t):
        self.A(f"v_cvt_pk_bf16_f32 v{t}, v{a}, v{b}\nv_lshlrev_b32 v{a}, 16, v{t}\nv_and_b32 v{b}, 0xffff0000, v{t}")
    def rnd1(self, a):
        self.A(f"v_cvt_pk_bf16_f32 v{a}, v{a}, v{a}\nv_and_b32 v{a}, 0xffff0000, v{a}")

    def layernorm(self, src, f, t, out):
        A = self.A
        for i in range(5):
            A(f"v_lshlrev_b32 v{f+2*i}, 16, v{src+i}\nv_and_b32 v{f+2*i+1}, 0xffff0000, v{src+i}")
        A(f"v_readfirstlane_b32 s{S_T0}, v{f}")
        for i in range(10): A(f"v_subrev_f32 v{t+i}, s{S_T0}, v{f+i}")
        s1, s2, s3, s4 = out, out + 1, out + 2, out + 3
        A(f"v_add_f32 v{s1}, v{t}, v{t+1}\nv_mul_f32 v{s2}, v{t}, v{t}\nv_add_f32 v{s3}, v{t+2}, v{t+3}\nv_mul_f32 v{s4}, v{t+1}, v{t+1}")
        for i in range(2, 10, 2):
            A(f"v_fmac_f32 v{s2}, v{t+i}, v{t+i}\nv_fmac_f32 v{s4}, v{t+i+1}, v{t+i+1}")
            if i >= 4: A(f"v_add_f32 v{s1}, v{s1}, v{t+i}\nv_add_f32 v{s3}, v{s3}, v{t+i+1}")
        A(f"v_add_f32 v{s1}, v{s1}, v{s3}\nv_add_f32 v{s2}, v{s2}, v{s4}")
        A(f"v_permlane32_swap_b32 v{s1}, v{s2}\nv_add_f32 v{s1}, v{s1}, v{s2}")
        for m in ("quad_perm:[1,0,3,2]", "quad_perm:[2,3,0,1]", "row_half_mirror", "row_mirror"):
            A(f"v_add_f32_dpp v{s1}, v{s1}, v{s1} {m} {DPPF}")
        A(f"v_add_f32_dpp v{s1}, v{s1}, v{s1} row_bcast:15 row_mask:0xa bank_mask:0xf")
        A(f"v_mul_f32 v{s1}, 0x3acccccd, v{s1}")
        A(f"v_readlane_b32 s{S_T1}, v{s1}, 31\nv_readlane_b32 s{S_T2}, v{s1}, 63")
        A(f"v_mov_b32 v{s2}, s{S_T1}\nv_add_f32 v{s1}, s{S_T0}, v{s2}\nv_fma_f32 v{s2}, -v{s2}, v{s2}, s{S_T2}\nv_max_f32 v{s2}, 0, v{s2}")
        self.rnd_pair(s1, s2, s3)
        A(f"v_add_f32 v{s2}, 0x3727c5ac, v{s2}")
        self.rnd1(s2)
        A(f"v_sqrt_f32 v{s2}, v{s2}")
        for i in range(10): A(f"v_sub_f32 v{f+i}, v{f+i}, v{s1}")
        self.rnd1(s2)
        A(f"v_rcp_f32 v{t+9-0}, v{s2}")
        for i in range(5): self.rnd_pair(f+2*i, f+2*i+1, t + i)
        for i in range(10): A(f"v_mul_f32 v{f+i}, v{f+i}, v{t+9}")
        for i in range(5): A(f"v_cvt_pk_bf16_f32 v{out+i}, v{f+2*i}, v{f+2*i+1}")

    def gen(self):
        A = self.A
        A(f"; @launch grid=(256,1,1) block=(512,1,1) lds={L_TOT}")
        A('.amdgcn_target "amdgcn-amd-amdhsa--gfx950"\n.text')
        A(f".globl {NAME}_kernel\n.p2align 8\n.type {NAME}_kernel,@function\n{NAME}_kernel:")
        A("s_cmp_ge_u32 s2, 256\ns_cbranch_scc1 L_end")
        A("s_load_dwordx16 s[16:31], s[0:1], 0\ns_load_dwordx8 s[32:39], s[0:1], 64\ns_load_dwordx2 s[40:41], s[0:1], 96")
        self.stamp(0)
        A(f"""
        v_lshrrev_b32 v6, 6, v0
        v_and_b32 v{V_L}, 63, v0
        s_and_b32 s{S_T0}, s2, 7
        v_readfirstlane_b32 s{S_W}, v6
        s_lshr_b32 s{S_T1}, s2, 3
        s_and_b32 s{S_T2}, s{S_T1}, 3
        s_lshl_b32 s{S_H}, s{S_T0}, 2
        s_add_u32 s{S_H}, s{S_H}, s{S_T2}
        s_lshr_b32 s{S_B}, s{S_T1}, 2
        s_lshl_b32 s{S_T3}, s{S_B}, 5
        s_add_u32 s{S_T3}, s{S_T3}, s{S_H}
        s_lshl_b32 s{S_T3}, s{S_T3}, 20
        s_add_u32 s{S_T3}, s{S_T3}, 0xC0000
        """)
        A(f"""
        v_lshlrev_b32 v7, 15, v6
        v_lshlrev_b32 v{V_T}, 4, v{V_L}
        v_add_u32 v{V_V}, v7, v{V_T}
        v_and_b32 v{V_K}, 3, v0
        v_lshl_add_u32 v{V_K}, v{V_K}, 4, v7
        v_bfe_u32 v{V_T+1}, v0, 2, 2
        v_lshl_add_u32 v{V_K}, v{V_T+1}, 10, v{V_K}
        v_bfe_u32 v{V_T+2}, v0, 4, 2
        v_lshl_add_u32 v{V_K}, v{V_T+2}, 6, v{V_K}
        v_mul_u32_u24 v{V_ACC}, 1280, v6
        v_lshl_add_u32 v{V_ACC+1}, v{V_L}, 2, v{V_ACC}
        v_add_u32 v{V_ACC}, v{V_ACC}, v{V_T}
        v_and_b32 v{V_T+3}, 15, v0
        v_and_b32 v{V_ACC+2}, 1, v6
        v_lshlrev_b32 v{V_ACC+2}, 3, v{V_ACC+2}
        v_lshl_add_u32 v{V_ACC+2}, v{V_T+2}, 1, v{V_ACC+2}
        v_xor_b32 v{V_ACC+2}, v{V_ACC+2}, v{V_T+3}
        v_lshlrev_b32 v{V_ACC+2}, 4, v{V_ACC+2}
        v_lshl_add_u32 v{V_ACC+3}, v6, 2, v{V_T+2}
        v_lshl_add_u32 v{V_ACC+2}, v{V_ACC+3}, 13, v{V_ACC+2}
        """)
        A(f"""
        s_mul_i32 s{S_T1}, s{S_B}, {80*8192}
        s_lshl_b32 s{S_T2}, s{S_H}, 8
        s_add_u32 s{S_T1}, s{S_T1}, s{S_T2}
        s_lshl_b32 s{S_LM0}, s{S_W}, 10
        s_add_u32 s{S_LM0}, s{S_LM0}, {L_W}
        s_mov_b32 m0, s{S_LM0}
        s_mov_b32 s{R_WQ+2}, {79*8192+256}
        s_mov_b32 s{R_WQ+3}, 0x20000
        s_mov_b32 s{R_K+2}, 0x40000
        s_mov_b32 s{R_K+3}, 0x20000
        s_mov_b32 s{S_FOFF}, 0x40000
        s_mov_b32 s{S_FOFF+1}, 0x80000
        s_waitcnt lgkmcnt(0)
        s_add_u32 s{R_WQ}, s{S_WQ}, s{S_T1}
        s_addc_u32 s{R_WQ+1}, s{S_WQ+1}, 0
        s_add_u32 s{R_K}, s{S_K}, s{S_T3}
        s_addc_u32 s{R_K+1}, s{S_K+1}, 0
        """)
        XR = V_Q
        self.issue("x0", f"global_load_dwordx4 {vr(XR,4)}, v{V_ACC}, s[{S_X}:{S_X+1}] nt")
        self.issue("x1", f"global_load_dword v{XR+4}, v{V_ACC+1}, s[{S_X}:{S_X+1}] offset:1024 nt")
        self.issue("wq0", f"buffer_load_dwordx4 v{V_ACC+2}, s[{R_WQ}:{R_WQ+3}], 0 offen nt lds")
        A(f"s_add_u32 m0, s{S_LM0}, 8192")
        self.issue("wq1", f"buffer_load_dwordx4 v{V_ACC+2}, s[{R_WQ}:{R_WQ+3}], s{S_FOFF} offen nt lds")
        A(f"s_add_u32 m0, s{S_LM0}, 16384")
        self.issue("wq2", f"buffer_load_dwordx4 v{V_ACC+2}, s[{R_WQ}:{R_WQ+3}], s{S_FOFF+1} offen nt lds")
        def ldK(t): self.issue(f"K{t}", f"buffer_load_dwordx4 {vr(slot(t),4)}, v{V_K}, s[{R_K}:{R_K+3}], {'s%d'%(S_C4K+(t>>2)) if t>=4 else '0'} offen offset:{(t&3)*256} nt")
        def ldV(t): self.issue(f"V{t}", f"buffer_load_dwordx4 {vr(slot(t),4)}, v{V_V}, s[{R_V}:{R_V+3}], s{S_C4K+(t>>2)} offen offset:{(t&3)*1024} nt")
        def ldO(i):
            tp, ct = i // 5, i % 5
            so = f"s{S_2560}" if tp >= 2 else "0"
            self.issue(f"O{i}", f"buffer_load_dwordx4 {vr(V_WO+4*i,4)}, v{V_WOA}, s[{R_WO}:{R_WO+3}], {so} offen offset:{(tp&1)*1280+ct*256} nt")
        def ldF(i):
            A(f"s_add_u32 m0, s{S_LM0}, {i*1024}")
            self.issue(f"F{i}", f"buffer_load_dwordx4 v{V_F}, s[{R_F}:{R_F+3}], s{S_FOFF+i} offen nt lds")
            self.setpar()
        for t in range(4): ldK(t)
        A(f"""
        s_add_u32 s{R_V}, s{S_V}, s{S_T3}
        s_addc_u32 s{R_V+1}, s{S_V+1}, 0
        s_mov_b32 s{R_V+2}, 0x40000
        s_mov_b32 s{R_V+3}, 0x20000
        s_mul_i32 s{S_T1}, s{S_H}, 163840
        s_add_u32 s{R_WO}, s{S_WO}, s{S_T1}
        s_addc_u32 s{R_WO+1}, s{S_WO+1}, 0
        s_mov_b32 s{R_WO+2}, 163840
        s_mov_b32 s{R_WO+3}, 0x20000
        s_mov_b32 s{R_WS}, s{S_WS}
        s_mov_b32 s{R_WS+1}, s{S_WS+1}
        s_mov_b32 s{R_WS+2}, {WS_SIZE}
        s_mov_b32 s{R_WS+3}, 0x20000
        s_add_u32 s{R_ACT}, s{S_WS}, {WS_ACT}
        s_addc_u32 s{R_ACT+1}, s{S_WS+1}, 0
        s_mov_b32 s{R_ACT+2}, {216*128}
        s_mov_b32 s{R_ACT+3}, 0x20000
        s_mov_b32 s{S_2560}, 2560
        s_mov_b32 s{S_SPIN}, 0x100000
        s_getreg_b32 s{S_PAR}, hwreg(HW_REG_XCC_ID)
        s_and_b32 s{S_PAR}, s{S_PAR}, 1
        """)
        for i in range(8): A(f"s_mov_b32 s{S_C4K+i}, {i*4096}")
        A(f"""
        s_and_b32 s{S_T1}, s{S_T0}, 1
        s_lshl_b32 s{S_T1}, s{S_T1}, 5
        s_lshr_b32 s{S_T2}, s{S_T0}, 1
        s_add_u32 s{S_T1}, s{S_T1}, s{S_T2}
        s_lshl_b32 s{S_T2}, s{S_B}, 2
        s_add_u32 s{S_T1}, s{S_T1}, s{S_T2}
        s_lshl_b32 s{S_T1}, s{S_T1}, 2
        s_and_b32 s{S_T2}, s{S_H}, 3
        s_add_u32 s{S_IDX}, s{S_T1}, s{S_T2}
        s_mul_i32 s{S_LM0}, s{S_W}, 7168
        s_add_u32 s{S_LM0}, s{S_LM0}, {L_W}
        s_mov_b32 s{R_F+3}, 0x20000
        s_mov_b32 s{S_ROLE}, 2
        s_cmp_lt_u32 s{S_IDX}, 40
        s_cbranch_scc1 L_rdown
        s_sub_u32 s{S_IDX}, s{S_IDX}, 40
        s_cmp_lt_u32 s{S_IDX}, 108
        s_cselect_b32 s{S_ROLE}, 1, 0
        s_mov_b32 s{R_F+2}, {640*3456}
        """)
        for i in range(5): A(f"s_cselect_b32 s{S_FOFF+i}, {i*32*3456}, s{R_F+2}")
        A(f"""
        s_cmp_lt_u32 s{S_W}, 4
        s_cselect_b32 s{R_F}, s{S_WG}, s{S_WU}
        s_cselect_b32 s{R_F+1}, s{S_WG+1}, s{S_WU+1}
        s_and_b32 s{S_T1}, s{S_W}, 3
        s_mul_i32 s{S_T1}, s{S_T1}, {160*3456}
        s_mov_b32 s{S_T2}, 3456
        """)
        A(f"""
        s_mov_b32 s{S_FOFF+5}, s{R_F+2}
        s_mov_b32 s{S_FOFF+6}, s{R_F+2}
        s_branch L_rdone
        L_rdown:
        s_mov_b32 s{R_F}, s{S_WD}
        s_mov_b32 s{R_F+1}, s{S_WD+1}
        s_mov_b32 s{R_F+2}, {1728*1280}
        s_mul_i32 s{S_T1}, s{S_W}, {224*1280}
        s_mov_b32 s{S_T2}, 1280
        """)
        for i in range(7): A(f"s_mov_b32 s{S_FOFF+i}, {i*32*1280}")
        A(f"""
        L_rdone:
        s_lshl_b32 s{S_T3}, s{S_IDX}, 5
        s_add_u32 s{S_T1}, s{S_T1}, s{S_T3}
        v_lshrrev_b32 v{V_F}, 1, v{V_L}
        v_mul_u32_u24 v{V_F}, s{S_T2}, v{V_F}
        v_and_b32 v7, 1, v0
        v_lshl_add_u32 v{V_F}, v7, 4, v{V_F}
        v_add_u32 v{V_F}, s{S_T1}, v{V_F}
        """)
        A(f"""
        v_mul_u32_u24 v{V_WOA}, 5120, v{V_ACC+3}
        v_lshl_add_u32 v{V_WOA}, v{V_T+3}, 4, v{V_WOA}
        v_lshlrev_b32 v7, 4, v7
        v_mov_b32 v{V_ACC+4}, 0xffff
        v_lshlrev_b32 v7, v7, v{V_ACC+4}
        v_lshrrev_b32 v{V_ACC+4}, 1, v{V_T+3}
        """)
        for r in range(4): A(f"v_cmp_eq_u32 vcc, {r}, v{V_ACC+4}\nv_cndmask_b32 v{V_MASK+r}, 0, v7, vcc")
        self.wait("x1")
        F0, T0 = V_WO, V_WO + 10
        self.layernorm(XR, F0, T0, XR + 8)
        XO = XR + 8
        A(f"""
        v_mul_u32_u24 v7, {XS}, v6
        v_add_u32 v{V_ACC}, v7, v{V_T}
        v_lshl_add_u32 v{V_ACC+1}, v{V_L}, 2, v7
        ds_write_b128 v{V_ACC}, {vr(XO,4)} offset:{L_XN}
        ds_write_b32 v{V_ACC+1}, v{XO+4} offset:{L_XN+1024}
        """)
        A(f"""
        v_bfe_u32 v{V_ACC}, v0, 2, 3
        v_lshlrev_b32 v{V_ACC}, 1, v{V_ACC}
        v_bfe_u32 v{V_ACC+1}, v0, 1, 1
        v_lshl_add_u32 v{V_ACC+1}, v6, 1, v{V_ACC+1}
        v_xor_b32 v{V_ACC}, v{V_ACC}, v{V_ACC+1}
        v_lshlrev_b32 v{V_ACC}, 4, v{V_ACC}
        v_and_b32 v{V_ACC+1}, 1, v0
        v_lshl_add_u32 v{V_ACC}, v{V_ACC+1}, 3, v{V_ACC}
        v_bfe_u32 v{V_ACC+1}, v0, 2, 4
        v_lshl_add_u32 v{V_ACC}, v{V_ACC+1}, 8, v{V_ACC}
        v_add_u32 v{V_ACC}, {L_W}, v{V_ACC}
        v_and_b32 v{V_ACC+2}, 7, v0
        v_mul_u32_u24 v{V_ACC+1}, {XS}, v{V_ACC+2}
        v_lshl_add_u32 v{V_ACC+1}, v{V_T+2}, 3, v{V_ACC+1}
        s_mul_i32 s{S_T1}, s{S_B}, 160
        v_add_u32 v{V_ACC+1}, s{S_T1}, v{V_ACC+1}
        v_lshlrev_b32 v{V_ACC+2}, 9, v{V_ACC+2}
        v_lshl_add_u32 v{V_ACC+2}, v{V_ACC+3}, 4, v{V_ACC+2}
        """)
        self.wait("wq2")
        A("s_waitcnt lgkmcnt(0)\ns_barrier")
        for s in range(5):
            A(f"ds_read_b64_tr_b16 {vr(F0+2*s,2)}, v{V_ACC} offset:{4096*s}")
            A(f"ds_read_b64 {vr(F0+10+2*s,2)}, v{V_ACC+1} offset:{L_XN+32*s}")
        self.setpar()
        self.throttle(); ldK(4)
        for s in range(5):
            A(f"s_waitcnt lgkmcnt({8-2*s})")
            A(f"v_mfma_f32_16x16x16_bf16 {vr(V_ACC+4,4)}, {vr(F0+2*s,2)}, {vr(F0+10+2*s,2)}, {vr(V_ACC+4,4) if s else '0'}")
        self.throttle(); ldK(5)
        A(f"ds_write_b128 v{V_ACC+2}, {vr(V_ACC+4,4)} offset:{L_YP}")
        A("s_waitcnt lgkmcnt(0)\ns_barrier")
        self.stamp(1)
        A(f"s_cmp_eq_u32 s{S_W}, 7\ns_cbranch_scc0 L_nopub")
        for i in range(4): A(f"ds_read_b128 {vr(V_Q+4*i,4)}, v{V_T} offset:{L_YP+1024*i}")
        A(f"""
        s_mul_i32 s{S_T1}, s2, 3072
        s_add_u32 s{S_T1}, s{S_T1}, {WS_CLR}
        v_mov_b32 v{V_SC}, -1
        v_mov_b32 v{V_SC+1}, -1
        v_mov_b32 v{V_SC+2}, -1
        v_mov_b32 v{V_SC+3}, -1
        buffer_store_dwordx4 {vr(V_SC,4)}, v{V_T}, s[{R_WS}:{R_WS+3}], s{S_T1} offen sc1
        buffer_store_dwordx4 {vr(V_SC,4)}, v{V_T}, s[{R_WS}:{R_WS+3}], s{S_T1} offen offset:1024 sc1
        buffer_store_dwordx4 {vr(V_SC,4)}, v{V_T}, s[{R_WS}:{R_WS+3}], s{S_T1} offen offset:2048 sc1
        v_lshrrev_b32 v7, 5, v{V_L}
        v_and_b32 v{V_ACC}, 31, v0
        v_lshlrev_b32 v{V_ACC}, 4, v{V_ACC}
        v_lshl_add_u32 v7, v7, 12, v{V_ACC}
        s_lshl_b32 s{S_T1}, s{S_H}, 15
        s_lshl_b32 s{S_T2}, s{S_B}, 9
        s_add_u32 s{S_T1}, s{S_T1}, s{S_T2}
        v_add_u32 v7, s{S_T1}, v7
        """)
        for i in range(4):
            A(f"s_waitcnt lgkmcnt({3-i})")
            A(f"buffer_store_dwordx4 {vr(V_Q+4*i,4)}, v7, s[{R_WS}:{R_WS+3}], s{S_C4K+2*i} offen sc1")
        A(f"""
        v_mov_b32 v{V_ACC}, s2
        v_mov_b32 v{V_ACC+1}, 1
        s_waitcnt vmcnt(0)
        s_mov_b64 exec, 1
        global_store_byte v{V_ACC}, v{V_ACC+1}, s[{S_DBG}:{S_DBG+1}] sc1
        s_mov_b64 exec, -1
        L_nopub:
        """)
        self.setpar()
        rest = [("K", t) for t in range(6, 32)] + [("V", t) for t in range(32)]
        extra = [("O", i) for i in range(20)]
        if self.ffn_at == "mix": extra += [("F", i) for i in range(7)]
        seq = []; j = 0; n = len(rest) - 4
        for i, x in enumerate(rest):
            while j < len(extra) and j * n <= i * len(extra): seq.append(extra[j]); j += 1
            seq.append(x)
        assert j == len(extra)
        if self.ffn_at == "end": seq += [("F", i) for i in range(7)]
        pos = 0
        def nxt(D=None, upto=None):
            nonlocal pos
            k, t = seq[pos]; pos += 1
            self.throttle(D)
            {"K": ldK, "V": ldV, "O": ldO, "F": ldF}[k](t)
        def until(item, D=None):
            while f"{item[0]}{item[1]}" not in self.vm: nxt(D)
        until(("K", self.flagpos))
        A(f"v_lshlrev_b32 v7, 2, v{V_L}")
        self.throttle()
        self.issue("flag", f"global_load_dword v6, v7, s[{S_DBG}:{S_DBG+1}] sc1")
        A(f"""
        v_bfe_u32 v{V_T+1}, v0, 2, 2
        v_lshlrev_b32 v{V_T+1}, 10, v{V_T+1}
        v_lshl_add_u32 v{V_T+1}, v{V_T+2}, 7, v{V_T+1}
        v_and_b32 v{V_ACC}, 3, v0
        v_lshl_add_u32 v{V_T+1}, v{V_ACC}, 5, v{V_T+1}
        s_lshl_b32 s{S_T1}, s{S_H}, 15
        s_lshl_b32 s{S_T2}, s{S_B}, 12
        s_add_u32 s{S_T1}, s{S_T1}, s{S_T2}
        s_mov_b32 s{S_T3}, 0x01010101
        """)
        self.setpar()
        for _ in range(self.D - 1): nxt()
        self.wait("flag")
        A(f"""
        v_cmp_ne_u32 vcc, s{S_T3}, v6
        s_cbranch_vccz L_flagok
        L_flagretry:
        global_load_dword v6, v7, s[{S_DBG}:{S_DBG+1}] sc1
        s_waitcnt vmcnt(0)
        v_cmp_ne_u32 vcc, s{S_T3}, v6
        s_cbranch_vccz L_flagok
        """)
        self.spin_guard("L_flagretry")
        A("L_flagok:")
        for e in range(2):
            for hf in range(2):
                self.issue(f"qg{e}{hf}", f"buffer_load_dwordx4 {vr(V_Q+8*e+4*hf,4)}, v{V_T+1}, s[{R_WS}:{R_WS+3}], s{S_T1} offen offset:{e*512+hf*16} sc1")
        self.setpar()
        for _ in range(self.D - 1): nxt(self.D + 3)
        self.wait("qg11")
        self.stamp(2)
        for i in range(8): A(f"v_add_f32 v{V_ACC+i}, v{V_Q+i}, v{V_Q+8+i}")
        for m in ("row_ror:8", "row_ror:4"):
            for i in range(8): A(f"v_add_f32_dpp v{V_ACC+i}, v{V_ACC+i}, v{V_ACC+i} {m} {DPPF}")
        for i in range(4): A(f"v_cvt_pk_bf16_f32 v{V_ACC+i}, v{V_ACC+2*i}, v{V_ACC+2*i+1}")
        for u in range(4):
            A(f"s_mov_b32 s{S_M}, {0x000F000F << (4*u)}\ns_mov_b32 s{S_M+1}, {0x000F000F << (4*u)}")
            for r in range(4): A(f"v_cndmask_b32 v{V_Q+4*u+r}, 0, v{V_ACC+r}, s[{S_M}:{S_M+1}]")
        def extract(T):
            a = V_ACC + 4 * (T & 1)
            A(f"v_mov_b32_dpp v{V_SC+T}, v{a} quad_perm:[0,0,0,0] {DPPF}")
            for q in range(1, 4): A(f"v_add_f32_dpp v{V_SC+T}, v{a+q}, v{V_SC+T} quad_perm:[{q},{q},{q},{q}] {DPPF}")
        for T in range(8):
            a = V_ACC + 4 * (T & 1)
            until(("K", 4*T+3))
            while len(self.vm) - 1 - self.vm.index(f"K{4*T+3}") < self.D - 1:
                k, t = seq[pos]
                if k == "V": assert t < 4 * T, (t, T)
                nxt()
            self.wait(f"K{4*T+3}")
            for u in range(4):
                A(f"v_mfma_f32_16x16x32_bf16 {vr(a,4)}, {vr(V_Q+4*u,4)}, {vr(slot(4*T+u),4)}, {vr(a,4) if u else '0'}")
            if T: extract(T - 1)
            if T < 4 and seq[pos][0] != "V": nxt()
        for _ in range(self.vextra): nxt(64)
        extract(7)
        t0 = V_ACC
        for a in range(4):
            x, y = V_SC + 2*a, V_SC + 2*a + 1
            self.rnd_pair(x, y, t0 + a)
            A(f"v_mul_f32 v{x}, 0x3db504f3, v{x}\nv_mul_f32 v{y}, 0x3db504f3, v{y}")
            self.rnd_pair(x, y, t0 + a)
        m, tm, l = V_Q, V_Q + 2, V_Q + 1
        A(f"v_max3_f32 v{m}, v{V_SC}, v{V_SC+1}, v{V_SC+2}\nv_max3_f32 v{tm}, v{V_SC+3}, v{V_SC+4}, v{V_SC+5}")
        A(f"v_max3_f32 v{m}, v{m}, v{V_SC+6}, v{V_SC+7}\nv_max_f32 v{m}, v{m}, v{tm}")
        def allred(op, v, tmp):
            for md in ("row_ror:8", "row_ror:4"): A(f"{op}_dpp v{v}, v{v}, v{v} {md} {DPPF}")
            for sw in ("v_permlane16_swap_b32", "v_permlane32_swap_b32"):
                A(f"v_mov_b32 v{tmp}, v{v}\n{sw} v{v}, v{tmp}\n{op} v{v}, v{v}, v{tmp}")
        allred("v_max_f32", m, tm)
        for i in range(8): A(f"v_sub_f32 v{t0+i}, v{V_SC+i}, v{m}")
        for i in range(8): A(f"v_mul_f32 v{t0+i}, {LOG2E}, v{t0+i}")
        for i in range(8): A(f"v_exp_f32 v{t0+i}, v{t0+i}")
        for i in range(4): A(f"v_add_f32 v{t0+i}, v{t0+i}, v{t0+4+i}")
        A(f"v_add_f32 v{t0}, v{t0}, v{t0+2}\nv_add_f32 v{t0+1}, v{t0+1}, v{t0+3}\nv_add_f32 v{l}, v{t0}, v{t0+1}")
        allred("v_add_f32", l, tm)
        A(f"""
        s_lshl_b32 s{S_T1}, s{S_W}, 3
        v_mov_b32 v7, s{S_T1}
        ds_write_b64 v7, {vr(m,2)} offset:{L_SM}
        v_and_b32 v7, 7, v0
        v_lshlrev_b32 v7, 3, v7
        s_waitcnt lgkmcnt(0)
        s_barrier
        ds_read_b64 {vr(m,2)}, v7 offset:{L_SM}
        """)
        self.stamp(3)
        self.setpar()
        nxt(64)
        A("s_waitcnt lgkmcnt(0)")
        A(f"v_max_f32_dpp v{tm}, v{m}, v{m} quad_perm:[1,0,3,2] {DPPF}")
        for md in ("quad_perm:[2,3,0,1]", "row_half_mirror"): A(f"v_max_f32_dpp v{tm}, v{tm}, v{tm} {md} {DPPF}")
        A(f"v_sub_f32 v{m}, v{m}, v{tm}\nv_mul_f32 v{m}, {LOG2E}, v{m}\nv_exp_f32 v{m}, v{m}")
        for i in range(8): A(f"v_sub_f32 v{V_SC+i}, v{V_SC+i}, v{tm}")
        A(f"v_mul_f32 v{l}, v{l}, v{m}")
        for i in range(8): A(f"v_mul_f32 v{V_SC+i}, {LOG2E}, v{V_SC+i}")
        for md in ("quad_perm:[1,0,3,2]", "quad_perm:[2,3,0,1]", "row_half_mirror"):
            A(f"v_add_f32_dpp v{l}, v{l}, v{l} {md} {DPPF}")
        for i in range(8): A(f"v_exp_f32 v{V_SC+i}, v{V_SC+i}")
        A(f"v_rcp_f32 v{l}, v{l}")
        for i in range(8): A(f"v_mul_f32 v{V_SC+i}, v{V_SC+i}, v{l}")
        for i in range(8): A(f"v_cvt_pk_bf16_f32 v{V_SC+i}, v{V_SC+i}, v{V_SC+i}")
        oacc = V_ACC
        def mkA(t):
            a = V_Q + 4 * (t & 1)
            for r in range(4): A(f"v_and_b32_dpp v{a+r}, v{V_SC+(t>>2)}, v{V_MASK+r} row_newbcast:{4*(t&3)} {DPPF}")
        mkA(0)
        tail_issued = False
        WR = slot(0); XP = slot(2); DUM = slot(2) + 1; VB = slot(3)
        for t in range(32):
            until(("V", t))
            while pos < len(seq) and len(self.vm) - 1 - self.vm.index(f"V{t}") < self.D - 1: nxt()
            if pos == len(seq) and not tail_issued:
                tail_issued = True
                assert t > 4
                self.tail_loads(WR, XP, DUM, VB)
            if t < 31: mkA(t + 1)
            self.wait(f"V{t}")
            A(f"v_mfma_f32_16x16x32_bf16 {vr(oacc,4)}, {vr(V_Q+4*(t&1),4)}, {vr(slot(t),4)}, {vr(oacc,4) if t else '0'}")
            if t >= 28:
                while pos < len(seq): nxt(64)
        if not tail_issued: self.tail_loads(WR, XP, DUM, VB)
        self.stamp(4)
        A(f"""
        v_lshlrev_b32 v6, 5, v{V_T+3}
        v_lshl_add_u32 v6, v{V_T+2}, 4, v6
        s_mul_i32 s{S_T1}, s{S_W}, 544
        s_mul_i32 s{S_T2}, s{S_W}, 2560
        v_add_u32 v7, s{S_T1}, v6
        v_add_u32 v6, s{S_T2}, v6
        v_and_b32 v{V_T+1}, 7, v0
        v_mul_u32_u24 v{V_T+1}, 544, v{V_T+1}
        v_lshl_add_u32 v{V_T+1}, v{V_T+2}, 4, v{V_T+1}
        s_lshl_b32 s{S_T1}, s{S_W}, 6
        v_add_u32 v{V_T+1}, s{S_T1}, v{V_T+1}
        s_mov_b32 exec_hi, 0
        ds_write_b128 v7, {vr(oacc,4)} offset:{L_OP}
        s_mov_b64 exec, -1
        s_waitcnt lgkmcnt(0)
        s_barrier
        ds_read_b128 {vr(oacc,4)}, v{V_T+1} offset:{L_OP}
        """)
        self.wait("O19")
        A("s_waitcnt lgkmcnt(0)")
        for md in ("quad_perm:[1,0,3,2]", "quad_perm:[2,3,0,1]", "row_half_mirror"):
            for i in range(4): A(f"v_add_f32_dpp v{oacc+i}, v{oacc+i}, v{oacc+i} {md} {DPPF}")
        for i in range(4): A(f"v_cvt_pk_bf16_f32 v{oacc+i}, v{oacc+i}, v{oacc+i}")
        YA = slot(8)
        for tp in range(4):
            for r in range(4): A(f"v_and_b32 v{V_Q+4*tp+r}, v{oacc+tp}, v{V_MASK+r}")
            if tp:
                for ct in range(5):
                    A(f"v_mfma_f32_16x16x32_bf16 {vr(YA+4*ct,4)}, {vr(V_Q+4*(tp-1),4)}, {vr(V_WO+4*((tp-1)*5+ct),4)}, {vr(YA+4*ct,4) if tp-1 else '0'}")
        for ct in range(5):
            A(f"v_mfma_f32_16x16x32_bf16 {vr(YA+4*ct,4)}, {vr(V_Q+12,4)}, {vr(V_WO+4*(15+ct),4)}, {vr(YA+4*ct,4)}")
        A("s_mov_b32 exec_hi, 0")
        for ct in range(5): A(f"ds_write_b128 v6, {vr(YA+4*ct,4)} offset:{L_YP+512*ct}")
        A(f"""
        s_mov_b64 exec, -1
        v_lshlrev_b32 v6, 4, v0
        s_lshl_b32 s{S_T1}, s{S_B}, 5
        s_add_u32 s{S_T1}, s{S_T1}, s{S_H}
        s_mul_i32 s{S_T1}, s{S_T1}, 2560
        s_add_u32 s{S_T1}, s{S_T1}, {WS_SLAB}
        s_cmp_lt_u32 s{S_W}, 3
        s_waitcnt lgkmcnt(0)
        s_barrier
        s_cbranch_scc0 L_noslab
        s_cmp_eq_u32 s{S_W}, 2
        s_cselect_b32 exec_hi, 0, -1
        """)
        P = slot(16)
        for i in range(8): A(f"ds_read_b128 {vr(P+4*i,4)}, v6 offset:{L_YP+2560*i}")
        for i in range(1, 8):
            A(f"s_waitcnt lgkmcnt({7-i})")
            A(f"v_pk_add_f32 {vr(P,2)}, {vr(P,2)}, {vr(P+4*i,2)}\nv_pk_add_f32 {vr(P+2,2)}, {vr(P+2,2)}, {vr(P+4*i+2,2)}")
        A(f"buffer_store_dwordx4 {vr(P,4)}, v6, s[{R_WS}:{R_WS+3}], s{S_T1} offen sc1")
        A("s_mov_b64 exec, -1\nL_noslab:")
        self.stamp(5)
        self.waitall_needed = True
        A(f"s_cmp_eq_u32 s{S_JOB}, 0\ns_cbranch_scc1 L_nored")
        A(f"s_mov_b32 s{S_T1}, {WS_SLAB}\ns_mov_b32 s{S_T2}, {WS_SLAB+20480}\ns_mov_b32 s{S_T3}, {WS_SLAB+40960}\ns_mov_b32 s{S_T0}, {WS_SLAB+61440}")
        A("L_redpoll:")
        for t, so in enumerate((S_T1, S_T2, S_T3, S_T0)):
            A(f"buffer_load_dwordx4 {vr(P+4*t,4)}, v{VB}, s[{R_WS}:{R_WS+3}], s{so} offen sc1")
        A("s_waitcnt vmcnt(0)")
        self.sentinel(P, 16, 6)
        A("s_cbranch_vccz L_redok")
        self.spin_guard("L_redpoll")
        A("L_redok:")
        for hh in (0, 2):
            A(f"v_pk_add_f32 {vr(P+hh,2)}, {vr(P+hh,2)}, {vr(P+4+hh,2)}\nv_pk_add_f32 {vr(P+8+hh,2)}, {vr(P+8+hh,2)}, {vr(P+12+hh,2)}")
        for hh in (0, 2): A(f"v_pk_add_f32 {vr(P+hh,2)}, {vr(P+hh,2)}, {vr(P+8+hh,2)}")
        A(f"v_lshlrev_b32 v{P+4}, 16, v{XP}\nv_and_b32 v{P+5}, 0xffff0000, v{XP}")
        A(f"v_permlane32_swap_b32 v{P}, v{P+2}\nv_permlane32_swap_b32 v{P+1}, v{P+3}")
        A(f"v_add_f32 v{P}, v{P}, v{P+2}\nv_add_f32 v{P+1}, v{P+1}, v{P+3}")
        for md in ("row_ror:8", "row_ror:4"):
            for i in range(2): A(f"v_add_f32_dpp v{P+i}, v{P+i}, v{P+i} {md} {DPPF}")
        self.rnd_pair(P, P + 1, P + 2)
        A(f"""
        v_add_f32 v{P}, v{P}, v{P+4}
        v_add_f32 v{P+1}, v{P+1}, v{P+5}
        s_mov_b32 s{S_T1}, {WS_HBUF}
        v_cvt_pk_bf16_f32 v{P}, v{P}, v{P+1}
        s_mov_b32 exec_lo, 0x000f000f
        s_mov_b32 exec_hi, 0x000f000f
        v_min_u32 v{P}, -2, v{P}
        buffer_store_dword v{P}, v{VB+1}, s[{R_WS}:{R_WS+3}], s{S_T1} offen sc1
        s_mov_b64 exec, -1
        L_nored:
        s_cmp_eq_u32 s{S_ROLE}, 0
        s_cbranch_scc1 L_fin
        """)
        WF = V_WO
        A(f"""
        s_waitcnt vmcnt(0)
        v_lshlrev_b32 v6, 3, v{V_T+3}
        v_lshl_add_u32 v6, v{V_T+2}, 8, v6
        v_add_u32 v6, s{S_LM0}, v6
        """)
        for s in range(7):
            for hf in range(2): A(f"ds_read_b64_tr_b16 {vr(WF+4*s+2*hf,2)}, v6 offset:{1024*s+128*hf}")
        HA, HB, LA, LB, BA, RA, RB = V_Q, V_Q+1, V_Q+2, V_Q+3, V_Q+4, V_Q+5, V_Q+6
        A(f"""
        s_mul_i32 s{S_T1}, s{S_W}, 1280
        s_add_u32 s{S_T1}, s{S_T1}, {WS_HBUF}
        v_lshlrev_b32 v{HB}, 2, v{V_L}
        s_mul_i32 s{S_T2}, s{S_W}, {XS}
        v_add_u32 v{LA}, s{S_T2}, v{V_T}
        v_add_u32 v{LB}, s{S_T2}, v{HB}
        v_and_b32 v7, 7, v0
        v_mul_u32_u24 v{BA}, {XS}, v7
        v_lshl_add_u32 v{BA}, v{V_T+2}, 4, v{BA}
        s_and_b32 s{S_T2}, s{S_W}, 3
        s_mul_i32 s{S_T2}, s{S_T2}, 320
        v_add_u32 v{BA}, s{S_T2}, v{BA}
        v_lshlrev_b32 v{RB}, 6, v7
        v_lshl_add_u32 v{RB}, v{V_T+2}, 4, v{RB}
        s_mul_i32 s{S_T2}, s{S_W}, 544
        v_add_u32 v{RA}, s{S_T2}, v{RB}
        v_bfe_u32 v6, v0, 3, 1
        v_mul_u32_u24 v6, {4*544}, v6
        v_add_u32 v{RB}, v{RB}, v6
        L_hpoll:
        """)
        HR = slot(4)
        A(f"buffer_load_dwordx4 {vr(HR,4)}, v{V_T}, s[{R_WS}:{R_WS+3}], s{S_T1} offen sc1")
        A(f"buffer_load_dword v{HR+4}, v{HB}, s[{R_WS}:{R_WS+3}], s{S_T1} offen offset:1024 sc1")
        A("s_waitcnt vmcnt(0)")
        self.sentinel(HR, 5, 6)
        A("s_cbranch_vccz L_hok")
        self.spin_guard("L_hpoll")
        A("L_hok:")
        HO = slot(6); F1 = slot(8); T1 = slot(11)
        self.layernorm(HR, F1, T1, HO)
        A(f"""
        ds_write_b128 v{LA}, {vr(HO,4)} offset:{L_XN}
        ds_write_b32 v{LB}, v{HO+4} offset:{L_XN+1024}
        s_cmp_eq_u32 s{S_ROLE}, 2
        s_cbranch_scc1 L_down
        s_waitcnt lgkmcnt(0)
        s_barrier
        """)
        BF = slot(16); DA = V_ACC
        for s in range(5): A(f"ds_read_b128 {vr(BF+4*s,4)}, v{BA} offset:{L_XN+64*s}")
        for s in range(5):
            A(f"s_waitcnt lgkmcnt({4-s})")
            A(f"v_mfma_f32_16x16x32_bf16 {vr(DA,4)}, {vr(WF+4*s,4)}, {vr(BF+4*s,4)}, {vr(DA,4) if s else '0'}")
        A(f"""
        s_cmp_eq_u32 s{S_W}, 0
        ds_write_b128 v{RA}, {vr(DA,4)} offset:{L_RED}
        s_waitcnt lgkmcnt(0)
        s_barrier
        s_cbranch_scc0 L_fin
        """)
        def red4():
            for i in range(4): A(f"ds_read_b128 {vr(BF+4*i,4)}, v{RB} offset:{L_RED+544*i}")
        def sum4():
            A("s_waitcnt lgkmcnt(2)")
            A(f"v_pk_add_f32 {vr(BF,2)}, {vr(BF,2)}, {vr(BF+4,2)}\nv_pk_add_f32 {vr(BF+2,2)}, {vr(BF+2,2)}, {vr(BF+6,2)}")
            A("s_waitcnt lgkmcnt(0)")
            A(f"v_pk_add_f32 {vr(BF+8,2)}, {vr(BF+8,2)}, {vr(BF+12,2)}\nv_pk_add_f32 {vr(BF+10,2)}, {vr(BF+10,2)}, {vr(BF+14,2)}")
            A(f"v_pk_add_f32 {vr(BF,2)}, {vr(BF,2)}, {vr(BF+8,2)}\nv_pk_add_f32 {vr(BF+2,2)}, {vr(BF+2,2)}, {vr(BF+10,2)}")
        red4()
        A(f"""
        v_lshrrev_b32 v6, 1, v{V_T+2}
        v_lshlrev_b32 v6, 7, v6
        v_lshl_add_u32 v6, v7, 4, v6
        v_and_b32 v{V_T+1}, 1, v{V_T+2}
        v_lshl_add_u32 v6, v{V_T+1}, 3, v6
        s_lshl_b32 s{S_T1}, s{S_IDX}, 8
        """)
        sum4()
        self.rnd_pair(BF, BF+1, BF+4); self.rnd_pair(BF+2, BF+3, BF+5)
        for i in range(4): A(f"v_mul_f32 v{BF+4+i}, 0xbfb8aa3b, v{BF+i}")
        for i in range(4): A(f"v_exp_f32 v{BF+4+i}, v{BF+4+i}")
        for i in range(4): A(f"v_add_f32 v{BF+4+i}, 1.0, v{BF+4+i}")
        for i in range(4): A(f"v_rcp_f32 v{BF+4+i}, v{BF+4+i}")
        for i in range(4): A(f"v_mul_f32 v{BF+4+i}, v{BF+4+i}, v{BF+i}")
        self.rnd_pair(BF+4, BF+5, BF+8); self.rnd_pair(BF+6, BF+7, BF+9)
        for i in range(4): A(f"v_mul_f32_dpp v{BF+4+i}, v{BF+i}, v{BF+4+i} row_ror:8 {DPPF}")
        A(f"""
        v_cvt_pk_bf16_f32 v{BF}, v{BF+4}, v{BF+5}
        v_cvt_pk_bf16_f32 v{BF+1}, v{BF+6}, v{BF+7}
        s_mov_b32 exec_lo, 0x00ff00ff
        s_mov_b32 exec_hi, 0x00ff00ff
        v_min_u32 v{BF}, -2, v{BF}
        v_min_u32 v{BF+1}, -2, v{BF+1}
        buffer_store_dwordx2 {vr(BF,2)}, v6, s[{R_ACT}:{R_ACT+3}], s{S_T1} offen sc1
        s_mov_b64 exec, -1
        s_branch L_fin
        L_down:
        ds_write_b128 v{LA}, {vr(HR,4)} offset:{L_H}
        ds_write_b32 v{LB}, v{HR+4} offset:{L_H+1024}
        """)
        for i in range(5):
            A(f"v_lshlrev_b32 v{F1+2*i}, 16, v{HO+i}\nv_and_b32 v{F1+2*i+1}, 0xffff0000, v{HO+i}")
            A(f"v_lshlrev_b32 v{T1+2*i}, 16, v{WR+i}\nv_and_b32 v{T1+2*i+1}, 0xffff0000, v{WR+i}")
        A(f"v_mul_f32 v6, v{F1}, v{T1}")
        for i in range(1, 10): A(f"v_fmac_f32 v6, v{F1+i}, v{T1+i}")
        for md in ("quad_perm:[1,0,3,2]", "quad_perm:[2,3,0,1]"): A(f"v_add_f32_dpp v6, v6, v6 {md} {DPPF}")
        allred("v_add_f32", 6, F1)
        self.rnd1(6)
        A(f"v_mul_f32 v6, 0xbfb8aa3b, v6\nv_exp_f32 v6, v6\nv_add_f32 v6, 1.0, v6\nv_rcp_f32 v6, v6")
        self.rnd1(6)
        A(f"""
        s_lshl_b32 s{S_T1}, s{S_W}, 2
        v_mov_b32 v{F1}, s{S_T1}
        ds_write_b32 v{F1}, v6 offset:{L_SIG}
        v_lshlrev_b32 v6, 4, v7
        v_lshl_add_u32 v6, v{V_T+2}, 7, v6
        s_mul_i32 s{S_T1}, s{S_W}, {7*512}
        v_mul_u32_u24 v{BA}, {XS}, v7
        v_lshl_add_u32 v{BA}, v{V_T+2}, 3, v{BA}
        s_lshl_b32 s{S_T2}, s{S_IDX}, 5
        v_add_u32 v{BA}, s{S_T2}, v{BA}
        v_mul_u32_u24 v{HA}, 1280, v7
        v_lshl_add_u32 v{HA}, v{V_T+2}, 3, v{HA}
        v_add_u32 v{HA}, s{S_T2}, v{HA}
        v_lshlrev_b32 v{HB}, 2, v7
        s_waitcnt lgkmcnt(0)
        s_barrier
        ds_read_b64 {vr(F1,2)}, v{BA} offset:{L_XN}
        ds_read_b64 {vr(F1+2,2)}, v{BA} offset:{L_H}
        ds_read_b32 v{F1+4}, v{HB} offset:{L_SIG}
        L_apoll:
        """)
        for s in range(7): A(f"buffer_load_dwordx4 {vr(BF+4*s,4)}, v6, s[{R_ACT}:{R_ACT+3}], s{S_T1} offen offset:{512*s} sc1")
        A("s_waitcnt vmcnt(0)")
        self.sentinel(BF, 28, V_T + 1)
        A("s_cbranch_vccz L_aok")
        self.spin_guard("L_apoll")
        A("L_aok:")
        for s in range(7):
            A(f"v_mfma_f32_16x16x32_bf16 {vr(DA,4)}, {vr(WF+4*s,4)}, {vr(BF+4*s,4)}, {vr(DA,4) if s else '0'}")
        A(f"""
        s_cmp_eq_u32 s{S_W}, 0
        ds_write_b128 v{RA}, {vr(DA,4)} offset:{L_RED}
        s_waitcnt lgkmcnt(0)
        s_barrier
        s_cbranch_scc0 L_fin
        """)
        red4()
        for i in range(2):
            A(f"v_lshlrev_b32 v{T1+2*i}, 16, v{F1+i}\nv_and_b32 v{T1+2*i+1}, 0xffff0000, v{F1+i}")
            A(f"v_lshlrev_b32 v{T1+4+2*i}, 16, v{F1+2+i}\nv_and_b32 v{T1+4+2*i+1}, 0xffff0000, v{F1+2+i}")
        sum4()
        for i in range(4): A(f"v_add_f32_dpp v{BF+i}, v{BF+i}, v{BF+i} row_ror:8 {DPPF}")
        self.rnd_pair(BF, BF+1, BF+4); self.rnd_pair(BF+2, BF+3, BF+5)
        for i in range(4): A(f"v_mul_f32 v{BF+i}, v{BF+i}, v{F1+4}")
        self.rnd_pair(BF, BF+1, BF+4); self.rnd_pair(BF+2, BF+3, BF+5)
        for i in range(4): A(f"v_add_f32 v{BF+i}, v{BF+i}, v{T1+i}")
        self.rnd_pair(BF, BF+1, BF+4); self.rnd_pair(BF+2, BF+3, BF+5)
        for i in range(4): A(f"v_add_f32 v{BF+i}, v{BF+i}, v{T1+4+i}")
        A(f"""
        v_cvt_pk_bf16_f32 v{BF}, v{BF}, v{BF+1}
        v_cvt_pk_bf16_f32 v{BF+1}, v{BF+2}, v{BF+3}
        s_mov_b32 exec_lo, 0x00ff00ff
        s_mov_b32 exec_hi, 0x00ff00ff
        global_store_dwordx2 v{HA}, {vr(BF,2)}, s[{S_OUT}:{S_OUT+1}]
        s_mov_b64 exec, -1
        L_fin:
        """)
        if self.stamps:
            self.stamp(6)
            A(f"""
            s_waitcnt lgkmcnt(0)
            s_add_u32 s{S_WS}, s{S_WS}, {WS_STAMP}
            s_addc_u32 s{S_WS+1}, s{S_WS+1}, 0
            s_lshl_b32 s{S_T1}, s2, 3
            s_add_u32 s{S_T1}, s{S_T1}, s{S_W}
            s_lshl_b32 s{S_T1}, s{S_T1}, 6
            v_mov_b32 v6, s{S_T1}
            """)
            for i in range(14): A(f"v_mov_b32 v{slot(0)+i}, s{S_ST+i}")
            A(f"v_mov_b32 v{slot(0)+14}, s{S_ROLE}\nv_mov_b32 v{slot(0)+15}, 0x80000000\ns_mov_b64 exec, 1")
            for i in range(4): A(f"global_store_dwordx4 v6, {vr(slot(i),4)}, s[{S_WS}:{S_WS+1}] offset:{16*i}")
        A("L_end:\ns_endpgm")
        A('.section .rodata,"a"\n.p2align 6')
        A(f".amdhsa_kernel {NAME}_kernel")
        A("""
        .amdhsa_next_free_vgpr 256
        .amdhsa_next_free_sgpr 102
        .amdhsa_accum_offset 256
        .amdhsa_group_segment_fixed_size 0
        .amdhsa_kernarg_size 104
        .amdhsa_user_sgpr_count 2
        .amdhsa_user_sgpr_kernarg_segment_ptr 1
        .amdhsa_system_sgpr_workgroup_id_x 1
        .amdhsa_float_denorm_mode_32 3
        .end_amdhsa_kernel
        """)
        return A.finish()

    def sentinel(self, base, n, t):
        A = self.A
        regs = list(range(base, base + n))
        A(f"v_max3_u32 v{t}, v{regs[0]}, v{regs[1]}, v{regs[2]}")
        i = 3
        while i < n:
            if i + 1 < n: A(f"v_max3_u32 v{t}, v{t}, v{regs[i]}, v{regs[i+1]}"); i += 2
            else: A(f"v_max_u32 v{t}, v{t}, v{regs[i]}"); i += 1
        A(f"v_cmp_eq_u32 vcc, -1, v{t}")

    def tail_loads(self, WR, XP, DUM, VB):
        A = self.A
        A(f"""
        s_mul_i32 s{S_T1}, s2, 3277
        s_lshr_b32 s{S_T1}, s{S_T1}, 16
        s_min_u32 s{S_T1}, s{S_T1}, 7
        s_mul_i32 s{S_T2}, s{S_T1}, 20
        s_sub_u32 s{S_T2}, s2, s{S_T2}
        s_min_u32 s{S_T2}, s{S_T2}, 19
        s_cmp_lt_u32 s2, 160
        s_cselect_b32 s{S_JOB}, 1, 0
        s_cmp_eq_u32 s{S_W}, 7
        s_cselect_b32 s{S_JOB}, s{S_JOB}, 0
        v_and_b32 v6, 3, v0
        v_bfe_u32 v7, v0, 4, 1
        v_lshl_add_u32 v6, v7, 2, v6
        v_bfe_u32 v7, v0, 5, 1
        v_lshlrev_b32 v{VB+1}, 2, v7
        v_lshl_add_u32 v{VB+1}, v6, 3, v{VB+1}
        s_mul_i32 s{S_T3}, s{S_T1}, 1280
        s_lshl_b32 s{S_T0}, s{S_T2}, 6
        s_add_u32 s{S_T3}, s{S_T3}, s{S_T0}
        v_add_u32 v{VB+1}, s{S_T3}, v{VB+1}
        v_bfe_u32 v{VB}, v0, 2, 2
        v_lshl_add_u32 v{VB}, v7, 2, v{VB}
        v_mul_u32_u24 v{VB}, 2560, v{VB}
        v_lshl_add_u32 v{VB}, v6, 4, v{VB}
        s_mul_i32 s{S_T3}, s{S_T1}, {32*2560}
        s_lshl_b32 s{S_T0}, s{S_T2}, 7
        s_add_u32 s{S_T3}, s{S_T3}, s{S_T0}
        v_add_u32 v{VB}, s{S_T3}, v{VB}
        v_lshlrev_b32 v7, 2, v{V_L}
        """)
        self.issue("xp", f"global_load_dword v{XP}, v{VB+1}, s[{S_X}:{S_X+1}] nt")
        self.issue("wr0", f"global_load_dwordx4 {vr(WR,4)}, v{V_T}, s[{S_WR}:{S_WR+1}] nt")
        self.issue("wr1", f"global_load_dword v{WR+4}, v7, s[{S_WR}:{S_WR+1}] offset:1024 nt")
        self.setpar()

if __name__ == "__main__":
    import json
    out = sys.argv[1]
    kw = json.loads(sys.argv[2]) if len(sys.argv) > 2 else {}
    g = G(**kw)
    s = g.gen()
    hdr = open("cdna_kernels/" + NAME + ".s.ref").read().split("; Override launch")[0]
    open(out, "w").write(hdr + s)
    print(out, "lines", s.count("\n"), "nops", g.A.nops)
```

```python
import sys
from asmlib import Asm
NAME = "sequential_preLN__sliding_block_cached__moe_arch_mod__decode"

WS_EPOCH = 0x0
WS_HBUF  = 0x1000
WS_ACT   = 0x8000
WS_SLAB  = 0x10000
WS_OBUF  = 0xC0000
WS_QPART = 0x100000
WS_SIZE  = 0x200000
WS_STAMP = 0x4000000
XS = 1312
L_XN    = 0
L_H     = 10496
L_QP    = 20992
L_RED   = 25088
L_SM    = 33792
L_SIG   = 33856
L_W     = 34816
L_TOT   = L_W + 81920
S_X, S_K, S_V, S_WQ, S_WO, S_WR, S_WG, S_WU, S_WD, S_OUT, S_WS = 16, 18, 20, 22, 24, 28, 30, 32, 34, 36, 40
S_EP, S_T4, S_T16 = 26, 27, 38
R_K, R_V, R_WQ, R_F, R_WS, R_ACT = 44, 48, 52, 56, 60, 64
S_C4K = 72
S_H, S_B, S_W, S_ROLE, S_IDX = 3, 4, 5, 6, 7
S_SPIN = 9
S_T0, S_T1, S_T2, S_T3 = 10, 11, 12, 13
S_M = 14
S_LM0 = 42
S_FSTEP = 43
S_FCUR = 8
S_MCUR = 39
S_A0, S_A1, S_A2, S_A3 = 68, 69, 70, 71
S_ST = 88
V_L = 1
V_K, V_V, V_F = 2, 3, 4
V_MASK = 8
V_SC = 12
V_ACC = 20
V_Q = 28
V_L16, V_G, V_C = 44, 46, 47
V_X = 48
V_RING = 128
DPPF = "row_mask:0xf bank_mask:0xf"
LOG2E = "0x3fb8aa3b"
def slot(t): return V_RING + 4 * t
def vr(a, n): return f"v[{a}:{a+n-1}]"
def srd(r): return f"s[{r}:{r+3}]"

class G:
    def __init__(self, D=4, D2=None, thr="none", stamps=False, qpos=13, qbar=19, vextra=4, sleep=1, npre=6, nf_in=4, f0=6, fstep=5, wo_lead=0, freeq=4):
        self.A = Asm(); self.D = D; self.D2 = D2; self.thr = thr; self.stamps = stamps
        self.vm = []; self.done = 0; self.uid = 0; self.stamped = set()
        self.qpos = qpos; self.qbar = qbar; self.vextra = vextra; self.sleep = sleep; self.npre = npre
        self.nf_in = nf_in; self.f0 = f0; self.fstep = fstep; self.wo_lead = wo_lead; self.freeq = freeq
    def issue(self, name, text):
        self.A(text); self.vm.append(name)
    def chk_stamps(self):
        if not self.stamps: return
        for nm in self.stamps:
            if nm.startswith("@") and nm not in self.stamped and nm[1:] in self.vm[:self.done]:
                self.stamped.add(nm); self.stamp(nm)
    def wait(self, name):
        i = len(self.vm) - 1 - self.vm[::-1].index(name)
        if i < self.done: return
        self.A(f"s_waitcnt vmcnt({len(self.vm) - 1 - i})"); self.done = i + 1
        self.chk_stamps()
    def throttle(self, D=None):
        dflt = D is None
        D = D or self.D
        if len(self.vm) - self.done > D - 1:
            self.A(f"s_waitcnt vmcnt({D-1})"); self.done = len(self.vm) - (D - 1)
            self.chk_stamps()
        if self.D2 and dflt:
            self.uid += 1
            self.A(f"s_cbranch_vccz L_thr{self.uid}\ns_waitcnt vmcnt({self.D2-1})\nL_thr{self.uid}:")
    def setthr(self):
        if self.D2: self.A(f"s_mov_b64 vcc, s[80:81]")
    def stamp(self, name):
        if self.stamps and name in self.stamps:
            i = self.stamps.index(name)
            self.A(f"s_memrealtime s[{S_ST+2*i}:{S_ST+2*i+1}]")
    def spin_guard(self, lab, sleep=None):
        sleep = self.sleep if sleep is None else sleep
        if sleep: self.A(f"s_sleep {sleep}")
        self.A(f"s_sub_u32 s{S_SPIN}, s{S_SPIN}, 1\ns_cmp_eq_u32 s{S_SPIN}, 0\ns_cbranch_scc0 {lab}\ns_branch L_end")
    def rnd_pair(self, a, b, t):
        self.A(f"v_cvt_pk_bf16_f32 v{t}, v{a}, v{b}\nv_lshlrev_b32 v{a}, 16, v{t}\nv_and_b32 v{b}, 0xffff0000, v{t}")
    def rnd1(self, a):
        self.A(f"v_cvt_pk_bf16_f32 v{a}, v{a}, v{a}\nv_and_b32 v{a}, 0xffff0000, v{a}")
    def sentinel(self, base, n, t):
        A = self.A
        A(f"v_max3_u32 v{t}, v{base}, v{base+1}, v{base+2}")
        i = 3
        while i < n:
            if i + 1 < n: A(f"v_max3_u32 v{t}, v{t}, v{base+i}, v{base+i+1}"); i += 2
            else: A(f"v_max_u32 v{t}, v{t}, v{base+i}"); i += 1
        A(f"v_cmp_eq_u32 vcc, -1, v{t}")
    def tagcheck(self, base, n, t, stag, mask):
        A = self.A
        for i in range(n): A(f"v_xor_b32 v{base+i}, s{stag}, v{base+i}")
        if n == 2: A(f"v_or_b32 v{t}, v{base}, v{base+1}")
        else:
            A(f"v_or3_b32 v{t}, v{base}, v{base+1}, v{base+2}")
            i = 3
            while i < n:
                if i + 1 < n: A(f"v_or3_b32 v{t}, v{t}, v{base+i}, v{base+i+1}"); i += 2
                else: A(f"v_or_b32 v{t}, v{t}, v{base+i}"); i += 1
        A(f"v_and_b32 v{t}, {mask}, v{t}\nv_cmp_ne_u32 vcc, 0, v{t}")
    def allred(self, op, v, tmp):
        A = self.A
        for md in ("row_ror:8", "row_ror:4"): A(f"{op}_dpp v{v}, v{v}, v{v} {md} {DPPF}")
        for sw in ("v_permlane16_swap_b32", "v_permlane32_swap_b32"):
            A(f"v_mov_b32 v{tmp}, v{v}\n{sw} v{v}, v{tmp}\n{op} v{v}, v{v}, v{tmp}")
    def layernorm(self, src, f, t, out):
        A = self.A
        if src is not None:
            for i in range(5):
                A(f"v_lshlrev_b32 v{f+2*i}, 16, v{src+i}\nv_and_b32 v{f+2*i+1}, 0xffff0000, v{src+i}")
        A(f"v_readfirstlane_b32 s{S_T0}, v{f}")
        for i in range(10): A(f"v_subrev_f32 v{t+i}, s{S_T0}, v{f+i}")
        s1, s2, s3, s4 = out, out + 1, out + 2, out + 3
        A(f"v_add_f32 v{s1}, v{t}, v{t+1}\nv_mul_f32 v{s2}, v{t}, v{t}\nv_add_f32 v{s3}, v{t+2}, v{t+3}\nv_mul_f32 v{s4}, v{t+1}, v{t+1}")
        for i in range(2, 10, 2):
            A(f"v_fmac_f32 v{s2}, v{t+i}, v{t+i}\nv_fmac_f32 v{s4}, v{t+i+1}, v{t+i+1}")
            if i >= 4: A(f"v_add_f32 v{s1}, v{s1}, v{t+i}\nv_add_f32 v{s3}, v{s3}, v{t+i+1}")
        A(f"v_add_f32 v{s1}, v{s1}, v{s3}\nv_add_f32 v{s2}, v{s2}, v{s4}")
        A(f"v_permlane32_swap_b32 v{s1}, v{s2}\nv_add_f32 v{s1}, v{s1}, v{s2}")
        for m in ("quad_perm:[1,0,3,2]", "quad_perm:[2,3,0,1]", "row_half_mirror", "row_mirror"):
            A(f"v_add_f32_dpp v{s1}, v{s1}, v{s1} {m} {DPPF}")
        A(f"v_add_f32_dpp v{s1}, v{s1}, v{s1} row_bcast:15 row_mask:0xa bank_mask:0xf")
        A(f"v_mul_f32 v{s1}, 0x3acccccd, v{s1}")
        A(f"v_readlane_b32 s{S_T1}, v{s1}, 31\nv_readlane_b32 s{S_T2}, v{s1}, 63")
        A(f"v_mov_b32 v{s2}, s{S_T1}\nv_add_f32 v{s1}, s{S_T0}, v{s2}\nv_fma_f32 v{s2}, -v{s2}, v{s2}, s{S_T2}\nv_max_f32 v{s2}, 0, v{s2}")
        self.rnd_pair(s1, s2, s3)
        A(f"v_add_f32 v{s2}, 0x3727c5ac, v{s2}")
        self.rnd1(s2)
        A(f"v_sqrt_f32 v{s2}, v{s2}")
        for i in range(10): A(f"v_sub_f32 v{t+i}, v{f+i}, v{s1}")
        self.rnd1(s2)
        A(f"v_rcp_f32 v{out+4}, v{s2}")
        for i in range(5): self.rnd_pair(t+2*i, t+2*i+1, out + 2 + (i & 1))
        for i in range(10): A(f"v_mul_f32 v{t+i}, v{t+i}, v{out+4}")
        for i in range(5): A(f"v_cvt_pk_bf16_f32 v{out+i}, v{t+2*i}, v{t+2*i+1}")
    def ldF(self, counted=None):
        txt = f"buffer_load_dwordx4 v{V_F}, {srd(R_F)}, s{S_FCUR} offen nt lds"
        self.A(f"s_mov_b32 m0, s{S_MCUR}")
        self.A(f"s_add_u32 s{S_MCUR}, s{S_MCUR}, 1024")
        if counted: self.issue(counted, txt)
        else: self.A(txt)
        self.A(f"s_add_u32 s{S_FCUR}, s{S_FCUR}, s{S_FSTEP}")

    def gen(self):
        A = self.A
        A(f"; @launch grid=(256,1,1) block=(512,1,1) lds={L_TOT}")
        A('.amdgcn_target "amdgcn-amd-amdhsa--gfx950"\n.text')
        A(f".globl {NAME}_kernel\n.p2align 8\n.type {NAME}_kernel,@function\n{NAME}_kernel:")
        A("s_cmp_ge_u32 s2, 256\ns_cbranch_scc1 L_end")
        A("s_load_dwordx16 s[16:31], s[0:1], 0\ns_load_dwordx8 s[32:39], s[0:1], 64\ns_load_dwordx2 s[40:41], s[0:1], 96")
        if self.stamps:
            for i in range(1, 7): A(f"s_mov_b64 s[{S_ST+2*i}:{S_ST+2*i+1}], 0")
        self.stamp("start")
        A(f"""
        s_getpc_b64 s[{S_M}:{S_M+1}]
        v_lshlrev_b32 v7, 7, v0
        v_min_u32 v7, L_end-{NAME}_kernel-128, v7
        v_cmp_gt_u32 vcc, 128, v0
        s_cbranch_vccz L_nopf
        global_load_dword v{V_X+40}, v7, s[{S_M}:{S_M+1}]
        L_nopf:
        v_lshrrev_b32 v6, 6, v0
        v_and_b32 v{V_L}, 63, v0
        s_and_b32 s{S_T0}, s2, 7
        v_readfirstlane_b32 s{S_W}, v6
        s_lshr_b32 s{S_T1}, s2, 3
        s_and_b32 s{S_T2}, s{S_T1}, 3
        s_lshl_b32 s{S_H}, s{S_T0}, 2
        s_add_u32 s{S_H}, s{S_H}, s{S_T2}
        s_lshr_b32 s{S_B}, s{S_T1}, 2
        s_lshl_b32 s{S_T3}, s{S_B}, 5
        s_add_u32 s{S_T3}, s{S_T3}, s{S_H}
        s_lshl_b32 s{S_T3}, s{S_T3}, 20
        s_add_u32 s{S_T3}, s{S_T3}, 0xC0000
        v_lshlrev_b32 v7, 15, v6
        v_lshlrev_b32 v{V_L16}, 4, v{V_L}
        v_add_u32 v{V_V}, v7, v{V_L16}
        v_and_b32 v{V_K}, 3, v0
        v_lshl_add_u32 v{V_K}, v{V_K}, 4, v7
        v_bfe_u32 v5, v0, 2, 2
        v_lshl_add_u32 v{V_K}, v5, 10, v{V_K}
        v_bfe_u32 v{V_G}, v0, 4, 2
        v_lshl_add_u32 v{V_K}, v{V_G}, 6, v{V_K}
        v_mul_u32_u24 v{V_ACC}, 1280, v6
        v_lshl_add_u32 v{V_ACC+1}, v{V_L}, 2, v{V_ACC}
        v_add_u32 v{V_ACC}, v{V_ACC}, v{V_L16}
        v_and_b32 v{V_C}, 15, v0
        v_and_b32 v{V_ACC+4}, 1, v6
        v_lshlrev_b32 v{V_ACC+4}, 3, v{V_ACC+4}
        v_lshl_add_u32 v{V_ACC+4}, v{V_G}, 1, v{V_ACC+4}
        v_xor_b32 v{V_ACC+4}, v{V_ACC+4}, v{V_C}
        v_lshlrev_b32 v{V_ACC+4}, 4, v{V_ACC+4}
        v_lshl_add_u32 v{V_ACC+3}, v6, 2, v{V_G}
        v_lshl_add_u32 v{V_ACC+2}, v{V_ACC+3}, 13, v{V_ACC+4}
        s_mul_i32 s{S_T1}, s{S_B}, {80*8192}
        s_lshl_b32 s{S_T2}, s{S_H}, 8
        s_add_u32 s{S_T1}, s{S_T1}, s{S_T2}
        s_lshl_b32 s{S_LM0}, s{S_W}, 10
        s_add_u32 s{S_LM0}, s{S_LM0}, {L_W}
        s_mov_b32 m0, s{S_LM0}
        s_mov_b32 s{R_WQ+2}, {79*8192+256}
        s_mov_b32 s{R_WQ+3}, 0x20000
        s_mov_b32 s{R_K+2}, 0x40000
        s_mov_b32 s{R_K+3}, 0x20000
        s_mov_b32 s{S_A0}, 0x40000
        s_mov_b32 s{S_A1}, 0x80000
        s_waitcnt lgkmcnt(0)
        s_load_dword s{S_EP}, s[{S_WS}:{S_WS+1}], {WS_EPOCH}
        s_add_u32 s{R_WQ}, s{S_WQ}, s{S_T1}
        s_addc_u32 s{R_WQ+1}, s{S_WQ+1}, 0
        s_add_u32 s{R_K}, s{S_K}, s{S_T3}
        s_addc_u32 s{R_K+1}, s{S_K+1}, 0
        """)
        XR = V_Q
        self.issue("x0", f"global_load_dwordx4 {vr(XR,4)}, v{V_ACC}, s[{S_X}:{S_X+1}] nt")
        self.issue("x1", f"global_load_dword v{XR+4}, v{V_ACC+1}, s[{S_X}:{S_X+1}] offset:1024 nt")
        A(f"""
        s_mov_b32 s{R_WS}, s{S_WS}
        s_mov_b32 s{R_WS+1}, s{S_WS+1}
        s_mov_b32 s{R_WS+2}, {WS_SIZE}
        s_mov_b32 s{R_WS+3}, 0x20000
        s_sub_u32 s{S_IDX}, s{S_B}, 5
        s_lshl_b32 s{S_IDX}, s{S_IDX}, 5
        s_add_u32 s{S_IDX}, s{S_IDX}, s{S_H}
        s_cmp_lt_u32 s{S_IDX}, 94
        s_cselect_b32 s{S_ROLE}, 1, 0
        s_cmp_lt_u32 s{S_IDX}, 40
        s_cselect_b32 s{S_ROLE}, 2, s{S_ROLE}
        s_cselect_b32 s{S_T1}, 0, 40
        s_sub_u32 s{S_IDX}, s{S_IDX}, s{S_T1}
        s_cmp_lt_u32 s{S_B}, 5
        s_cselect_b32 s{S_ROLE}, 3, s{S_ROLE}
        s_cmp_eq_u32 s{S_W}, 0
        s_cbranch_scc0 L_noclr
        s_lshl_b32 s{S_T1}, s{S_H}, 3
        s_add_u32 s{S_T1}, s{S_T1}, s{S_B}
        s_lshl_b32 s{S_T1}, s{S_T1}, 8
        s_add_u32 s{S_T1}, s{S_T1}, {WS_OBUF}
        v_mov_b32 v{V_SC}, -1
        v_mov_b32 v{V_SC+1}, -1
        v_lshlrev_b32 v7, 2, v{V_L}
        buffer_store_dword v{V_SC}, v7, {srd(R_WS)}, s{S_T1} offen sc1
        s_cmp_eq_u32 s{S_ROLE}, 1
        s_cbranch_scc0 L_noclr
        s_lshl_b32 s{S_T1}, s{S_IDX}, 9
        s_add_u32 s{S_T1}, s{S_T1}, {WS_ACT}
        v_lshlrev_b32 v7, 3, v{V_L}
        buffer_store_dwordx2 {vr(V_SC,2)}, v7, {srd(R_WS)}, s{S_T1} offen sc1
        L_noclr:
        """)
        self.issue("wq0", f"buffer_load_dwordx4 v{V_ACC+2}, {srd(R_WQ)}, 0 offen nt lds")
        A(f"s_add_u32 m0, s{S_LM0}, 8192")
        self.issue("wq1", f"buffer_load_dwordx4 v{V_ACC+2}, {srd(R_WQ)}, s{S_A0} offen nt lds")
        A(f"s_add_u32 m0, s{S_LM0}, 16384")
        self.issue("wq2", f"buffer_load_dwordx4 v{V_ACC+2}, {srd(R_WQ)}, s{S_A1} offen nt lds")
        def ldK(t): self.issue(f"K{t}", f"buffer_load_dwordx4 {vr(slot(t),4)}, v{V_K}, {srd(R_K)}, {'s%d'%(S_C4K+(t>>2)) if t>=4 else '0'} offen offset:{(t&3)*256} nt")
        def ldV(t): self.issue(f"V{t}", f"buffer_load_dwordx4 {vr(slot(t),4)}, v{V_V}, {srd(R_V)}, s{S_C4K+(t>>2)} offen offset:{(t&3)*1024} nt")
        for t in range(4): ldK(t)
        A(f"""
        s_add_u32 s{R_V}, s{S_V}, s{S_T3}
        s_addc_u32 s{R_V+1}, s{S_V+1}, 0
        s_mov_b32 s{R_V+2}, 0x40000
        s_mov_b32 s{R_V+3}, 0x20000
        s_add_u32 s{R_ACT}, s{S_WS}, {WS_ACT}
        s_addc_u32 s{R_ACT+1}, s{S_WS+1}, 0
        s_mov_b32 s{R_ACT+2}, {216*128}
        s_mov_b32 s{R_ACT+3}, 0x20000
        s_mov_b32 s{S_SPIN}, 0x100000
        """)
        for i in range(8): A(f"s_mov_b32 s{S_C4K+i}, {i*4096}")
        if self.D2:
            A(f"s_getreg_b32 s80, hwreg(HW_REG_XCC_ID)\ns_and_b32 s80, s80, 1\ns_xor_b32 s80, s80, 1\ns_mov_b32 s81, 0")
            if self.thr == "role": A(f"s_cmp_eq_u32 s{S_ROLE}, 3\ns_cselect_b32 s80, 1, 0")
            if self.thr == "both": A(f"s_cmp_eq_u32 s{S_ROLE}, 3\ns_cselect_b32 s80, s80, 0")
        A(f"""
        s_mov_b32 s{R_F+3}, 0x20000
        s_mov_b32 s{S_FCUR}, 0
        s_cmp_eq_u32 s{S_ROLE}, 3
        s_cbranch_scc1 L_rwo
        s_mov_b32 s{R_F+2}, {640*3456}
        s_mul_i32 s{S_LM0}, s{S_W}, 10240
        s_add_u32 s{S_LM0}, s{S_LM0}, {L_W}
        s_cmp_eq_u32 s{S_ROLE}, 2
        s_cbranch_scc1 L_rdown
        s_cmp_lt_u32 s{S_W}, 4
        s_cselect_b32 s{R_F}, s{S_WG}, s{S_WU}
        s_cselect_b32 s{R_F+1}, s{S_WG+1}, s{S_WU+1}
        s_and_b32 s{S_T1}, s{S_W}, 3
        s_mul_i32 s{S_T1}, s{S_T1}, {160*3456}
        s_lshl_b32 s{S_T2}, s{S_IDX}, 6
        s_add_u32 s{S_T1}, s{S_T1}, s{S_T2}
        s_mov_b32 s{S_FSTEP}, {16*3456}
        v_lshrrev_b32 v{V_F}, 2, v{V_L}
        v_mul_u32_u24 v{V_F}, 3456, v{V_F}
        v_and_b32 v7, 3, v0
        s_branch L_rdone
        L_rdown:
        s_mov_b32 s{R_F}, s{S_WD}
        s_mov_b32 s{R_F+1}, s{S_WD+1}
        s_mul_i32 s{S_T1}, s{S_W}, {224*1280}
        s_lshl_b32 s{S_T2}, s{S_IDX}, 5
        s_add_u32 s{S_T1}, s{S_T1}, s{S_T2}
        s_mov_b32 s{S_FSTEP}, {32*1280}
        v_lshrrev_b32 v{V_F}, 1, v{V_L}
        v_mul_u32_u24 v{V_F}, 1280, v{V_F}
        v_and_b32 v7, 1, v0
        s_branch L_rdone
        L_rwo:
        s_mov_b32 s{R_F}, s{S_WO}
        s_mov_b32 s{R_F+1}, s{S_WO+1}
        s_mov_b32 s{R_F+2}, {4096*1280}
        s_mul_i32 s{S_T1}, s{S_H}, 163840
        s_lshl_b32 s{S_T2}, s{S_B}, 8
        s_add_u32 s{S_T1}, s{S_T1}, s{S_T2}
        s_mov_b32 s{S_FSTEP}, {32*1280}
        s_lshl_b32 s{S_LM0}, s{S_W}, 12
        s_add_u32 s{S_LM0}, s{S_LM0}, {L_W}
        v_mul_u32_u24 v{V_F}, 1280, v{V_ACC+3}
        v_lshrrev_b32 v7, 4, v{V_ACC+4}
        L_rdone:
        v_lshl_add_u32 v{V_F}, v7, 4, v{V_F}
        v_add_u32 v{V_F}, s{S_T1}, v{V_F}
        s_mov_b32 s{S_MCUR}, s{S_LM0}
        v_and_b32 v7, 1, v0
        v_lshlrev_b32 v7, 4, v7
        v_mov_b32 v{V_ACC+4}, 0xffff
        v_lshlrev_b32 v7, v7, v{V_ACC+4}
        v_lshrrev_b32 v{V_ACC+4}, 1, v{V_C}
        """)
        for r in range(4): A(f"v_cmp_eq_u32 vcc, {r}, v{V_ACC+4}\nv_cndmask_b32 v{V_MASK+r}, 0, v7, vcc")
        self.wait("x1")
        self.stamp("xgot")
        F0, T0 = V_X, V_X + 10
        n0 = len(A.L)
        self.layernorm(XR, F0, T0, XR + 8)
        XO = XR + 8
        A(f"""
        v_mul_u32_u24 v7, {XS}, v6
        v_add_u32 v{V_ACC}, v7, v{V_L16}
        v_lshl_add_u32 v{V_ACC+1}, v{V_L}, 2, v7
        ds_write_b128 v{V_ACC}, {vr(XO,4)} offset:{L_XN}
        ds_write_b32 v{V_ACC+1}, v{XO+4} offset:{L_XN+1024}
        v_bfe_u32 v{V_ACC}, v0, 2, 3
        v_lshlrev_b32 v{V_ACC}, 1, v{V_ACC}
        v_bfe_u32 v{V_ACC+1}, v0, 1, 1
        v_lshl_add_u32 v{V_ACC+1}, v6, 1, v{V_ACC+1}
        v_xor_b32 v{V_ACC}, v{V_ACC}, v{V_ACC+1}
        v_lshlrev_b32 v{V_ACC}, 4, v{V_ACC}
        v_and_b32 v{V_ACC+1}, 1, v0
        v_lshl_add_u32 v{V_ACC}, v{V_ACC+1}, 3, v{V_ACC}
        v_bfe_u32 v{V_ACC+1}, v0, 2, 4
        v_lshl_add_u32 v{V_ACC}, v{V_ACC+1}, 8, v{V_ACC}
        v_and_b32 v{V_ACC+2}, 7, v0
        v_mul_u32_u24 v{V_ACC+1}, {XS}, v{V_ACC+2}
        v_lshl_add_u32 v{V_ACC+1}, v{V_G}, 3, v{V_ACC+1}
        s_mul_i32 s{S_T1}, s{S_B}, 160
        v_add_u32 v{V_ACC+1}, s{S_T1}, v{V_ACC+1}
        v_lshlrev_b32 v{V_ACC+2}, 12, v{V_ACC+2}
        v_lshl_add_u32 v{V_ACC+2}, v{V_ACC+3}, 4, v{V_ACC+2}
        s_lshl_b32 s{S_T1}, s{S_H}, 15
        s_lshl_b32 s{S_T2}, s{S_B}, 9
        s_add_u32 s{S_T1}, s{S_T1}, s{S_T2}
        s_add_u32 s{S_T1}, s{S_T1}, {WS_QPART}
        """)
        body = A.L[n0:]; del A.L[n0:]
        kn = 4
        step = len(body) // (self.npre + 1) if self.npre else 10**9
        for i, line in enumerate(body):
            if i and i % step == 0 and kn < 4 + self.npre: ldK(kn); kn += 1
            A(line)
        self.wait("wq2")
        A("s_waitcnt lgkmcnt(0)\ns_barrier")
        self.stamp("bar1")
        for s in range(5):
            A(f"ds_read_b64_tr_b16 {vr(F0+2*s,2)}, v{V_ACC} offset:{L_W+4096*s}")
            A(f"ds_read_b64 {vr(F0+10+2*s,2)}, v{V_ACC+1} offset:{L_XN+32*s}")
        A(f"s_add_u32 s{S_EP}, s{S_EP}, 1\ns_and_b32 s{S_T4}, s{S_EP}, 15\ns_and_b32 s{S_T16}, s{S_EP}, 0xffff")
        for s in range(5):
            A(f"s_waitcnt lgkmcnt({8-2*s})")
            A(f"v_mfma_f32_16x16x16_bf16 {vr(V_ACC+4,4)}, {vr(F0+2*s,2)}, {vr(F0+10+2*s,2)}, {vr(V_ACC+4,4) if s else '0'}")
        for i in range(4): A(f"v_and_or_b32 v{V_ACC+4+i}, v{V_ACC+4+i}, -16, s{S_T4}")
        A("s_mov_b32 exec_lo, 0x00ff00ff\ns_mov_b32 exec_hi, 0x00ff00ff")
        self.issue("qst", f"buffer_store_dwordx4 {vr(V_ACC+4,4)}, v{V_ACC+2}, {srd(R_WS)}, s{S_T1} offen sc1")
        A("s_mov_b64 exec, -1")
        self.stamp("qpub")
        self.setthr()
        seq = [("K", t) for t in range(kn, 32)]
        fpos = [self.f0 + self.fstep * i for i in range(self.nf_in)]
        for t in range(32):
            if t in fpos: seq.append(("F", t))
            if t == 12: seq.append(("T", 0))
            seq.append(("V", t))
        self.pvdone = -1; self.smax_done = False
        pos = 0
        def ldFx(t):
            assert self.smax_done
            A(f"s_cmp_eq_u32 s{S_ROLE}, 3\ns_cbranch_scc1 L_nof{t}")
            self.ldF()
            A(f"L_nof{t}:")
        def ldT(_):
            self.tail_setup()
        def nxt(D=None):
            nonlocal pos
            k, t = seq[pos]; pos += 1
            if k in "KV": self.throttle(D)
            {"K": ldK, "V": ldV, "F": ldFx, "T": ldT}[k](t)
        def until(item, D=None):
            while f"{item[0]}{item[1]}" not in self.vm: nxt(D)
        for i in range(self.freeq): nxt(self.D + 1 + i)
        until(("K", self.qpos), self.D + 2)
        self.setthr()
        QA = V_X
        A(f"""
        v_lshlrev_b32 v{QA}, 3, v{V_L}
        s_lshl_b32 s{S_T1}, s{S_H}, 15
        s_lshl_b32 s{S_T2}, s{S_B}, 12
        s_add_u32 s{S_T1}, s{S_T1}, s{S_T2}
        s_lshl_b32 s{S_T2}, s{S_W}, 9
        s_add_u32 s{S_T1}, s{S_T1}, s{S_T2}
        s_add_u32 s{S_T1}, s{S_T1}, {WS_QPART}
        v_add_u32 v{QA+1}, s{S_T2}, v{QA}
        v_bfe_u32 v{QA+2}, v0, 2, 2
        v_lshlrev_b32 v{QA+2}, 10, v{QA+2}
        v_lshl_add_u32 v{QA+2}, v{V_G}, 7, v{QA+2}
        v_and_b32 v7, 3, v0
        v_lshl_add_u32 v{QA+2}, v7, 5, v{QA+2}
        """)
        qtxt = f"buffer_load_dwordx2 {vr(QA+4,2)}, v{QA}, {srd(R_WS)}, s{S_T1} offen sc1"
        self.issue("qg", qtxt)
        for _ in range(self.D - 1): nxt(self.D + 1)
        nxt(self.D + 1)
        self.wait("qg")
        A("L_qchk:")
        self.tagcheck(QA + 4, 2, 6, S_T4, 15)
        A("s_cbranch_vccz L_qok")
        A(qtxt + "\ns_waitcnt vmcnt(0)")
        self.spin_guard("L_qchk")
        A("L_qok:")
        self.setthr()
        self.stamp("qgot")
        A(f"ds_write_b64 v{QA+1}, {vr(QA+4,2)} offset:{L_QP}")
        until(("K", self.qbar - 2))
        until(("K", self.qbar), self.D + 2)
        A("s_waitcnt lgkmcnt(0)\ns_barrier")
        self.stamp("qbar")
        for e in range(2):
            for hf in range(2): A(f"ds_read_b128 {vr(V_Q+8*e+4*hf,4)}, v{QA+2} offset:{L_QP+e*512+hf*16}")
        nxt(self.D + 1)
        A("s_waitcnt lgkmcnt(0)")
        for i in range(8): A(f"v_add_f32 v{V_ACC+i}, v{V_Q+i}, v{V_Q+8+i}")
        for m in ("row_ror:8", "row_ror:4"):
            for i in range(8): A(f"v_add_f32_dpp v{V_ACC+i}, v{V_ACC+i}, v{V_ACC+i} {m} {DPPF}")
        for i in range(4): A(f"v_cvt_pk_bf16_f32 v{V_ACC+i}, v{V_ACC+2*i}, v{V_ACC+2*i+1}")
        nxt(self.D + 1)
        for u in range(4):
            A(f"s_mov_b32 s{S_M}, {0x000F000F << (4*u)}\ns_mov_b32 s{S_M+1}, {0x000F000F << (4*u)}")
            for r in range(4): A(f"v_cndmask_b32 v{V_Q+4*u+r}, 0, v{V_ACC+r}, s[{S_M}:{S_M+1}]")
        def extract(T):
            a = V_ACC + 4 * (T & 1)
            A(f"v_mov_b32_dpp v{V_SC+T}, v{a} quad_perm:[0,0,0,0] {DPPF}")
            for q in range(1, 4): A(f"v_add_f32_dpp v{V_SC+T}, v{a+q}, v{V_SC+T} quad_perm:[{q},{q},{q},{q}] {DPPF}")
        for T in range(8):
            a = V_ACC + 4 * (T & 1)
            until(("K", 4*T+3))
            while len(self.vm) - 1 - self.vm.index(f"K{4*T+3}") < self.D - 1:
                k, t = seq[pos]
                if k == "V": assert t < 4 * T, (t, T)
                nxt()
            self.wait(f"K{4*T+3}")
            for u in range(4):
                A(f"v_mfma_f32_16x16x32_bf16 {vr(a,4)}, {vr(V_Q+4*u,4)}, {vr(slot(4*T+u),4)}, {vr(a,4) if u else '0'}")
            if T: extract(T - 1)
        nxt()
        extract(7)
        t0 = V_ACC
        for a in range(4):
            x, y = V_SC + 2*a, V_SC + 2*a + 1
            self.rnd_pair(x, y, t0 + a)
            A(f"v_mul_f32 v{x}, 0x3db504f3, v{x}\nv_mul_f32 v{y}, 0x3db504f3, v{y}")
            self.rnd_pair(x, y, t0 + a)
        m, tm, l = V_Q, V_Q + 2, V_Q + 1
        A(f"v_max3_f32 v{m}, v{V_SC}, v{V_SC+1}, v{V_SC+2}\nv_max3_f32 v{tm}, v{V_SC+3}, v{V_SC+4}, v{V_SC+5}")
        A(f"v_max3_f32 v{m}, v{m}, v{V_SC+6}, v{V_SC+7}\nv_max_f32 v{m}, v{m}, v{tm}")
        self.allred("v_max_f32", m, tm)
        for i in range(8): A(f"v_sub_f32 v{t0+i}, v{V_SC+i}, v{m}")
        for i in range(8): A(f"v_mul_f32 v{t0+i}, {LOG2E}, v{t0+i}")
        for i in range(8): A(f"v_exp_f32 v{t0+i}, v{t0+i}")
        for i in range(4): A(f"v_add_f32 v{t0+i}, v{t0+i}, v{t0+4+i}")
        A(f"v_add_f32 v{t0}, v{t0}, v{t0+2}\nv_add_f32 v{t0+1}, v{t0+1}, v{t0+3}\nv_add_f32 v{l}, v{t0}, v{t0+1}")
        self.allred("v_add_f32", l, tm)
        A(f"""
        s_lshl_b32 s{S_T1}, s{S_W}, 3
        v_mov_b32 v7, s{S_T1}
        ds_write_b64 v7, {vr(m,2)} offset:{L_SM}
        v_and_b32 v7, 7, v0
        v_lshlrev_b32 v7, 3, v7
        """)
        for i in range(self.vextra):
            if seq[pos][0] == "V": nxt(self.D + 2)
        A(f"s_waitcnt lgkmcnt(0)\ns_barrier\nds_read_b64 {vr(m,2)}, v7 offset:{L_SM}")
        self.stamp("smax"); self.smax_done = True
        nxt(self.D + 1)
        A("s_waitcnt lgkmcnt(0)")
        A(f"v_max_f32_dpp v{tm}, v{m}, v{m} quad_perm:[1,0,3,2] {DPPF}")
        for md in ("quad_perm:[2,3,0,1]", "row_half_mirror"): A(f"v_max_f32_dpp v{tm}, v{tm}, v{tm} {md} {DPPF}")
        A(f"v_sub_f32 v{m}, v{m}, v{tm}\nv_mul_f32 v{m}, {LOG2E}, v{m}\nv_exp_f32 v{m}, v{m}")
        for i in range(8): A(f"v_sub_f32 v{V_SC+i}, v{V_SC+i}, v{tm}")
        A(f"v_mul_f32 v{l}, v{l}, v{m}")
        for i in range(8): A(f"v_mul_f32 v{V_SC+i}, {LOG2E}, v{V_SC+i}")
        for md in ("quad_perm:[1,0,3,2]", "quad_perm:[2,3,0,1]", "row_half_mirror"):
            A(f"v_add_f32_dpp v{l}, v{l}, v{l} {md} {DPPF}")
        for i in range(8): A(f"v_exp_f32 v{V_SC+i}, v{V_SC+i}")
        A(f"v_rcp_f32 v{l}, v{l}")
        nxt(self.D + 1)
        for i in range(8): A(f"v_mul_f32 v{V_SC+i}, v{V_SC+i}, v{l}")
        for i in range(8): A(f"v_cvt_pk_bf16_f32 v{V_SC+i}, v{V_SC+i}, v{V_SC+i}")
        oacc = V_ACC
        def mkA(t):
            a = V_Q + 4 * (t & 1)
            for r in range(4): A(f"v_and_b32_dpp v{a+r}, v{V_SC+(t>>2)}, v{V_MASK+r} row_newbcast:{4*(t&3)} {DPPF}")
        def pvstep(t):
            if t < 31: mkA(t + 1)
            self.wait(f"V{t}")
            A(f"v_mfma_f32_16x16x32_bf16 {vr(oacc,4)}, {vr(V_Q+4*(t&1),4)}, {vr(slot(t),4)}, {vr(oacc,4) if t else '0'}")
        mkA(0)
        t = 0
        split = 31 - self.wo_lead
        while True:
            until(("V", t))
            while pos < len(seq) and len(self.vm) - 1 - self.vm.index(f"V{t}") < self.D - 1 and f"V{split}" not in self.vm: nxt()
            if f"V{split}" in self.vm: break
            pvstep(t); t += 1
        save = (list(self.vm), self.done, pos, set(self.stamped))
        A(f"s_cmp_eq_u32 s{S_ROLE}, 3\ns_cbranch_scc1 L_pvwo")
        for variant in (0, 1):
            self.vm, self.done, pos, self.stamped = list(save[0]), save[1], save[2], set(save[3])
            if variant: A("L_pvwo:")
            nw = 0
            for tt in range(t, 32):
                if variant and nw < 4 and tt > t: self.ldF(f"W{nw}"); nw += 1
                if pos < len(seq) and tt > t: nxt(64)
                pvstep(tt)
            assert pos == len(seq)
            if variant:
                while nw < 4: self.ldF(f"W{nw}"); nw += 1
            else: A("s_branch L_pvdone")
        A("L_pvdone:")
        self.stamp("pv")
        self.tail()
        if self.stamps:
            self.stamp("end")
            A(f"""
            s_waitcnt vmcnt(0) lgkmcnt(0)
            s_add_u32 s{S_WS}, s{S_WS}, {WS_STAMP}
            s_addc_u32 s{S_WS+1}, s{S_WS+1}, 0
            s_lshl_b32 s{S_T1}, s2, 3
            s_add_u32 s{S_T1}, s{S_T1}, s{S_W}
            s_lshl_b32 s{S_T1}, s{S_T1}, 6
            v_mov_b32 v6, s{S_T1}
            """)
            for i in range(14): A(f"v_mov_b32 v{slot(0)+i}, s{S_ST+i}")
            A(f"v_mov_b32 v{slot(0)+14}, s{S_ROLE}\nv_mov_b32 v{slot(0)+15}, 0x80000000\ns_mov_b64 exec, 1")
            for i in range(4): A(f"global_store_dwordx4 v6, {vr(slot(i),4)}, s[{S_WS}:{S_WS+1}] offset:{16*i}")
        A("L_end:\ns_endpgm")
        A('.section .rodata,"a"\n.p2align 6')
        A(f".amdhsa_kernel {NAME}_kernel")
        A("""
        .amdhsa_next_free_vgpr 256
        .amdhsa_next_free_sgpr 102
        .amdhsa_accum_offset 256
        .amdhsa_group_segment_fixed_size 0
        .amdhsa_kernarg_size 104
        .amdhsa_user_sgpr_count 2
        .amdhsa_user_sgpr_kernarg_segment_ptr 1
        .amdhsa_system_sgpr_workgroup_id_x 1
        .amdhsa_float_denorm_mode_32 3
        .end_amdhsa_kernel
        """)
        return A.finish()

    OW, OR, OS = V_X, V_X+1, V_X+2
    A0, A1, A2, A3, A4, A5, A6, A7 = [V_X+3+i for i in range(8)]
    XP = V_X + 11; MK = V_X + 12; WR = V_X + 16
    WF = V_X + 24

    def tail_setup(self):
        A = self.A; s = self
        A(f"""
        v_lshlrev_b32 v{s.OW}, 5, v{V_C}
        v_lshl_add_u32 v{s.OW}, v{V_G}, 4, v{s.OW}
        s_lshl_b32 s{S_T1}, s{S_W}, 9
        v_add_u32 v{s.OW}, s{S_T1}, v{s.OW}
        v_and_b32 v6, 31, v0
        v_bfe_u32 v7, v0, 5, 1
        v_lshlrev_b32 v{s.OR}, 4, v6
        v_lshl_add_u32 v{s.OR}, v7, 11, v{s.OR}
        v_lshlrev_b32 v{s.OS}, 3, v6
        v_lshl_add_u32 v{s.OS}, v7, 2, v{s.OS}
        s_lshl_b32 s{S_A0}, s{S_H}, 11
        s_add_u32 s{S_A0}, s{S_A0}, {WS_OBUF}
        s_lshl_b32 s{S_T1}, s{S_B}, 8
        v_add_u32 v{s.OS}, s{S_T1}, v{s.OS}
        v_and_b32 v5, 7, v0
        v_bfe_u32 v6, v0, 3, 1
        s_cmp_eq_u32 s{S_ROLE}, 3
        s_cbranch_scc0 L_tsffn
        """)
        A(f"""
        v_lshlrev_b32 v{s.A0}, 8, v5
        v_lshl_add_u32 v{s.A0}, v6, 6, v{s.A0}
        v_lshl_add_u32 v{s.A0}, v{V_G}, 4, v{s.A0}
        s_and_b32 s{S_T1}, s{S_W}, 3
        s_lshl_b32 s{S_T2}, s{S_T1}, 2
        v_bfe_u32 v{s.A1}, v0, 1, 1
        v_add_u32 v{s.A1}, s{S_T2}, v{s.A1}
        v_bfe_u32 v{s.A2}, v0, 2, 2
        v_lshlrev_b32 v{s.A3}, 1, v{s.A2}
        v_xor_b32 v{s.A1}, v{s.A1}, v{s.A3}
        v_lshlrev_b32 v{s.A1}, 4, v{s.A1}
        v_lshl_add_u32 v{s.A1}, v{s.A2}, 8, v{s.A1}
        v_and_b32 v{s.A2}, 1, v0
        v_lshl_add_u32 v{s.A1}, v{s.A2}, 3, v{s.A1}
        v_lshl_add_u32 v{s.A1}, v{V_G}, 13, v{s.A1}
        v_add_u32 v{s.A1}, {L_W}, v{s.A1}
        v_mul_u32_u24 v{s.A3}, {32*2560}, v5
        v_lshl_add_u32 v{s.A3}, v6, 6, v{s.A3}
        v_lshl_add_u32 v{s.A3}, v{V_G}, 4, v{s.A3}
        s_mul_i32 s{S_A1}, s{S_H}, 2560
        s_lshl_b32 s{S_T2}, s{S_B}, 9
        s_add_u32 s{S_A1}, s{S_A1}, s{S_T2}
        s_lshl_b32 s{S_T2}, s{S_T1}, 7
        s_add_u32 s{S_A1}, s{S_A1}, s{S_T2}
        s_add_u32 s{S_A1}, s{S_A1}, {WS_SLAB}
        s_mul_i32 s{S_T0}, s{S_H}, 5
        s_add_u32 s{S_T0}, s{S_T0}, s{S_B}
        s_mul_i32 s{S_T1}, s{S_T0}, 3277
        s_lshr_b32 s{S_T1}, s{S_T1}, 16
        s_mul_i32 s{S_T2}, s{S_T1}, 20
        s_sub_u32 s{S_T2}, s{S_T0}, s{S_T2}
        v_and_b32 v6, 3, v0
        v_bfe_u32 v5, v0, 4, 1
        v_lshl_add_u32 v6, v5, 2, v6
        v_lshlrev_b32 v{s.A5}, 2, v7
        v_lshl_add_u32 v{s.A5}, v6, 3, v{s.A5}
        s_mul_i32 s{S_T3}, s{S_T1}, 1280
        s_lshl_b32 s{S_T0}, s{S_T2}, 6
        s_add_u32 s{S_T3}, s{S_T3}, s{S_T0}
        v_add_u32 v{s.A5}, s{S_T3}, v{s.A5}
        v_bfe_u32 v{s.A4}, v0, 2, 2
        v_lshl_add_u32 v{s.A4}, v7, 2, v{s.A4}
        v_mul_u32_u24 v{s.A4}, 2560, v{s.A4}
        v_lshl_add_u32 v{s.A4}, v6, 4, v{s.A4}
        s_mul_i32 s{S_T3}, s{S_T1}, {32*2560}
        s_lshl_b32 s{S_T0}, s{S_T2}, 7
        s_add_u32 s{S_T3}, s{S_T3}, s{S_T0}
        s_add_u32 s{S_T3}, s{S_T3}, {WS_SLAB}
        v_add_u32 v{s.A4}, s{S_T3}, v{s.A4}
        v_mov_b32 v{s.MK}, 0xffff
        s_mov_b32 s{S_A2}, 40960
        s_mov_b32 s{S_A3}, 61440
        s_cmp_eq_u32 s{S_W}, 7
        s_cbranch_scc0 L_tsdone
        global_load_dword v{s.XP}, v{s.A5}, s[{S_X}:{S_X+1}] nt
        v_lshlrev_b32 v{s.A5}, 1, v{s.A5}
        v_add_u32 v{s.A5}, {WS_HBUF}, v{s.A5}
        """)
        for so in ("0", f"s{S_C4K+5}", f"s{S_A2}", f"s{S_A3}"):
            A(f"buffer_load_dword v{s.WR}, v{s.A4}, {srd(R_WS)}, {so} offen sc1")
        A(f"""
        s_branch L_tsdone
        L_tsffn:
        s_mul_i32 s{S_A1}, s{S_W}, 2560
        s_add_u32 s{S_A1}, s{S_A1}, {WS_HBUF}
        v_lshlrev_b32 v{s.A0}, 5, v{V_L}
        v_lshlrev_b32 v{s.A1}, 3, v{V_L}
        s_mul_i32 s{S_T2}, s{S_W}, {XS}
        v_add_u32 v{s.A2}, s{S_T2}, v{V_L16}
        v_lshlrev_b32 v7, 2, v{V_L}
        v_add_u32 v{s.A3}, s{S_T2}, v7
        v_lshlrev_b32 v{s.A6}, 6, v5
        v_lshl_add_u32 v{s.A6}, v{V_G}, 4, v{s.A6}
        s_mul_i32 s{S_T2}, s{S_W}, 544
        v_add_u32 v{s.A5}, s{S_T2}, v{s.A6}
        v_mul_u32_u24 v6, {4*544}, v6
        v_add_u32 v{s.A6}, v{s.A6}, v6
        v_mul_u32_u24 v{s.A4}, {XS}, v5
        s_cmp_eq_u32 s{S_ROLE}, 2
        s_cbranch_scc1 L_tsdown
        v_lshl_add_u32 v{s.A4}, v{V_G}, 4, v{s.A4}
        s_and_b32 s{S_T2}, s{S_W}, 3
        s_mul_i32 s{S_T2}, s{S_T2}, 320
        v_add_u32 v{s.A4}, s{S_T2}, v{s.A4}
        s_mul_i32 s{S_T2}, s{S_W}, {8*544}
        v_add_u32 v{s.A6}, s{S_T2}, v{s.A6}
        v_bfe_u32 v{s.A7}, v0, 2, 2
        v_lshlrev_b32 v{s.A7}, 6, v{s.A7}
        v_and_b32 v6, 3, v0
        v_lshl_add_u32 v{s.A7}, v6, 3, v{s.A7}
        v_lshl_add_u32 v{s.A7}, v{V_G}, 9, v{s.A7}
        v_add_u32 v{s.A7}, s{S_LM0}, v{s.A7}
        v_lshrrev_b32 v6, 1, v{V_G}
        v_lshlrev_b32 v{s.XP}, 7, v6
        v_lshl_add_u32 v{s.XP}, v5, 4, v{s.XP}
        v_and_b32 v6, 1, v{V_G}
        v_lshl_add_u32 v{s.XP}, v6, 3, v{s.XP}
        s_lshl_b32 s{S_A2}, s{S_IDX}, 9
        s_lshl_b32 s{S_T2}, s{S_W}, 8
        s_add_u32 s{S_A2}, s{S_A2}, s{S_T2}
        s_branch L_tsdone
        L_tsdown:
        global_load_dwordx4 {vr(s.WR,4)}, v{V_L16}, s[{S_WR}:{S_WR+1}] nt
        global_load_dword v{s.WR+4}, v7, s[{S_WR}:{S_WR+1}] offset:1024 nt
        v_lshl_add_u32 v{s.A4}, v{V_G}, 3, v{s.A4}
        s_lshl_b32 s{S_T2}, s{S_IDX}, 5
        v_add_u32 v{s.A4}, s{S_T2}, v{s.A4}
        v_lshlrev_b32 v{s.A7}, 3, v{V_C}
        v_lshl_add_u32 v{s.A7}, v{V_G}, 8, v{s.A7}
        v_add_u32 v{s.A7}, s{S_LM0}, v{s.A7}
        v_mul_u32_u24 v{s.XP}, 1280, v5
        v_lshl_add_u32 v{s.XP}, v{V_G}, 3, v{s.XP}
        v_add_u32 v{s.XP}, s{S_T2}, v{s.XP}
        v_lshlrev_b32 v{s.MK}, 4, v5
        v_lshl_add_u32 v{s.MK}, v{V_G}, 7, v{s.MK}
        v_lshlrev_b32 v{s.MK+1}, 2, v5
        s_mul_i32 s{S_A2}, s{S_W}, {7*512}
        global_load_dword v{s.MK+2}, v{s.XP}, s[{S_OUT}:{S_OUT+1}] nt
        L_tsdone:
        """)

    def tail(self):
        A = self.A; s = self
        oacc = V_ACC; P = slot(0)
        A(f"""
        s_cmp_eq_u32 s{S_W}, 0
        s_mov_b32 exec_hi, 0
        s_nop 4
        ds_write_b128 v{s.OW}, {vr(oacc,4)} offset:{L_QP}
        s_mov_b64 exec, -1
        s_waitcnt lgkmcnt(0)
        s_barrier
        s_cbranch_scc0 L_noopub
        """)
        for i in range(4): A(f"ds_read_b128 {vr(P+4*i,4)}, v{s.OR} offset:{L_QP+512*i}")
        def sum4(B):
            A("s_waitcnt lgkmcnt(2)")
            A(f"v_pk_add_f32 {vr(B,2)}, {vr(B,2)}, {vr(B+4,2)}\nv_pk_add_f32 {vr(B+2,2)}, {vr(B+2,2)}, {vr(B+6,2)}")
            A("s_waitcnt lgkmcnt(0)")
            A(f"v_pk_add_f32 {vr(B+8,2)}, {vr(B+8,2)}, {vr(B+12,2)}\nv_pk_add_f32 {vr(B+10,2)}, {vr(B+10,2)}, {vr(B+14,2)}")
            A(f"v_pk_add_f32 {vr(B,2)}, {vr(B,2)}, {vr(B+8,2)}\nv_pk_add_f32 {vr(B+2,2)}, {vr(B+2,2)}, {vr(B+10,2)}")
        sum4(P)
        A(f"""
        v_permlane32_swap_b32 v{P}, v{P+2}
        v_permlane32_swap_b32 v{P+1}, v{P+3}
        v_pk_add_f32 {vr(P,2)}, {vr(P,2)}, {vr(P+2,2)}
        v_cvt_pk_bf16_f32 v{P}, v{P}, v{P+1}
        v_min_u32 v{P}, -2, v{P}
        buffer_store_dword v{P}, v{s.OS}, {srd(R_WS)}, s{S_A0} offen sc1
        L_noopub:
        """)
        self.stamp("opub")
        A(f"s_cmp_eq_u32 s{S_ROLE}, 3\ns_cbranch_scc0 L_ffn")
        WF = s.WF
        A(f"""
        s_cmp_eq_u32 s{S_W}, 0
        s_cbranch_scc1 L_w0
        s_waitcnt vmcnt(0)
        L_w0:
        s_waitcnt vmcnt(1)
        s_cmp_lt_u32 s{S_W}, 4
        s_barrier
        s_cbranch_scc1 L_fin
        v_xor_b32 v{s.A2}, 32, v{s.A1}
        v_xor_b32 v{s.A6}, 128, v{s.A1}
        v_xor_b32 v{s.A7}, 160, v{s.A1}
        """)
        self.stamp("wogot")
        for tl in range(2):
            for st in range(4):
                for hf in range(2):
                    a = [[s.A1, s.A6], [s.A2, s.A7]][tl][hf]
                    A(f"ds_read_b64_tr_b16 {vr(WF+16*tl+4*st+2*hf,2)}, v{a} offset:{4096*hf+1024*st}")
                if tl == 1 and st == 2: A("s_waitcnt lgkmcnt(8)")
        A("L_opoll:")
        for u in range(2): A(f"buffer_load_dwordx4 {vr(P+4*u,4)}, v{s.A0}, {srd(R_WS)}, s{S_A0} offen offset:{128*u} sc1")
        A("s_waitcnt vmcnt(0) lgkmcnt(0)")
        self.sentinel(P, 8, 6)
        A("s_cbranch_vccz L_ook")
        self.spin_guard("L_opoll")
        A("L_ook:")
        self.stamp("ook")
        D = slot(4)
        for u in range(2):
            for tl in range(2):
                for par in range(2):
                    d = D + 8*tl + 4*par
                    A(f"v_mfma_f32_16x16x32_bf16 {vr(d,4)}, {vr(WF+16*tl+4*(2*u+par),4)}, {vr(P+4*u,4)}, {vr(d,4) if u else '0'}")
        A(f"s_cmp_eq_u32 s{S_W}, 7")
        R = slot(8)
        for i in range(4): A(f"v_add_f32_dpp v{R+i}, v{D+4+i}, v{D+i} row_ror:8 row_mask:0xf bank_mask:0x3")
        for i in range(4): A(f"v_add_f32_dpp v{R+i}, v{D+8+i}, v{D+12+i} row_ror:8 row_mask:0xf bank_mask:0xc")
        for i in range(4): A(f"v_and_or_b32 v{R+i}, v{R+i}, -16, s{S_T4}")
        A(f"buffer_store_dwordx4 {vr(R,4)}, v{s.A3}, {srd(R_WS)}, s{S_A1} offen sc1")
        self.stamp("slab")
        A("s_cbranch_scc0 L_fin")
        P = slot(12)
        A(f"v_lshlrev_b32 v{P+16}, 16, v{s.XP}\nv_and_b32 v{P+17}, 0xffff0000, v{s.XP}")
        A("L_redpoll:")
        for t, so in enumerate(("0", f"s{S_C4K+5}", f"s{S_A2}", f"s{S_A3}")):
            A(f"buffer_load_dwordx4 {vr(P+4*t,4)}, v{s.A4}, {srd(R_WS)}, {so} offen sc1")
        A("s_waitcnt vmcnt(0)")
        self.tagcheck(P, 16, 6, S_T4, 15)
        A("s_cbranch_vccz L_redok")
        self.spin_guard("L_redpoll")
        A("L_redok:")
        self.stamp("redok")
        for hh in (0, 2):
            A(f"v_pk_add_f32 {vr(P+hh,2)}, {vr(P+hh,2)}, {vr(P+4+hh,2)}\nv_pk_add_f32 {vr(P+8+hh,2)}, {vr(P+8+hh,2)}, {vr(P+12+hh,2)}")
        for hh in (0, 2): A(f"v_pk_add_f32 {vr(P+hh,2)}, {vr(P+hh,2)}, {vr(P+8+hh,2)}")
        A(f"v_permlane32_swap_b32 v{P}, v{P+2}\nv_permlane32_swap_b32 v{P+1}, v{P+3}")
        A(f"v_add_f32 v{P}, v{P}, v{P+2}\nv_add_f32 v{P+1}, v{P+1}, v{P+3}")
        for md in ("row_ror:8", "row_ror:4"):
            for i in range(2): A(f"v_add_f32_dpp v{P+i}, v{P+i}, v{P+i} {md} {DPPF}")
        self.rnd_pair(P, P + 1, P + 2)
        A(f"""
        v_add_f32 v{P}, v{P}, v{P+16}
        v_add_f32 v{P+1}, v{P+1}, v{P+17}
        s_mov_b32 exec_lo, 0x000f000f
        v_cvt_pk_bf16_f32 v{P+1}, v{P}, v{P+1}
        s_mov_b32 exec_hi, 0x000f000f
        v_lshl_or_b32 v{P}, v{P+1}, 16, s{S_T16}
        v_bfi_b32 v{P+1}, v{s.MK}, s{S_T16}, v{P+1}
        buffer_store_dwordx2 {vr(P,2)}, v{s.A5}, {srd(R_WS)}, 0 offen sc1
        s_branch L_fin
        L_ffn:
        s_cmp_eq_u32 s{S_ROLE}, 0
        s_cbranch_scc1 L_fin
        s_barrier
        """)
        for i in range(self.nf_in, 7): self.ldF()
        A(f"s_cmp_eq_u32 s{S_ROLE}, 2\ns_cbranch_scc1 L_fdown")
        for i in range(max(7, self.nf_in), 10): self.ldF()
        A("s_waitcnt vmcnt(0)")
        for st in range(5):
            for tl in range(2):
                for hf in range(2): A(f"ds_read_b64_tr_b16 {vr(WF+20*tl+4*st+2*hf,2)}, v{s.A7} offset:{2048*st+256*hf+32*tl}")
            if st == 2: A("s_waitcnt lgkmcnt(4)")
        A("s_branch L_fgot\nL_fdown:\ns_waitcnt vmcnt(0)")
        for st in range(7):
            for hf in range(2): A(f"ds_read_b64_tr_b16 {vr(WF+4*st+2*hf,2)}, v{s.A7} offset:{1024*st+128*hf}")
        A("L_fgot:")
        self.stamp("fgot")
        HR = slot(4); HO = slot(6); F1 = slot(8); T1 = slot(11)
        A("L_hpoll:")
        A(f"buffer_load_dwordx4 {vr(F1,4)}, v{s.A0}, {srd(R_WS)}, s{S_A1} offen sc1")
        A(f"buffer_load_dwordx4 {vr(F1+4,4)}, v{s.A0}, {srd(R_WS)}, s{S_A1} offen offset:16 sc1")
        A(f"buffer_load_dwordx2 {vr(F1+8,2)}, v{s.A1}, {srd(R_WS)}, s{S_A1} offen offset:2048 sc1")
        A("s_waitcnt vmcnt(0)")
        self.tagcheck(F1, 10, 6, S_T16, "0xffff")
        A("s_cbranch_vccz L_hok")
        self.spin_guard("L_hpoll")
        A("L_hok:")
        self.stamp("hok")
        self.layernorm(None, F1, T1, HO)
        A(f"""
        ds_write_b128 v{s.A2}, {vr(HO,4)} offset:{L_XN}
        ds_write_b32 v{s.A3}, v{HO+4} offset:{L_XN+1024}
        s_cmp_eq_u32 s{S_ROLE}, 2
        s_cbranch_scc1 L_down
        s_waitcnt lgkmcnt(0)
        s_barrier
        """)
        self.stamp("lnbar")
        BF = slot(16); DA = V_ACC
        for st in range(5): A(f"ds_read_b128 {vr(BF+4*st,4)}, v{s.A4} offset:{L_XN+64*st}")
        for st in range(5):
            A(f"s_waitcnt lgkmcnt({4-st})")
            for tl in range(2):
                A(f"v_mfma_f32_16x16x32_bf16 {vr(DA+4*tl,4)}, {vr(WF+20*tl+4*st,4)}, {vr(BF+4*st,4)}, {vr(DA+4*tl,4) if st else '0'}")
        A(f"""
        s_cmp_lt_u32 s{S_W}, 2
        ds_write_b128 v{s.A5}, {vr(DA,4)} offset:{L_RED}
        ds_write_b128 v{s.A5}, {vr(DA+4,4)} offset:{L_RED+8*544}
        s_waitcnt lgkmcnt(0)
        s_barrier
        s_cbranch_scc0 L_fin
        """)
        def red4():
            for i in range(4): A(f"ds_read_b128 {vr(BF+4*i,4)}, v{s.A6} offset:{L_RED+544*i}")
        red4(); sum4(BF)
        self.rnd_pair(BF, BF+1, BF+4); self.rnd_pair(BF+2, BF+3, BF+5)
        for i in range(4): A(f"v_mul_f32 v{BF+4+i}, 0xbfb8aa3b, v{BF+i}")
        for i in range(4): A(f"v_exp_f32 v{BF+4+i}, v{BF+4+i}")
        for i in range(4): A(f"v_add_f32 v{BF+4+i}, 1.0, v{BF+4+i}")
        for i in range(4): A(f"v_rcp_f32 v{BF+4+i}, v{BF+4+i}")
        for i in range(4): A(f"v_mul_f32 v{BF+4+i}, v{BF+4+i}, v{BF+i}")
        self.rnd_pair(BF+4, BF+5, BF+8); self.rnd_pair(BF+6, BF+7, BF+9)
        for i in range(4): A(f"v_mul_f32_dpp v{BF+4+i}, v{BF+i}, v{BF+4+i} row_ror:8 {DPPF}")
        A(f"""
        s_mov_b32 exec_lo, 0x00ff00ff
        s_mov_b32 exec_hi, 0x00ff00ff
        v_cvt_pk_bf16_f32 v{BF}, v{BF+4}, v{BF+5}
        v_cvt_pk_bf16_f32 v{BF+1}, v{BF+6}, v{BF+7}
        v_min_u32 v{BF}, -2, v{BF}
        v_min_u32 v{BF+1}, -2, v{BF+1}
        buffer_store_dwordx2 {vr(BF,2)}, v{s.XP}, {srd(R_ACT)}, s{S_A2} offen sc1
        """)
        self.stamp("apub")
        A("s_branch L_fin\nL_down:")
        for i in range(5): A(f"v_cvt_pk_bf16_f32 v{HR+i}, v{F1+2*i}, v{F1+2*i+1}")
        A(f"ds_write_b128 v{s.A2}, {vr(HR,4)} offset:{L_H}\nds_write_b32 v{s.A3}, v{HR+4} offset:{L_H+1024}")
        for i in range(5):
            A(f"v_lshlrev_b32 v{F1+2*i}, 16, v{HO+i}\nv_and_b32 v{F1+2*i+1}, 0xffff0000, v{HO+i}")
            A(f"v_lshlrev_b32 v{T1+2*i}, 16, v{s.WR+i}\nv_and_b32 v{T1+2*i+1}, 0xffff0000, v{s.WR+i}")
        A(f"v_mul_f32 v6, v{F1}, v{T1}")
        for i in range(1, 10): A(f"v_fmac_f32 v6, v{F1+i}, v{T1+i}")
        for md in ("quad_perm:[1,0,3,2]", "quad_perm:[2,3,0,1]"): A(f"v_add_f32_dpp v6, v6, v6 {md} {DPPF}")
        self.allred("v_add_f32", 6, F1)
        self.rnd1(6)
        A(f"v_mul_f32 v6, 0xbfb8aa3b, v6\nv_exp_f32 v6, v6\nv_add_f32 v6, 1.0, v6\nv_rcp_f32 v6, v6")
        self.rnd1(6)
        A(f"""
        s_lshl_b32 s{S_T1}, s{S_W}, 2
        v_mov_b32 v{F1}, s{S_T1}
        ds_write_b32 v{F1}, v6 offset:{L_SIG}
        s_waitcnt lgkmcnt(0)
        s_barrier
        ds_read_b64 {vr(F1,2)}, v{s.A4} offset:{L_XN}
        ds_read_b64 {vr(F1+2,2)}, v{s.A4} offset:{L_H}
        ds_read_b32 v{F1+4}, v{s.MK+1} offset:{L_SIG}
        L_apoll:
        """)
        for st in range(7): A(f"buffer_load_dwordx4 {vr(BF+4*st,4)}, v{s.MK}, {srd(R_ACT)}, s{S_A2} offen offset:{512*st} sc1")
        A("s_waitcnt vmcnt(0)")
        self.sentinel(BF, 28, 6)
        A("s_cbranch_vccz L_aok")
        self.spin_guard("L_apoll")
        A("L_aok:")
        self.stamp("aok")
        for st in range(7):
            A(f"v_mfma_f32_16x16x32_bf16 {vr(DA,4)}, {vr(WF+4*st,4)}, {vr(BF+4*st,4)}, {vr(DA,4) if st else '0'}")
        A(f"""
        s_cmp_eq_u32 s{S_W}, 0
        ds_write_b128 v{s.A5}, {vr(DA,4)} offset:{L_RED}
        s_waitcnt lgkmcnt(0)
        s_barrier
        s_cbranch_scc0 L_fin
        """)
        red4()
        for i in range(2):
            A(f"v_lshlrev_b32 v{T1+2*i}, 16, v{F1+i}\nv_and_b32 v{T1+2*i+1}, 0xffff0000, v{F1+i}")
            A(f"v_lshlrev_b32 v{T1+4+2*i}, 16, v{F1+2+i}\nv_and_b32 v{T1+4+2*i+1}, 0xffff0000, v{F1+2+i}")
        sum4(BF)
        for i in range(4): A(f"v_add_f32_dpp v{BF+i}, v{BF+i}, v{BF+i} row_ror:8 {DPPF}")
        self.rnd_pair(BF, BF+1, BF+4); self.rnd_pair(BF+2, BF+3, BF+5)
        for i in range(4): A(f"v_mul_f32 v{BF+i}, v{BF+i}, v{F1+4}")
        self.rnd_pair(BF, BF+1, BF+4); self.rnd_pair(BF+2, BF+3, BF+5)
        for i in range(4): A(f"v_add_f32 v{BF+i}, v{BF+i}, v{T1+i}")
        self.rnd_pair(BF, BF+1, BF+4); self.rnd_pair(BF+2, BF+3, BF+5)
        for i in range(4): A(f"v_add_f32 v{BF+i}, v{BF+i}, v{T1+4+i}")
        A(f"""
        s_mov_b32 exec_lo, 0x00ff00ff
        s_mov_b32 exec_hi, 0x00ff00ff
        v_cvt_pk_bf16_f32 v{BF}, v{BF}, v{BF+1}
        v_cvt_pk_bf16_f32 v{BF+1}, v{BF+2}, v{BF+3}
        global_store_dwordx2 v{s.XP}, {vr(BF,2)}, s[{S_OUT}:{S_OUT+1}]
        s_cmp_eq_u32 s{S_IDX}, 0
        s_cbranch_scc0 L_fin
        v_mov_b32 v6, {WS_EPOCH}
        v_mov_b32 v7, s{S_EP}
        s_mov_b64 exec, 1
        global_store_dword v6, v7, s[{S_WS}:{S_WS+1}] sc1
        L_fin:
        s_mov_b64 exec, -1
        """)

if __name__ == "__main__":
    import json
    out = sys.argv[1]
    kw = json.loads(sys.argv[2]) if len(sys.argv) > 2 else {}
    g = G(**kw)
    s = g.gen()
    hdr = open("cdna_kernels/" + NAME + ".s.ref").read().split("; Override launch")[0]
    open(out, "w").write(hdr + s)
    print(out, "lines", s.count("\n"), "nops", g.A.nops)
```

```python
import sys
from asmlib import Asm
NAME = "sequential_preLN__sliding_block_cached__moe_arch_mod__decode"

WS_EPOCH = 0x0
WS_XCT   = 0x1000
WS_GRP   = 0x10000
G_O, G_H, G_A = 0, 8192, 8192 + 10240
WS_SLAB  = 0x60000
WS_YP    = 0xC0000
WS_QPART = 0x100000
WS_SIZE  = 0x200000
WS_STAMP = 0x4000000
XS = 1312
L_XN    = 0
L_H     = 10496
L_QP    = 20992
L_RED   = 25088
L_SM    = 33792
L_SIG   = 33856
L_W     = 34816
L_TOT   = L_W + 81920
S_X, S_K, S_V, S_WQ, S_WO, S_WR, S_WG, S_WU, S_WD, S_OUT, S_WS = 16, 18, 20, 22, 24, 28, 30, 32, 34, 36, 40
S_EP, S_T4, S_LOC = 26, 27, 38
S_GRP = 82
S_EJOB = 83
R_K, R_V, R_WQ, R_F, R_WS, R_ACT = 44, 48, 52, 56, 60, 64
S_C4K = 72
S_H, S_B, S_W, S_ROLE, S_IDX = 3, 4, 5, 6, 7
S_SPIN = 9
S_T0, S_T1, S_T2, S_T3 = 10, 11, 12, 13
S_M = 14
S_LM0 = 42
S_FSTEP = 43
S_FCUR = 8
S_MCUR = 39
S_A0, S_A1, S_A2, S_A3 = 68, 69, 70, 71
S_ST = 88
V_L = 1
V_K, V_V, V_F = 2, 3, 4
V_MASK = 8
V_SC = 12
V_ACC = 20
V_Q = 28
V_L16, V_G, V_C = 44, 46, 47
V_X = 48
V_RING = 128
DPPF = "row_mask:0xf bank_mask:0xf"
LOG2E = "0x3fb8aa3b"
def slot(t): return V_RING + 4 * t
def vr(a, n): return f"v[{a}:{a+n-1}]"
def srd(r): return f"s[{r}:{r+3}]"

class G:
    def __init__(self, D=4, D2=None, thr="none", stamps=False, qpos=16, qbar=22, vextra=4, sleep=1, npre=6, nf_in=0, f0=6, fstep=5, wo_lead=0, freeq=4, pfpos=20, pfflags='nt', qflags='sc1', patA=None, patB=None, x1=1, x2=2, k0=4, local=True, rot=True, fflags=''):
        self.A = Asm(); self.D = D; self.D2 = D2; self.thr = thr; self.stamps = stamps
        self.vm = []; self.done = 0; self.uid = 0; self.stamped = set()
        self.qpos = qpos; self.qbar = qbar; self.vextra = vextra; self.sleep = sleep; self.npre = npre
        self.nf_in = nf_in; self.f0 = f0; self.fstep = fstep; self.wo_lead = wo_lead; self.freeq = freeq; self.pfpos = pfpos; self.pfflags = pfflags; self.qflags = qflags; self.patA = patA; self.patB = patB; self.x1 = x1; self.x2 = x2; self.nthr = 0; self.k0 = k0; self.local = local; self.rot = rot; self.fflags = fflags
    def issue(self, name, text):
        self.A(text); self.vm.append(name)
    def chk_stamps(self):
        if not self.stamps: return
        for nm in self.stamps:
            if nm.startswith("@") and nm not in self.stamped and nm[1:] in self.vm[:self.done]:
                self.stamped.add(nm); self.stamp(nm)
    def wait(self, name):
        i = len(self.vm) - 1 - self.vm[::-1].index(name)
        if i < self.done: return
        self.A(f"s_waitcnt vmcnt({len(self.vm) - 1 - i})"); self.done = i + 1
        self.chk_stamps()
    def throttle(self, X=0):
        self.nthr += 1
        da = (self.patA[self.nthr % len(self.patA)] if self.patA else self.D) + X
        if len(self.vm) - self.done > da - 1:
            self.A(f"s_waitcnt vmcnt({da-1})"); self.done = len(self.vm) - (da - 1)
            self.chk_stamps()
        if self.D2:
            db = (self.patB[self.nthr % len(self.patB)] if self.patB else self.D2) + X
            if len(self.vm) - self.done > db - 1:
                self.uid += 1
                self.A(f"s_cbranch_vccz L_thr{self.uid}\ns_waitcnt vmcnt({db-1})\nL_thr{self.uid}:")
    def setthr(self):
        if self.D2: self.A(f"s_mov_b64 vcc, s[80:81]")
    def stamp(self, name):
        if self.stamps and name in self.stamps:
            i = self.stamps.index(name)
            self.A(f"s_memrealtime s[{S_ST+2*i}:{S_ST+2*i+1}]")
    def spin_guard(self, lab, sleep=None):
        sleep = self.sleep if sleep is None else sleep
        if sleep: self.A(f"s_sleep {sleep}")
        self.A(f"s_sub_u32 s{S_SPIN}, s{S_SPIN}, 1\ns_cmp_eq_u32 s{S_SPIN}, 0\ns_cbranch_scc0 {lab}\ns_branch L_end")
    def rnd_pair(self, a, b, t):
        self.A(f"v_cvt_pk_bf16_f32 v{t}, v{a}, v{b}\nv_lshlrev_b32 v{a}, 16, v{t}\nv_and_b32 v{b}, 0xffff0000, v{t}")
    def rnd1(self, a):
        self.A(f"v_cvt_pk_bf16_f32 v{a}, v{a}, v{a}\nv_and_b32 v{a}, 0xffff0000, v{a}")
    def sentinel(self, base, n, t):
        A = self.A
        A(f"v_max3_u32 v{t}, v{base}, v{base+1}, v{base+2}")
        i = 3
        while i < n:
            if i + 1 < n: A(f"v_max3_u32 v{t}, v{t}, v{base+i}, v{base+i+1}"); i += 2
            else: A(f"v_max_u32 v{t}, v{t}, v{base+i}"); i += 1
        A(f"v_cmp_eq_u32 vcc, -1, v{t}")
    def tagcheck(self, base, n, t, stag, mask):
        A = self.A
        for i in range(n): A(f"v_xor_b32 v{base+i}, s{stag}, v{base+i}")
        if n == 2: A(f"v_or_b32 v{t}, v{base}, v{base+1}")
        else:
            A(f"v_or3_b32 v{t}, v{base}, v{base+1}, v{base+2}")
            i = 3
            while i < n:
                if i + 1 < n: A(f"v_or3_b32 v{t}, v{t}, v{base+i}, v{base+i+1}"); i += 2
                else: A(f"v_or_b32 v{t}, v{t}, v{base+i}"); i += 1
        A(f"v_and_b32 v{t}, {mask}, v{t}\nv_cmp_ne_u32 vcc, 0, v{t}")
    def allred(self, op, v, tmp):
        A = self.A
        for md in ("row_ror:8", "row_ror:4"): A(f"{op}_dpp v{v}, v{v}, v{v} {md} {DPPF}")
        for sw in ("v_permlane16_swap_b32", "v_permlane32_swap_b32"):
            A(f"v_mov_b32 v{tmp}, v{v}\n{sw} v{v}, v{tmp}\n{op} v{v}, v{v}, v{tmp}")
    def layernorm(self, src, f, t, out, keep=None):
        A = self.A
        if src is not None:
            for i in range(5):
                A(f"v_lshlrev_b32 v{f+2*i}, 16, v{src+i}\nv_and_b32 v{f+2*i+1}, 0xffff0000, v{src+i}")
        A(f"v_readfirstlane_b32 s{S_T0}, v{f}")
        for i in range(10): A(f"v_subrev_f32 v{t+i}, s{S_T0}, v{f+i}")
        s1, s2, s3, s4 = out, out + 1, out + 2, out + 3
        A(f"v_add_f32 v{s1}, v{t}, v{t+1}\nv_mul_f32 v{s2}, v{t}, v{t}\nv_add_f32 v{s3}, v{t+2}, v{t+3}\nv_mul_f32 v{s4}, v{t+1}, v{t+1}")
        for i in range(2, 10, 2):
            A(f"v_fmac_f32 v{s2}, v{t+i}, v{t+i}\nv_fmac_f32 v{s4}, v{t+i+1}, v{t+i+1}")
            if i >= 4: A(f"v_add_f32 v{s1}, v{s1}, v{t+i}\nv_add_f32 v{s3}, v{s3}, v{t+i+1}")
        A(f"v_add_f32 v{s1}, v{s1}, v{s3}\nv_add_f32 v{s2}, v{s2}, v{s4}")
        A(f"v_permlane32_swap_b32 v{s1}, v{s2}\nv_add_f32 v{s1}, v{s1}, v{s2}")
        for m in ("quad_perm:[1,0,3,2]", "quad_perm:[2,3,0,1]", "row_half_mirror", "row_mirror"):
            A(f"v_add_f32_dpp v{s1}, v{s1}, v{s1} {m} {DPPF}")
        A(f"v_add_f32_dpp v{s1}, v{s1}, v{s1} row_bcast:15 row_mask:0xa bank_mask:0xf")
        A(f"v_mul_f32 v{s1}, 0x3acccccd, v{s1}")
        A(f"v_readlane_b32 s{S_T1}, v{s1}, 31\nv_readlane_b32 s{S_T2}, v{s1}, 63")
        A(f"v_mov_b32 v{s2}, s{S_T1}\nv_add_f32 v{s1}, s{S_T0}, v{s2}\nv_fma_f32 v{s2}, -v{s2}, v{s2}, s{S_T2}\nv_max_f32 v{s2}, 0, v{s2}")
        self.rnd_pair(s1, s2, s3)
        A(f"v_add_f32 v{s2}, 0x3727c5ac, v{s2}")
        self.rnd1(s2)
        A(f"v_sqrt_f32 v{s2}, v{s2}")
        for i in range(10): A(f"v_sub_f32 v{t+i}, v{f+i}, v{s1}")
        self.rnd1(s2)
        A(f"v_rcp_f32 v{out+4}, v{s2}")
        if keep: A(f"v_mov_b32 v{keep[0]}, v{s1}\nv_mov_b32 v{keep[1]}, v{out+4}")
        for i in range(5): self.rnd_pair(t+2*i, t+2*i+1, out + 2 + (i & 1))
        for i in range(10): A(f"v_mul_f32 v{t+i}, v{t+i}, v{out+4}")
        for i in range(5): A(f"v_cvt_pk_bf16_f32 v{out+i}, v{t+2*i}, v{t+2*i+1}")
    def ldF(self, counted=None, fl="nt"):
        txt = f"buffer_load_dwordx4 v{V_F}, {srd(R_F)}, s{S_FCUR} offen {fl} lds"
        self.A(f"s_mov_b32 m0, s{S_MCUR}")
        self.A(f"s_add_u32 s{S_MCUR}, s{S_MCUR}, 1024")
        if counted: self.issue(counted, txt); self.A(f"v_xor_b32 v{V_F}, 64, v{V_F}")
        else: self.A(txt)
        self.A(f"s_add_u32 s{S_FCUR}, s{S_FCUR}, s{S_FSTEP}")

    def gen(self):
        A = self.A
        A(f"; @launch grid=(256,1,1) block=(512,1,1) lds={L_TOT}")
        A('.amdgcn_target "amdgcn-amd-amdhsa--gfx950"\n.text')
        A(f".globl {NAME}_kernel\n.p2align 8\n.type {NAME}_kernel,@function\n{NAME}_kernel:")
        A("s_cmp_ge_u32 s2, 256\ns_cbranch_scc1 L_end")
        A("s_load_dwordx16 s[16:31], s[0:1], 0\ns_load_dwordx8 s[32:39], s[0:1], 64\ns_load_dwordx2 s[40:41], s[0:1], 96")
        if self.stamps:
            for i in range(1, 7): A(f"s_mov_b64 s[{S_ST+2*i}:{S_ST+2*i+1}], 0")
        self.stamp("start")
        A(f"""
        s_getpc_b64 s[{S_M}:{S_M+1}]
        v_lshlrev_b32 v7, 7, v0
        v_min_u32 v7, L_end-{NAME}_kernel-128, v7
        v_cmp_gt_u32 vcc, 128, v0
        s_cbranch_vccz L_nopf
        global_load_dword v{V_X+44}, v7, s[{S_M}:{S_M+1}]
        L_nopf:
        v_lshrrev_b32 v6, 6, v0
        v_and_b32 v{V_L}, 63, v0
        s_and_b32 s{S_T0}, s2, 7
        v_readfirstlane_b32 s{S_W}, v6
        s_lshr_b32 s{S_T1}, s2, 3
        s_and_b32 s{S_T2}, s{S_T1}, 3
        s_lshl_b32 s{S_H}, s{S_T0}, 2
        s_add_u32 s{S_H}, s{S_H}, s{S_T2}
        s_lshr_b32 s{S_B}, s{S_T1}, 2
        s_lshl_b32 s{S_T3}, s{S_B}, 5
        s_add_u32 s{S_T3}, s{S_T3}, s{S_H}
        s_lshl_b32 s{S_T3}, s{S_T3}, 20
        s_add_u32 s{S_T3}, s{S_T3}, 0xC0000
        v_lshlrev_b32 v7, 15, v6
        v_lshlrev_b32 v{V_L16}, 4, v{V_L}
        v_add_u32 v{V_V}, v7, v{V_L16}
        v_and_b32 v{V_K}, 3, v0
        v_lshl_add_u32 v{V_K}, v{V_K}, 4, v7
        v_bfe_u32 v5, v0, 2, 2
        v_lshl_add_u32 v{V_K}, v5, 10, v{V_K}
        v_bfe_u32 v{V_G}, v0, 4, 2
        v_lshl_add_u32 v{V_K}, v{V_G}, 6, v{V_K}
        v_mul_u32_u24 v{V_ACC}, 1280, v6
        v_lshl_add_u32 v{V_ACC+1}, v{V_L}, 2, v{V_ACC}
        v_add_u32 v{V_ACC}, v{V_ACC}, v{V_L16}
        v_and_b32 v{V_C}, 15, v0
        v_and_b32 v{V_ACC+4}, 1, v6
        v_lshlrev_b32 v{V_ACC+4}, 3, v{V_ACC+4}
        v_lshl_add_u32 v{V_ACC+4}, v{V_G}, 1, v{V_ACC+4}
        v_xor_b32 v{V_ACC+4}, v{V_ACC+4}, v{V_C}
        v_lshlrev_b32 v{V_ACC+4}, 4, v{V_ACC+4}
        v_lshl_add_u32 v{V_ACC+3}, v6, 2, v{V_G}
        v_lshrrev_b32 v{V_ACC+2}, 3, v0
        v_lshlrev_b32 v{V_ACC+2}, 13, v{V_ACC+2}
        v_and_b32 v5, 7, v0
        v_lshl_add_u32 v{V_ACC+2}, v5, 4, v{V_ACC+2}
        s_and_b32 s{S_T1}, s{S_B}, 3
        s_mul_i32 s{S_T1}, s{S_T1}, {160*8192}
        s_lshl_b32 s{S_T2}, s{S_H}, 8
        s_add_u32 s{S_T1}, s{S_T1}, s{S_T2}
        s_lshr_b32 s{S_T2}, s{S_B}, 2
        s_lshl_b32 s{S_T2}, s{S_T2}, 7
        s_add_u32 s{S_T1}, s{S_T1}, s{S_T2}
        s_lshl_b32 s{S_LM0}, s{S_W}, 10
        s_add_u32 s{S_LM0}, s{S_LM0}, {L_W}
        s_mov_b32 m0, s{S_LM0}
        s_mov_b32 s{R_WQ+2}, {159*8192+128}
        s_mov_b32 s{R_WQ+3}, 0x20000
        s_mov_b32 s{R_K+2}, 0x40000
        s_mov_b32 s{R_K+3}, 0x20000
        s_mov_b32 s{S_A0}, 0x80000
        s_mov_b32 s{S_A1}, 0x100000
        s_waitcnt lgkmcnt(0)
        s_load_dword s{S_EP}, s[{S_WS}:{S_WS+1}], {WS_EPOCH}
        s_add_u32 s{R_WQ}, s{S_WQ}, s{S_T1}
        s_addc_u32 s{R_WQ+1}, s{S_WQ+1}, 0
        s_add_u32 s{R_K}, s{S_K}, s{S_T3}
        s_addc_u32 s{R_K+1}, s{S_K+1}, 0
        """)
        XR = V_Q
        self.issue("x0", f"global_load_dwordx4 {vr(XR,4)}, v{V_ACC}, s[{S_X}:{S_X+1}] nt")
        self.issue("x1", f"global_load_dword v{XR+4}, v{V_ACC+1}, s[{S_X}:{S_X+1}] offset:1024 nt")
        A(f"""
        s_mov_b32 s{R_WS}, s{S_WS}
        s_mov_b32 s{R_WS+1}, s{S_WS+1}
        s_mov_b32 s{R_WS+2}, {WS_SIZE}
        s_mov_b32 s{R_WS+3}, 0x20000
        s_lshl_b32 s{S_GRP}, s{S_T0}, 15
        s_add_u32 s{S_GRP}, s{S_GRP}, {WS_GRP}
        s_lshr_b32 s{S_IDX}, s2, 3
        s_cmp_eq_u32 s{S_W}, 0
        s_cbranch_scc0 L_noclr
        s_mul_i32 s{S_T1}, s{S_IDX}, 768
        s_add_u32 s{S_T1}, s{S_T1}, s{S_GRP}
        v_mov_b32 v{V_SC}, -1
        v_mov_b32 v{V_SC+1}, -1
        v_mov_b32 v{V_SC+2}, -1
        v_mov_b32 v{V_SC+3}, -1
        s_mov_b32 exec_hi, 0xffff
        buffer_store_dwordx4 {vr(V_SC,4)}, v{V_L16}, {srd(R_WS)}, s{S_T1} offen sc1
        s_mov_b64 exec, -1
        L_noclr:
        """)
        self.issue("wq0", f"buffer_load_dwordx4 v{V_ACC+2}, {srd(R_WQ)}, 0 offen nt lds")
        A(f"s_add_u32 m0, s{S_LM0}, 8192")
        self.issue("wq1", f"buffer_load_dwordx4 v{V_ACC+2}, {srd(R_WQ)}, s{S_A0} offen nt lds")
        A(f"s_add_u32 m0, s{S_LM0}, 16384")
        self.issue("wq2", f"buffer_load_dwordx4 v{V_ACC+2}, {srd(R_WQ)}, s{S_A1} offen nt lds")
        def ldK(t): self.issue(f"K{t}", f"buffer_load_dwordx4 {vr(slot(t),4)}, v{V_K}, {srd(R_K)}, {'s%d'%(S_C4K+(t>>2)) if t>=4 else '0'} offen offset:{(t&3)*256} nt")
        def ldV(t): self.issue(f"V{t}", f"buffer_load_dwordx4 {vr(slot(t),4)}, v{V_V}, {srd(R_V)}, s{S_C4K+(t>>2)} offen offset:{(t&3)*1024} nt")
        for t in range(self.k0): ldK(t)
        A(f"""
        s_add_u32 s{R_V}, s{S_V}, s{S_T3}
        s_addc_u32 s{R_V+1}, s{S_V+1}, 0
        s_mov_b32 s{R_V+2}, 0x40000
        s_mov_b32 s{R_V+3}, 0x20000
        s_add_u32 s{S_T1}, s{S_GRP}, {G_A}
        s_add_u32 s{R_ACT}, s{S_WS}, s{S_T1}
        s_addc_u32 s{R_ACT+1}, s{S_WS+1}, 0
        s_mov_b32 s{R_ACT+2}, {7*512}
        s_cmp_eq_u32 s{S_T0}, 7
        s_cselect_b32 s{R_ACT+2}, {5*512}, s{R_ACT+2}
        s_mov_b32 s{R_ACT+3}, 0x20000
        s_mov_b32 s{S_ROLE}, 3
        s_cmp_lt_u32 s{S_IDX}, 20
        s_cbranch_scc1 L_roleok
        s_mov_b32 s{S_ROLE}, 2
        s_sub_u32 s{S_IDX}, s{S_IDX}, 27
        s_cbranch_scc0 L_roleok
        s_add_u32 s{S_IDX}, s{S_IDX}, 7
        s_mul_i32 s{S_T1}, s{S_T0}, 7
        s_add_u32 s{S_T1}, s{S_T1}, s{S_IDX}
        s_cmp_lt_u32 s{S_T1}, 54
        s_cselect_b32 s{S_ROLE}, 1, 0
        L_roleok:
        s_mov_b32 s{S_SPIN}, 0x100000
        """)
        for i in range(8): A(f"s_mov_b32 s{S_C4K+i}, {i*4096}")
        if self.D2:
            A(f"s_getreg_b32 s80, hwreg(HW_REG_XCC_ID)\ns_and_b32 s80, s80, 1\ns_xor_b32 s80, s80, 1\ns_mov_b32 s81, 0")
            if self.thr == "role": A(f"s_cmp_eq_u32 s{S_ROLE}, 3\ns_cselect_b32 s80, 1, 0")
            if self.thr == "both": A(f"s_cmp_eq_u32 s{S_ROLE}, 3\ns_cselect_b32 s80, s80, 0")
        A(f"""
        s_mov_b32 s{R_F+3}, 0x20000
        s_mov_b32 s{S_FCUR}, 0
        s_cmp_eq_u32 s{S_ROLE}, 3
        s_cbranch_scc1 L_rwo
        s_mov_b32 s{R_F+2}, {640*3456}
        s_cmp_eq_u32 s{S_ROLE}, 2
        s_cbranch_scc1 L_rdown
        s_mul_i32 s{S_LM0}, s{S_W}, 10240
        s_add_u32 s{S_LM0}, s{S_LM0}, {L_W}
        s_cmp_lt_u32 s{S_W}, 4
        s_cselect_b32 s{R_F}, s{S_WG}, s{S_WU}
        s_cselect_b32 s{R_F+1}, s{S_WG+1}, s{S_WU+1}
        s_mul_i32 s{S_T2}, s{S_T0}, 7
        s_add_u32 s{S_T2}, s{S_T2}, s{S_IDX}
        s_and_b32 s{S_T1}, s{S_W}, 3
        s_mul_i32 s{S_T1}, s{S_T1}, {160*3456}
        s_lshl_b32 s{S_T2}, s{S_T2}, 6
        s_add_u32 s{S_T1}, s{S_T1}, s{S_T2}
        s_mov_b32 s{S_FSTEP}, {16*3456}
        v_lshrrev_b32 v{V_F}, 2, v{V_L}
        v_mul_u32_u24 v{V_F}, 3456, v{V_F}
        v_and_b32 v7, 3, v0
        s_branch L_rdone
        L_rdown:
        s_mov_b32 s{R_F}, s{S_WD}
        s_mov_b32 s{R_F+1}, s{S_WD+1}
        s_mul_i32 s{S_T1}, s{S_T0}, {224*1280}
        s_lshl_b32 s{S_T2}, s{S_IDX}, 8
        s_add_u32 s{S_T1}, s{S_T1}, s{S_T2}
        s_mov_b32 s{S_FSTEP}, {32*1280}
        s_lshl_b32 s{S_LM0}, s{S_W}, 13
        s_add_u32 s{S_LM0}, s{S_LM0}, {L_W}
        v_mul_u32_u24 v{V_F}, 1280, v{V_ACC+3}
        v_lshrrev_b32 v7, 4, v{V_ACC+4}
        s_branch L_rdone
        L_rwo:
        s_mov_b32 s{R_F}, s{S_WO}
        s_mov_b32 s{R_F+1}, s{S_WO+1}
        s_mov_b32 s{R_F+2}, {4096*1280}
        s_cmp_ge_u32 s{S_IDX}, 10
        s_cselect_b32 s{S_T1}, {256*1280-1280}, 0
        s_mul_i32 s{S_T2}, s{S_T0}, {512*1280}
        s_add_u32 s{S_T1}, s{S_T1}, s{S_T2}
        s_lshl_b32 s{S_T2}, s{S_IDX}, 7
        s_add_u32 s{S_T1}, s{S_T1}, s{S_T2}
        s_mul_i32 s{S_T2}, s{S_W}, {32*1280}
        s_add_u32 s{S_T1}, s{S_T1}, s{S_T2}
        s_mov_b32 s{S_FSTEP}, {8*1280}
        s_lshl_b32 s{S_LM0}, s{S_W}, 12
        s_add_u32 s{S_LM0}, s{S_LM0}, {L_W}
        v_lshrrev_b32 v{V_F}, 3, v{V_L}
        v_mul_u32_u24 v{V_F}, 1280, v{V_F}
        v_bfe_u32 v7, v0, 4, 1
        v_lshlrev_b32 v7, 1, v7
        v_xor_b32 v7, v7, v5
        L_rdone:
        v_lshl_add_u32 v{V_F}, v7, 4, v{V_F}
        v_add_u32 v{V_F}, s{S_T1}, v{V_F}
        s_mov_b32 s{S_MCUR}, s{S_LM0}
        v_and_b32 v7, 1, v0
        v_lshlrev_b32 v7, 4, v7
        v_mov_b32 v{V_ACC+4}, 0xffff
        v_lshlrev_b32 v7, v7, v{V_ACC+4}
        v_lshrrev_b32 v{V_ACC+4}, 1, v{V_C}
        """)
        for r in range(4): A(f"v_cmp_eq_u32 vcc, {r}, v{V_ACC+4}\nv_cndmask_b32 v{V_MASK+r}, 0, v7, vcc")
        self.wait("x1")
        self.stamp("xgot")
        F0, T0 = V_X, V_X + 10
        n0 = len(A.L)
        self.layernorm(XR, F0, T0, XR + 8)
        XO = XR + 8
        A(f"""
        v_mul_u32_u24 v7, {XS}, v6
        v_add_u32 v{V_ACC}, v7, v{V_L16}
        v_lshl_add_u32 v{V_ACC+1}, v{V_L}, 2, v7
        ds_write_b128 v{V_ACC}, {vr(XO,4)} offset:{L_XN}
        ds_write_b32 v{V_ACC+1}, v{XO+4} offset:{L_XN+1024}
        v_bfe_u32 v{V_ACC}, v0, 2, 2
        v_lshlrev_b32 v{V_ACC}, 7, v{V_ACC}
        v_lshl_add_u32 v{V_ACC}, v{V_G}, 10, v{V_ACC}
        v_and_b32 v{V_ACC+1}, 3, v0
        v_lshl_add_u32 v{V_ACC}, v{V_ACC+1}, 3, v{V_ACC}
        v_lshl_add_u32 v{V_ACC}, v6, 5, v{V_ACC}
        v_and_b32 v{V_ACC+2}, 7, v0
        v_mul_u32_u24 v{V_ACC+1}, {XS}, v{V_ACC+2}
        v_lshl_add_u32 v{V_ACC+1}, v{V_G}, 4, v{V_ACC+1}
        s_and_b32 s{S_T2}, s{S_B}, 3
        s_mul_i32 s{S_T1}, s{S_T2}, 320
        v_add_u32 v{V_ACC+1}, s{S_T1}, v{V_ACC+1}
        v_lshlrev_b32 v{V_ACC+2}, 11, v{V_ACC+2}
        v_lshl_add_u32 v{V_ACC+2}, v{V_ACC+3}, 4, v{V_ACC+2}
        s_lshl_b32 s{S_T1}, s{S_H}, 14
        s_lshl_b32 s{S_T2}, s{S_T2}, 9
        s_add_u32 s{S_T1}, s{S_T1}, s{S_T2}
        s_lshr_b32 s{S_T2}, s{S_B}, 2
        s_lshl_b32 s{S_T2}, s{S_T2}, 8
        s_add_u32 s{S_T1}, s{S_T1}, s{S_T2}
        s_add_u32 s{S_T1}, s{S_T1}, {WS_QPART}
        """)
        body = A.L[n0:]; del A.L[n0:]
        kn = self.k0
        step = len(body) // (self.npre + 1) if self.npre else 10**9
        for i, line in enumerate(body):
            if i and i % step == 0 and kn < self.k0 + self.npre: ldK(kn); kn += 1
            A(line)
        self.wait("wq2")
        A("s_waitcnt lgkmcnt(0)\ns_barrier")
        self.stamp("bar1")
        A(f"s_add_u32 s{S_EP}, s{S_EP}, 1\ns_and_b32 s{S_T4}, s{S_EP}, 15")
        A(f"""
        s_getreg_b32 s{S_LOC}, hwreg(HW_REG_XCC_ID, 0, 4)
        s_lshl_b32 s{S_T2}, s{S_EP}, 4
        s_or_b32 s{S_LOC}, s{S_LOC}, s{S_T2}
        s_cmp_eq_u32 s{S_W}, 7
        s_cbranch_scc0 L_noxct
        s_and_b32 s{S_T2}, s2, 7
        s_lshl_b32 s{S_T2}, s{S_T2}, 5
        s_lshr_b32 s{S_T3}, s2, 3
        s_add_u32 s{S_T2}, s{S_T2}, s{S_T3}
        s_lshl_b32 s{S_T2}, s{S_T2}, 2
        s_add_u32 s{S_T2}, s{S_T2}, {WS_XCT}
        v_mov_b32 v5, s{S_T2}
        v_mov_b32 v7, s{S_LOC}
        s_mov_b64 exec, 1
        global_store_dword v5, v7, s[{S_WS}:{S_WS+1}] sc1
        s_mov_b64 exec, -1
        L_noxct:
        """)
        A(f"s_cmp_lt_u32 s{S_W}, 4\ns_cbranch_scc0 L_noq")
        for s in range(5):
            for hf in range(2): A(f"ds_read_b64_tr_b16 {vr(F0+4*s+2*hf,2)}, v{V_ACC} offset:{L_W+4096*s+512*hf}")
            A(f"ds_read_b128 {vr(F0+20+4*s,4)}, v{V_ACC+1} offset:{L_XN+64*s}")
        for s in range(5):
            A(f"s_waitcnt lgkmcnt({12-3*s})")
            A(f"v_mfma_f32_16x16x32_bf16 {vr(V_ACC+4,4)}, {vr(F0+4*s,4)}, {vr(F0+20+4*s,4)}, {vr(V_ACC+4,4) if s else '0'}")
        for i in range(4): A(f"v_and_or_b32 v{V_ACC+4+i}, v{V_ACC+4+i}, -16, s{S_T4}")
        A("s_mov_b32 exec_lo, 0x00ff00ff\ns_mov_b32 exec_hi, 0x00ff00ff")
        A(f"buffer_store_dwordx4 {vr(V_ACC+4,4)}, v{V_ACC+2}, {srd(R_WS)}, s{S_T1} offen {self.qflags}")
        A("s_mov_b64 exec, -1\nL_noq:")
        self.stamp("qpub")
        self.setthr()
        seq = [("K", t) for t in range(kn, 32)]
        fpos = [self.f0 + self.fstep * i for i in range(self.nf_in)]
        for t in range(32):
            if t in fpos: seq.append(("F", t))
            if t == 12: seq.append(("T", 0))
            if t == 7: seq.append(("P", 0))
            seq.append(("V", t))
        self.pvdone = -1; self.smax_done = False
        pos = 0
        def ldFx(t):
            assert self.smax_done
            A(f"s_cmp_eq_u32 s{S_ROLE}, 3\ns_cbranch_scc1 L_nof{t}")
            self.ldF()
            A(f"L_nof{t}:")
        def ldT(_):
            self.tail_setup()
        def nxt(D=0):
            nonlocal pos
            k, t = seq[pos]; pos += 1
            if k in "KVP": self.throttle(D)
            {"K": ldK, "V": ldV, "F": ldFx, "T": ldT, "P": self.xct_load}[k](t)
        def until(item, D=0):
            while f"{item[0]}{item[1]}" not in self.vm: nxt(D)
        for i in range(self.freeq): nxt(min(1 + i, self.x2))
        until(("K", self.qpos), self.x2)
        self.setthr()
        QA = V_X
        A(f"""
        v_lshlrev_b32 v{QA}, 2, v0
        s_lshl_b32 s{S_T1}, s{S_H}, 14
        s_lshl_b32 s{S_T2}, s{S_B}, 11
        s_add_u32 s{S_T1}, s{S_T1}, s{S_T2}
        s_add_u32 s{S_T1}, s{S_T1}, {WS_QPART}
        v_bfe_u32 v{QA+2}, v0, 2, 2
        v_lshlrev_b32 v{QA+2}, 9, v{QA+2}
        v_lshl_add_u32 v{QA+2}, v{V_G}, 7, v{QA+2}
        v_and_b32 v7, 3, v0
        v_lshl_add_u32 v{QA+2}, v7, 5, v{QA+2}
        """)
        qtxt = f"buffer_load_dword v{QA+4}, v{QA}, {srd(R_WS)}, s{S_T1} offen {self.qflags}"
        self.issue("qg", qtxt)
        for _ in range(self.D - 1): nxt(self.x1)
        nxt(self.x1)
        self.wait("qg")
        A("L_qchk:")
        A(f"v_xor_b32 v{QA+4}, s{S_T4}, v{QA+4}\nv_and_b32 v6, 15, v{QA+4}\nv_cmp_ne_u32 vcc, 0, v6")
        A("s_cbranch_vccz L_qok")
        A(qtxt + "\ns_waitcnt vmcnt(0)")
        self.spin_guard("L_qchk")
        A("L_qok:")
        self.setthr()
        self.stamp("qgot")
        A(f"ds_write_b32 v{QA}, v{QA+4} offset:{L_QP}")
        until(("K", self.qbar - 2))
        until(("K", self.qbar), self.x2)
        A("s_waitcnt lgkmcnt(0)\ns_barrier")
        self.stamp("qbar")
        for hf in range(2): A(f"ds_read_b128 {vr(V_ACC+4*hf,4)}, v{QA+2} offset:{L_QP+hf*16}")
        nxt(self.x1)
        A("s_waitcnt lgkmcnt(0)")
        for m in ("row_ror:8", "row_ror:4"):
            for i in range(8): A(f"v_add_f32_dpp v{V_ACC+i}, v{V_ACC+i}, v{V_ACC+i} {m} {DPPF}")
        for i in range(4): A(f"v_cvt_pk_bf16_f32 v{V_ACC+i}, v{V_ACC+2*i}, v{V_ACC+2*i+1}")
        nxt(self.x1)
        for u in range(4):
            A(f"s_mov_b32 s{S_M}, {0x000F000F << (4*u)}\ns_mov_b32 s{S_M+1}, {0x000F000F << (4*u)}")
            for r in range(4): A(f"v_cndmask_b32 v{V_Q+4*u+r}, 0, v{V_ACC+r}, s[{S_M}:{S_M+1}]")
        def extract(T):
            a = V_ACC + 4 * (T & 1)
            A(f"v_mov_b32_dpp v{V_SC+T}, v{a} quad_perm:[0,0,0,0] {DPPF}")
            for q in range(1, 4): A(f"v_add_f32_dpp v{V_SC+T}, v{a+q}, v{V_SC+T} quad_perm:[{q},{q},{q},{q}] {DPPF}")
        for T in range(8):
            a = V_ACC + 4 * (T & 1)
            until(("K", 4*T+3))
            while len(self.vm) - 1 - self.vm.index(f"K{4*T+3}") < self.D - 1:
                k, t = seq[pos]
                if k == "V": assert t < 4 * T, (t, T)
                nxt()
            self.wait(f"K{4*T+3}")
            for u in range(4):
                A(f"v_mfma_f32_16x16x32_bf16 {vr(a,4)}, {vr(V_Q+4*u,4)}, {vr(slot(4*T+u),4)}, {vr(a,4) if u else '0'}")
            if T: extract(T - 1)
        nxt()
        extract(7)
        t0 = V_ACC
        for a in range(4):
            x, y = V_SC + 2*a, V_SC + 2*a + 1
            self.rnd_pair(x, y, t0 + a)
            A(f"v_mul_f32 v{x}, 0x3db504f3, v{x}\nv_mul_f32 v{y}, 0x3db504f3, v{y}")
            self.rnd_pair(x, y, t0 + a)
        m, tm, l = V_Q, V_Q + 2, V_Q + 1
        A(f"v_max3_f32 v{m}, v{V_SC}, v{V_SC+1}, v{V_SC+2}\nv_max3_f32 v{tm}, v{V_SC+3}, v{V_SC+4}, v{V_SC+5}")
        A(f"v_max3_f32 v{m}, v{m}, v{V_SC+6}, v{V_SC+7}\nv_max_f32 v{m}, v{m}, v{tm}")
        self.allred("v_max_f32", m, tm)
        for i in range(8): A(f"v_sub_f32 v{t0+i}, v{V_SC+i}, v{m}")
        for i in range(8): A(f"v_mul_f32 v{t0+i}, {LOG2E}, v{t0+i}")
        for i in range(8): A(f"v_exp_f32 v{t0+i}, v{t0+i}")
        for i in range(4): A(f"v_add_f32 v{t0+i}, v{t0+i}, v{t0+4+i}")
        A(f"v_add_f32 v{t0}, v{t0}, v{t0+2}\nv_add_f32 v{t0+1}, v{t0+1}, v{t0+3}\nv_add_f32 v{l}, v{t0}, v{t0+1}")
        self.allred("v_add_f32", l, tm)
        A(f"""
        s_lshl_b32 s{S_T1}, s{S_W}, 3
        v_mov_b32 v7, s{S_T1}
        ds_write_b64 v7, {vr(m,2)} offset:{L_SM}
        v_and_b32 v7, 7, v0
        v_lshlrev_b32 v7, 3, v7
        """)
        for i in range(self.vextra):
            if seq[pos][0] == "V": nxt(self.x2)
        A(f"s_waitcnt lgkmcnt(0)\ns_barrier\nds_read_b64 {vr(m,2)}, v7 offset:{L_SM}")
        self.stamp("smax"); self.smax_done = True
        nxt(self.x1)
        A("s_waitcnt lgkmcnt(0)")
        A(f"v_max_f32_dpp v{tm}, v{m}, v{m} quad_perm:[1,0,3,2] {DPPF}")
        for md in ("quad_perm:[2,3,0,1]", "row_half_mirror"): A(f"v_max_f32_dpp v{tm}, v{tm}, v{tm} {md} {DPPF}")
        A(f"v_sub_f32 v{m}, v{m}, v{tm}\nv_mul_f32 v{m}, {LOG2E}, v{m}\nv_exp_f32 v{m}, v{m}")
        for i in range(8): A(f"v_sub_f32 v{V_SC+i}, v{V_SC+i}, v{tm}")
        A(f"v_mul_f32 v{l}, v{l}, v{m}")
        for i in range(8): A(f"v_mul_f32 v{V_SC+i}, {LOG2E}, v{V_SC+i}")
        for md in ("quad_perm:[1,0,3,2]", "quad_perm:[2,3,0,1]", "row_half_mirror"):
            A(f"v_add_f32_dpp v{l}, v{l}, v{l} {md} {DPPF}")
        for i in range(8): A(f"v_exp_f32 v{V_SC+i}, v{V_SC+i}")
        A(f"v_rcp_f32 v{l}, v{l}")
        nxt(self.x1)
        for i in range(8): A(f"v_mul_f32 v{V_SC+i}, v{V_SC+i}, v{l}")
        for i in range(8): A(f"v_cvt_pk_bf16_f32 v{V_SC+i}, v{V_SC+i}, v{V_SC+i}")
        oacc = V_ACC
        def mkA(t):
            a = V_Q + 4 * (t & 1)
            for r in range(4): A(f"v_and_b32_dpp v{a+r}, v{V_SC+(t>>2)}, v{V_MASK+r} row_newbcast:{4*(t&3)} {DPPF}")
        def pvstep(t):
            if t < 31: mkA(t + 1)
            self.wait(f"V{t}")
            A(f"v_mfma_f32_16x16x32_bf16 {vr(oacc,4)}, {vr(V_Q+4*(t&1),4)}, {vr(slot(t),4)}, {vr(oacc,4) if t else '0'}")
        mkA(0)
        t = 0
        split = 31 - self.wo_lead
        while True:
            until(("V", t))
            while pos < len(seq) and len(self.vm) - 1 - self.vm.index(f"V{t}") < self.D - 1 and f"V{split}" not in self.vm: nxt()
            if f"V{split}" in self.vm: break
            pvstep(t); t += 1
        save = (list(self.vm), self.done, pos, set(self.stamped))
        A(f"s_cmp_eq_u32 s{S_ROLE}, 3\ns_cbranch_scc1 L_pvwo")
        for variant in (0, 1):
            self.vm, self.done, pos, self.stamped = list(save[0]), save[1], save[2], set(save[3])
            if variant: A("L_pvwo:")
            nw = 0
            for tt in range(t, 32):
                if variant and nw < 4 and tt > t: self.ldF(f"W{nw}"); nw += 1
                if pos < len(seq) and tt > t: nxt(40)
                pvstep(tt)
            assert pos == len(seq)
            if variant:
                while nw < 4: self.ldF(f"W{nw}"); nw += 1
            else: A("s_branch L_pvdone")
        A("L_pvdone:")
        self.stamp("pv")
        self.tail()
        if self.stamps:
            self.stamp("end")
            A(f"""
            s_waitcnt vmcnt(0) lgkmcnt(0)
            s_add_u32 s{S_WS}, s{S_WS}, {WS_STAMP}
            s_addc_u32 s{S_WS+1}, s{S_WS+1}, 0
            s_lshl_b32 s{S_T1}, s2, 3
            s_add_u32 s{S_T1}, s{S_T1}, s{S_W}
            s_lshl_b32 s{S_T1}, s{S_T1}, 6
            v_mov_b32 v6, s{S_T1}
            """)
            for i in range(14): A(f"v_mov_b32 v{slot(0)+i}, s{S_ST+i}")
            A(f"v_mov_b32 v{slot(0)+14}, s{S_ROLE}\nv_mov_b32 v{slot(0)+15}, 0x80000000\ns_mov_b64 exec, 1")
            for i in range(4): A(f"global_store_dwordx4 v6, {vr(slot(i),4)}, s[{S_WS}:{S_WS+1}] offset:{16*i}")
        A("L_end:\ns_endpgm")
        A('.section .rodata,"a"\n.p2align 6')
        A(f".amdhsa_kernel {NAME}_kernel")
        A("""
        .amdhsa_next_free_vgpr 256
        .amdhsa_next_free_sgpr 102
        .amdhsa_accum_offset 256
        .amdhsa_group_segment_fixed_size 0
        .amdhsa_kernarg_size 104
        .amdhsa_user_sgpr_count 2
        .amdhsa_user_sgpr_kernarg_segment_ptr 1
        .amdhsa_system_sgpr_workgroup_id_x 1
        .amdhsa_float_denorm_mode_32 3
        .end_amdhsa_kernel
        """)
        return A.finish()

    OW, OR, OS = V_X, V_X+1, V_X+2
    A0, A1, A2, A3, A4, A5, A6, A7 = [V_X+3+i for i in range(8)]
    XP = V_X + 11; XC = V_X + 12; L4 = V_X + 13; WR = V_X + 16
    WF = V_X + 24

    def lstore(self, txt):
        self.uid += 1
        self.A(f"s_cbranch_scc1 L_ls{self.uid}\n{txt} sc1\ns_branch L_le{self.uid}\nL_ls{self.uid}:\n{txt}\nL_le{self.uid}:")
    def setloc(self):
        self.A(f"s_cmp_eq_u32 s{S_LOC}, 1")

    def xct_load(self, _):
        A = self.A; s = self
        A(f"""
        s_and_b32 s{S_T1}, s2, 7
        s_lshl_b32 s{S_T1}, s{S_T1}, 7
        s_add_u32 s84, s{S_T1}, {WS_XCT}
        v_and_b32 v{s.L4}, 31, v0
        v_lshlrev_b32 v{s.L4}, 2, v{s.L4}
        """)
        self.issue("xct", f"buffer_load_dword v{s.XC}, v{s.L4}, {srd(R_WS)}, s84 offen sc1")

    def tail_setup(self):
        A = self.A; s = self
        self.wait("xct")
        A(f"""
        L_xchk:
        v_xor_b32 v6, s{S_LOC}, v{s.XC}
        v_cmp_lt_u32 vcc, 15, v6
        s_cbranch_vccz L_xok
        buffer_load_dword v{s.XC}, v{s.L4}, {srd(R_WS)}, s84 offen sc1
        s_waitcnt vmcnt(0)
        """)
        self.spin_guard("L_xchk", 2)
        A(f"""
        L_xok:
        v_cmp_ne_u32 vcc, 0, v6
        v_lshlrev_b32 v{s.L4}, 2, v{V_L}
        v_lshlrev_b32 v{s.OW}, 5, v{V_C}
        v_lshl_add_u32 v{s.OW}, v{V_G}, 4, v{s.OW}
        s_cmp_eq_u64 vcc, 0
        s_cselect_b32 s{S_LOC}, {1 if self.local else 0}, 0
        s_lshl_b32 s{S_T1}, s{S_W}, 9
        v_add_u32 v{s.OW}, s{S_T1}, v{s.OW}
        v_and_b32 v6, 31, v0
        v_bfe_u32 v7, v0, 5, 1
        v_lshlrev_b32 v{s.OR}, 4, v6
        v_lshl_add_u32 v{s.OR}, v7, 11, v{s.OR}
        v_lshlrev_b32 v{s.OS}, 3, v6
        v_lshl_add_u32 v{s.OS}, v7, 2, v{s.OS}
        s_and_b32 s{S_T1}, s{S_H}, 3
        s_lshl_b32 s{S_T1}, s{S_T1}, 3
        s_add_u32 s{S_T1}, s{S_T1}, s{S_B}
        s_lshl_b32 s{S_T1}, s{S_T1}, 8
        v_add_u32 v{s.OS}, s{S_T1}, v{s.OS}
        s_mul_i32 s{S_A3}, s{S_W}, 1280
        s_add_u32 s{S_A3}, s{S_A3}, s{S_GRP}
        s_add_u32 s{S_A3}, s{S_A3}, {G_H}
        v_and_b32 v5, 7, v0
        v_bfe_u32 v6, v0, 3, 1
        s_and_b32 s{S_T0}, s2, 7
        s_and_b32 s{S_T1}, s{S_W}, 3
        s_cmp_eq_u32 s{S_ROLE}, 3
        s_cbranch_scc0 L_tsffn
        """)
        A(f"""
        v_lshlrev_b32 v{s.A0}, 8, v5
        v_lshl_add_u32 v{s.A0}, v6, 6, v{s.A0}
        v_lshl_add_u32 v{s.A0}, v{V_G}, 4, v{s.A0}
        s_cmp_ge_u32 s{S_IDX}, 10
        s_cselect_b32 s{S_A0}, 4096, 0
        s_add_u32 s{S_A0}, s{S_A0}, s{S_GRP}
        v_bfe_u32 v{s.A1}, v0, 3, 2
        v_xor_b32 v{s.A1}, s{S_T1}, v{s.A1}
        v_lshlrev_b32 v{s.A1}, 5, v{s.A1}
        v_and_b32 v{s.A2}, 3, v0
        v_lshl_add_u32 v{s.A1}, v{s.A2}, 3, v{s.A1}
        v_bfe_u32 v{s.A4}, v0, 2, 2
        v_lshl_add_u32 v{s.A1}, v{s.A4}, 7, v{s.A1}
        v_lshl_add_u32 v{s.A1}, v{V_G}, 10, v{s.A1}
        v_add_u32 v{s.A1}, {L_W}, v{s.A1}
        v_lshlrev_b32 v{s.A3}, 6, v5
        v_lshl_add_u32 v{s.A3}, v{V_G}, 4, v{s.A3}
        s_mul_i32 s{S_A1}, s{S_T0}, {2*20480}
        s_lshl_b32 s{S_T2}, s{S_IDX}, 11
        s_add_u32 s{S_A1}, s{S_A1}, s{S_T2}
        s_lshl_b32 s{S_T2}, s{S_T1}, 9
        s_add_u32 s{S_A1}, s{S_A1}, s{S_T2}
        s_add_u32 s{S_A1}, s{S_A1}, {WS_SLAB}
        v_lshl_add_u32 v{s.A4}, v7, 2, v{s.A4}
        v_mul_u32_u24 v{s.A4}, 20480, v{s.A4}
        v_bfe_u32 v5, v0, 4, 1
        v_lshl_add_u32 v{s.A4}, v5, 6, v{s.A4}
        v_lshl_add_u32 v{s.A4}, v{s.A2}, 4, v{s.A4}
        s_lshl_b32 s{S_T2}, s{S_IDX}, 10
        s_lshl_b32 s{S_T3}, s{S_W}, 7
        s_add_u32 s{S_T2}, s{S_T2}, s{S_T3}
        v_add_u32 v{s.A4}, s{S_T2}, v{s.A4}
        s_lshl_b32 s{S_T2}, s{S_T1}, 1
        v_add_u32 v5, s{S_T2}, v5
        v_lshlrev_b32 v{s.A6}, 4, v5
        v_mul_u32_u24 v{s.A5}, 1280, v5
        v_lshl_add_u32 v{s.A5}, v{s.A2}, 3, v{s.A5}
        v_lshl_add_u32 v{s.A5}, v7, 2, v{s.A5}
        s_lshl_b32 s{S_T2}, s{S_IDX}, 6
        s_lshr_b32 s{S_T3}, s{S_W}, 2
        s_lshl_b32 s{S_T3}, s{S_T3}, 5
        s_add_u32 s{S_T2}, s{S_T2}, s{S_T3}
        v_add_u32 v{s.A5}, s{S_T2}, v{s.A5}
        s_add_u32 s{S_A2}, s{S_GRP}, {G_H}
        s_mov_b32 s84, {WS_SLAB}
        s_mov_b32 s85, {WS_SLAB + 8*20480}
        s_mov_b32 s86, {WS_YP}
        global_load_dword v{s.XP}, v{s.A5}, s[{S_X}:{S_X+1}] nt
        s_and_b32 s{S_T2}, s{S_IDX}, 7
        s_cmp_eq_u32 s{S_T2}, s{S_T0}
        s_cselect_b32 s{S_EJOB}, 1, 0
        s_cbranch_scc0 L_tsdone
        global_load_dwordx4 {vr(s.WR,4)}, v{V_L16}, s[{S_WR}:{S_WR+1}] nt
        global_load_dword v{s.WR+4}, v{s.L4}, s[{S_WR}:{S_WR+1}] offset:1024 nt
        global_load_dword v{s.A7}, v{s.A5}, s[{S_OUT}:{S_OUT+1}] nt
        s_branch L_tsdone
        L_tsffn:
        s_cmp_eq_u32 s{S_ROLE}, 2
        s_cbranch_scc1 L_tsdown
        """)
        A(f"""
        s_mul_i32 s{S_T2}, s{S_W}, {XS}
        v_add_u32 v{s.A2}, s{S_T2}, v{V_L16}
        v_add_u32 v{s.A3}, s{S_T2}, v{s.L4}
        v_lshlrev_b32 v{s.A6}, 6, v5
        v_lshl_add_u32 v{s.A6}, v{V_G}, 4, v{s.A6}
        s_mul_i32 s{S_T2}, s{S_W}, 544
        v_add_u32 v{s.A5}, s{S_T2}, v{s.A6}
        v_mul_u32_u24 v6, {4*544}, v6
        v_add_u32 v{s.A6}, v{s.A6}, v6
        v_mul_u32_u24 v{s.A4}, {XS}, v5
        v_lshl_add_u32 v{s.A4}, v{V_G}, 4, v{s.A4}
        s_mul_i32 s{S_T2}, s{S_T1}, 320
        v_add_u32 v{s.A4}, s{S_T2}, v{s.A4}
        s_mul_i32 s{S_T2}, s{S_W}, {8*544}
        v_add_u32 v{s.A6}, s{S_T2}, v{s.A6}
        v_bfe_u32 v{s.A7}, v0, 2, 2
        v_lshlrev_b32 v{s.A7}, 6, v{s.A7}
        v_and_b32 v6, 3, v0
        v_lshl_add_u32 v{s.A7}, v6, 3, v{s.A7}
        v_lshl_add_u32 v{s.A7}, v{V_G}, 9, v{s.A7}
        v_add_u32 v{s.A7}, s{S_LM0}, v{s.A7}
        v_lshrrev_b32 v6, 1, v{V_G}
        v_lshlrev_b32 v{s.XP}, 7, v6
        v_lshl_add_u32 v{s.XP}, v5, 4, v{s.XP}
        v_and_b32 v6, 1, v{V_G}
        v_lshl_add_u32 v{s.XP}, v6, 3, v{s.XP}
        s_lshl_b32 s{S_A2}, s{S_IDX}, 9
        s_lshl_b32 s{S_T2}, s{S_W}, 8
        s_add_u32 s{S_A2}, s{S_A2}, s{S_T2}
        s_branch L_tsdone
        L_tsdown:
        v_lshlrev_b32 v{s.A0}, 4, v5
        v_lshl_add_u32 v{s.A0}, v6, 9, v{s.A0}
        v_lshl_add_u32 v{s.A0}, v{V_G}, 7, v{s.A0}
        s_lshl_b32 s{S_T2}, s{S_T1}, 2
        v_bfe_u32 v{s.A1}, v0, 1, 1
        v_add_u32 v{s.A1}, s{S_T2}, v{s.A1}
        v_bfe_u32 v{s.A2}, v0, 2, 2
        v_lshlrev_b32 v{s.A3}, 1, v{s.A2}
        v_xor_b32 v{s.A1}, v{s.A1}, v{s.A3}
        v_lshlrev_b32 v{s.A1}, 4, v{s.A1}
        v_lshl_add_u32 v{s.A1}, v{s.A2}, 8, v{s.A1}
        v_and_b32 v{s.A2}, 1, v0
        v_lshl_add_u32 v{s.A1}, v{s.A2}, 3, v{s.A1}
        v_lshl_add_u32 v{s.A1}, v{V_G}, 14, v{s.A1}
        v_add_u32 v{s.A1}, {L_W}, v{s.A1}
        v_xor_b32 v{s.A2}, 32, v{s.A1}
        v_xor_b32 v{s.A6}, 128, v{s.A1}
        v_xor_b32 v{s.A7}, 160, v{s.A1}
        v_lshlrev_b32 v{s.A3}, 6, v{V_C}
        v_lshl_add_u32 v{s.A3}, v{V_G}, 4, v{s.A3}
        s_mul_i32 s{S_A1}, s{S_T0}, 20480
        s_lshl_b32 s{S_T2}, s{S_IDX}, 12
        s_add_u32 s{S_A1}, s{S_A1}, s{S_T2}
        s_lshl_b32 s{S_T2}, s{S_T1}, 10
        s_add_u32 s{S_A1}, s{S_A1}, s{S_T2}
        s_add_u32 s{S_A1}, s{S_A1}, {WS_YP}
        L_tsdone:
        """)
        self.setthr()

    def red_lanes(self, P):
        A = self.A
        A(f"v_permlane32_swap_b32 v{P}, v{P+2}\nv_permlane32_swap_b32 v{P+1}, v{P+3}")
        A(f"v_add_f32 v{P}, v{P}, v{P+2}\nv_add_f32 v{P+1}, v{P+1}, v{P+3}")
        for md in ("row_ror:8", "row_ror:4"):
            for i in range(2): A(f"v_add_f32_dpp v{P+i}, v{P+i}, v{P+i} {md} {DPPF}")
    def hpoll(self, lab, HR):
        A = self.A; s = self
        A(f"L_{lab}poll:")
        A(f"buffer_load_dwordx4 {vr(HR,4)}, v{V_L16}, {srd(R_WS)}, s{S_A3} offen sc1")
        A(f"buffer_load_dword v{HR+4}, v{s.L4}, {srd(R_WS)}, s{S_A3} offen offset:1024 sc1")
        A("s_waitcnt vmcnt(0)")
        self.sentinel(HR, 5, 6)
        A(f"s_cbranch_vccz L_{lab}ok")
        self.spin_guard(f"L_{lab}poll")
        A(f"L_{lab}ok:")

    def tail(self):
        A = self.A; s = self
        oacc = V_ACC; P = slot(0); WF = s.WF
        A(f"""
        s_cmp_eq_u32 s{S_W}, 0
        s_mov_b32 exec_hi, 0
        s_nop 4
        ds_write_b128 v{s.OW}, {vr(oacc,4)} offset:{L_QP}
        s_mov_b64 exec, -1
        s_waitcnt lgkmcnt(0)
        s_barrier
        s_cbranch_scc0 L_noopub
        """)
        for i in range(4): A(f"ds_read_b128 {vr(P+4*i,4)}, v{s.OR} offset:{L_QP+512*i}")
        self.setloc()
        def sum4(B):
            A("s_waitcnt lgkmcnt(2)")
            A(f"v_pk_add_f32 {vr(B,2)}, {vr(B,2)}, {vr(B+4,2)}\nv_pk_add_f32 {vr(B+2,2)}, {vr(B+2,2)}, {vr(B+6,2)}")
            A("s_waitcnt lgkmcnt(0)")
            A(f"v_pk_add_f32 {vr(B+8,2)}, {vr(B+8,2)}, {vr(B+12,2)}\nv_pk_add_f32 {vr(B+10,2)}, {vr(B+10,2)}, {vr(B+14,2)}")
            A(f"v_pk_add_f32 {vr(B,2)}, {vr(B,2)}, {vr(B+8,2)}\nv_pk_add_f32 {vr(B+2,2)}, {vr(B+2,2)}, {vr(B+10,2)}")
        sum4(P)
        A(f"""
        v_permlane32_swap_b32 v{P}, v{P+2}
        v_permlane32_swap_b32 v{P+1}, v{P+3}
        v_pk_add_f32 {vr(P,2)}, {vr(P,2)}, {vr(P+2,2)}
        v_cvt_pk_bf16_f32 v{P}, v{P}, v{P+1}
        v_min_u32 v{P}, -2, v{P}
        """)
        self.lstore(f"buffer_store_dword v{P}, v{s.OS}, {srd(R_WS)}, s{S_GRP} offen")
        A("L_noopub:")
        self.stamp("opub")
        A(f"s_cmp_eq_u32 s{S_ROLE}, 3\ns_cbranch_scc0 L_ffn")
        A(f"""
        s_cmp_eq_u32 s{S_W}, 0
        s_cbranch_scc1 L_w0
        s_waitcnt vmcnt(0)
        L_w0:
        s_waitcnt vmcnt(1)
        s_cmp_lt_u32 s{S_W}, 4
        s_barrier
        s_cbranch_scc1 L_low
        """)
        self.stamp("wogot")
        for st in range(8):
            for hf in range(2): A(f"ds_read_b64_tr_b16 {vr(WF+4*st+2*hf,2)}, v{s.A1} offset:{4096*st+512*hf}")
            if st == 6: A("s_waitcnt lgkmcnt(8)")
        A("L_opoll:")
        for u in range(4): A(f"buffer_load_dwordx4 {vr(P+4*u,4)}, v{s.A0}, {srd(R_WS)}, s{S_A0} offen offset:{2048*(u>>1)+128*(u&1)} sc1")
        A("s_waitcnt vmcnt(0) lgkmcnt(0)")
        self.sentinel(P, 16, 6)
        A("s_cbranch_vccz L_ook")
        self.spin_guard("L_opoll")
        A("L_ook:")
        self.stamp("ook")
        D = slot(4)
        for u in range(4):
            for par in range(2):
                d = D + 4*par
                A(f"v_mfma_f32_16x16x32_bf16 {vr(d,4)}, {vr(WF+4*(2*u+par),4)}, {vr(P+4*u,4)}, {vr(d,4) if u else '0'}")
        for i in range(4): A(f"v_add_f32_dpp v{D+i}, v{D+4+i}, v{D+i} row_ror:8 {DPPF}")
        A("s_mov_b32 exec_lo, 0x00ff00ff\ns_mov_b32 exec_hi, 0x00ff00ff")
        for i in range(4): A(f"v_and_or_b32 v{D+i}, v{D+i}, -16, s{S_T4}")
        A(f"buffer_store_dwordx4 {vr(D,4)}, v{s.A3}, {srd(R_WS)}, s{S_A1} offen sc1")
        A("s_mov_b64 exec, -1")
        self.stamp("slab")
        A("L_low:\ns_barrier")
        P = slot(8)
        A(f"v_lshlrev_b32 v{P+8}, 16, v{s.XP}\nv_and_b32 v{P+9}, 0xffff0000, v{s.XP}")
        A("L_redpoll:")
        for t in range(2): A(f"buffer_load_dwordx4 {vr(P+4*t,4)}, v{s.A4}, {srd(R_WS)}, s{84+t} offen sc1")
        A("s_waitcnt vmcnt(0)")
        self.tagcheck(P, 8, 6, S_T4, 15)
        A("s_cbranch_vccz L_redok")
        self.spin_guard("L_redpoll")
        A("L_redok:")
        self.stamp("redok")
        for hh in (0, 2): A(f"v_pk_add_f32 {vr(P+hh,2)}, {vr(P+hh,2)}, {vr(P+4+hh,2)}")
        self.setloc()
        self.red_lanes(P)
        self.rnd_pair(P, P + 1, P + 2)
        HP = P + 10
        A(f"""
        v_add_f32 v{P}, v{P}, v{P+8}
        v_add_f32 v{P+1}, v{P+1}, v{P+9}
        v_cvt_pk_bf16_f32 v{HP}, v{P}, v{P+1}
        s_mov_b32 exec_lo, 0x000f000f
        s_mov_b32 exec_hi, 0x000f000f
        v_min_u32 v{HP}, -2, v{HP}
        """)
        self.lstore(f"buffer_store_dword v{HP}, v{s.A5}, {srd(R_WS)}, s{S_A2} offen")
        A(f"s_mov_b64 exec, -1")
        self.stamp("hpub")
        A(f"s_cmp_eq_u32 s{S_EJOB}, 0\ns_cbranch_scc1 L_fin")
        HR = slot(12); HO = slot(14); F1 = slot(16); T1 = slot(19)
        self.hpoll("e", HR)
        self.layernorm(HR, F1, T1, HO, keep=(F1+10, F1+11))
        for i in range(5):
            A(f"v_lshlrev_b32 v{F1+2*i}, 16, v{HO+i}\nv_and_b32 v{F1+2*i+1}, 0xffff0000, v{HO+i}")
            A(f"v_lshlrev_b32 v{T1+2*i}, 16, v{s.WR+i}\nv_and_b32 v{T1+2*i+1}, 0xffff0000, v{s.WR+i}")
        A(f"v_mul_f32 v6, v{F1}, v{T1}")
        for i in range(1, 10): A(f"v_fmac_f32 v6, v{F1+i}, v{T1+i}")
        for md in ("quad_perm:[1,0,3,2]", "quad_perm:[2,3,0,1]"): A(f"v_add_f32_dpp v6, v6, v6 {md} {DPPF}")
        self.allred("v_add_f32", 6, F1)
        self.rnd1(6)
        A(f"v_mul_f32 v6, 0xbfb8aa3b, v6\nv_exp_f32 v6, v6\nv_add_f32 v6, 1.0, v6\nv_rcp_f32 v6, v6")
        self.rnd1(6)
        A(f"""
        v_mov_b32 v{F1+8}, v6
        s_lshl_b32 s{S_T1}, s{S_W}, 4
        v_mov_b32 v7, s{S_T1}
        ds_write_b128 v7, {vr(F1+8,4)} offset:{L_RED}
        s_waitcnt lgkmcnt(0)
        s_barrier
        ds_read_b128 {vr(F1,4)}, v{s.A6} offset:{L_RED}
        v_lshlrev_b32 v{T1}, 16, v{HP}
        v_and_b32 v{T1+1}, 0xffff0000, v{HP}
        s_waitcnt lgkmcnt(0)
        v_sub_f32 v{T1+2}, v{T1}, v{F1+2}
        v_sub_f32 v{T1+3}, v{T1+1}, v{F1+2}
        """)
        self.rnd_pair(T1+2, T1+3, T1+4)
        A(f"v_mul_f32 v{T1+2}, v{T1+2}, v{F1+3}\nv_mul_f32 v{T1+3}, v{T1+3}, v{F1+3}")
        self.rnd_pair(T1+2, T1+3, T1+4)
        A("L_ypoll:")
        A(f"buffer_load_dwordx4 {vr(P,4)}, v{s.A4}, {srd(R_WS)}, s86 offen sc1")
        A("s_waitcnt vmcnt(0)")
        self.tagcheck(P, 4, 6, S_T4, 15)
        A("s_cbranch_vccz L_yok")
        self.spin_guard("L_ypoll")
        A("L_yok:")
        self.stamp("yok")
        self.red_lanes(P)
        self.rnd_pair(P, P+1, P+2)
        A(f"v_mul_f32 v{P}, v{P}, v{F1}\nv_mul_f32 v{P+1}, v{P+1}, v{F1}")
        self.rnd_pair(P, P+1, P+2)
        A(f"v_add_f32 v{P}, v{P}, v{T1+2}\nv_add_f32 v{P+1}, v{P+1}, v{T1+3}")
        self.rnd_pair(P, P+1, P+2)
        A(f"""
        v_add_f32 v{P}, v{P}, v{T1}
        v_add_f32 v{P+1}, v{P+1}, v{T1+1}
        s_mov_b32 exec_lo, 0x000f000f
        s_mov_b32 exec_hi, 0x000f000f
        v_cvt_pk_bf16_f32 v{P}, v{P}, v{P+1}
        global_store_dword v{s.A5}, v{P}, s[{S_OUT}:{S_OUT+1}]
        s_or_b32 s{S_T1}, s2, s{S_W}
        s_cbranch_scc1 L_fin
        v_mov_b32 v6, {WS_EPOCH}
        v_mov_b32 v7, s{S_EP}
        s_mov_b64 exec, 1
        global_store_dword v6, v7, s[{S_WS}:{S_WS+1}] sc1
        s_branch L_fin
        L_ffn:
        s_cmp_eq_u32 s{S_ROLE}, 0
        s_cbranch_scc1 L_fin
        s_cmp_eq_u32 s{S_ROLE}, 2
        s_barrier
        s_cbranch_scc1 L_down
        """)
        HR = slot(4); HO = slot(6); F1 = slot(8); T1 = slot(11)
        A(f"buffer_load_dwordx4 {vr(HR,4)}, v{V_L16}, {srd(R_WS)}, s{S_A3} offen sc1")
        A(f"buffer_load_dword v{HR+4}, v{s.L4}, {srd(R_WS)}, s{S_A3} offen offset:1024 sc1")
        if self.rot:
            A(f"""
            s_and_b32 s{S_T0}, s2, 7
            s_add_u32 s{S_T0}, s{S_T0}, s{S_IDX}
            s_and_b32 s{S_T0}, s{S_T0}, 1
            s_cselect_b32 s{S_FCUR}, {5*16*3456}, 0
            s_cselect_b32 s{S_T1}, 5120, 0
            s_cselect_b32 s{S_T2}, 0, {5*16*3456}
            s_cselect_b32 s{S_T3}, 0, 5120
            s_add_u32 s{S_MCUR}, s{S_LM0}, s{S_T1}
            """)
            for i in range(5): self.ldF(fl=self.fflags)
            A(f"s_mov_b32 s{S_FCUR}, s{S_T2}\ns_add_u32 s{S_MCUR}, s{S_LM0}, s{S_T3}")
            for i in range(5): self.ldF(fl=self.fflags)
        else:
            for i in range(self.nf_in, 10): self.ldF(fl=self.fflags)
        A("s_waitcnt vmcnt(0)")
        for st in range(5):
            for tl in range(2):
                for hf in range(2): A(f"ds_read_b64_tr_b16 {vr(WF+20*tl+4*st+2*hf,2)}, v{s.A7} offset:{2048*st+256*hf+32*tl}")
            if st == 2: A("s_waitcnt lgkmcnt(4)")
        self.stamp("fgot")
        self.hpoll("h", HR)
        self.stamp("hok")
        self.layernorm(HR, F1, T1, HO)
        A(f"""
        ds_write_b128 v{s.A2}, {vr(HO,4)} offset:{L_XN}
        ds_write_b32 v{s.A3}, v{HO+4} offset:{L_XN+1024}
        s_waitcnt lgkmcnt(0)
        s_barrier
        """)
        self.stamp("lnbar")
        BF = slot(16); DA = V_ACC
        for st in range(5): A(f"ds_read_b128 {vr(BF+4*st,4)}, v{s.A4} offset:{L_XN+64*st}")
        for st in range(5):
            A(f"s_waitcnt lgkmcnt({4-st})")
            for tl in range(2):
                A(f"v_mfma_f32_16x16x32_bf16 {vr(DA+4*tl,4)}, {vr(WF+20*tl+4*st,4)}, {vr(BF+4*st,4)}, {vr(DA+4*tl,4) if st else '0'}")
        A(f"""
        s_cmp_lt_u32 s{S_W}, 2
        ds_write_b128 v{s.A5}, {vr(DA,4)} offset:{L_RED}
        ds_write_b128 v{s.A5}, {vr(DA+4,4)} offset:{L_RED+8*544}
        s_waitcnt lgkmcnt(0)
        s_barrier
        s_cbranch_scc0 L_fin
        """)
        for i in range(4): A(f"ds_read_b128 {vr(BF+4*i,4)}, v{s.A6} offset:{L_RED+544*i}")
        self.setloc()
        sum4(BF)
        self.rnd_pair(BF, BF+1, BF+4); self.rnd_pair(BF+2, BF+3, BF+5)
        for i in range(4): A(f"v_mul_f32 v{BF+4+i}, 0xbfb8aa3b, v{BF+i}")
        for i in range(4): A(f"v_exp_f32 v{BF+4+i}, v{BF+4+i}")
        for i in range(4): A(f"v_add_f32 v{BF+4+i}, 1.0, v{BF+4+i}")
        for i in range(4): A(f"v_rcp_f32 v{BF+4+i}, v{BF+4+i}")
        for i in range(4): A(f"v_mul_f32 v{BF+4+i}, v{BF+4+i}, v{BF+i}")
        self.rnd_pair(BF+4, BF+5, BF+8); self.rnd_pair(BF+6, BF+7, BF+9)
        for i in range(4): A(f"v_mul_f32_dpp v{BF+4+i}, v{BF+i}, v{BF+4+i} row_ror:8 {DPPF}")
        A(f"""
        s_mov_b32 exec_lo, 0x00ff00ff
        s_mov_b32 exec_hi, 0x00ff00ff
        v_cvt_pk_bf16_f32 v{BF}, v{BF+4}, v{BF+5}
        v_cvt_pk_bf16_f32 v{BF+1}, v{BF+6}, v{BF+7}
        v_min_u32 v{BF}, -2, v{BF}
        v_min_u32 v{BF+1}, -2, v{BF+1}
        """)
        self.lstore(f"buffer_store_dwordx2 {vr(BF,2)}, v{s.XP}, {srd(R_ACT)}, s{S_A2} offen")
        self.stamp("apub")
        A("s_branch L_fin\nL_down:")
        for i in range(self.nf_in, 7): self.ldF()
        A(f"s_cmp_lt_u32 s{S_W}, 4\ns_waitcnt vmcnt(0)\ns_barrier\ns_cbranch_scc0 L_fin")
        n = 0
        for tl in range(2):
            for st in range(7):
                for hf in range(2):
                    a = [[s.A1, s.A6], [s.A2, s.A7]][tl][hf]
                    A(f"ds_read_b64_tr_b16 {vr(WF+28*tl+4*st+2*hf,2)}, v{a} offset:{8192*hf+1024*st}")
                    n += 1
                    if n % 8 == 0 and n >= 8: A("s_waitcnt lgkmcnt(4)")
        self.stamp("fgot")
        P = slot(0); D = slot(4); R = slot(8)
        A("L_apoll:")
        for u in range(4): A(f"buffer_load_dwordx4 {vr(P+4*u,4)}, v{s.A0}, {srd(R_ACT)}, 0 offen offset:{1024*u} sc1")
        A("s_waitcnt vmcnt(0) lgkmcnt(0)")
        self.sentinel(P, 16, 6)
        A("s_cbranch_vccz L_aok")
        self.spin_guard("L_apoll")
        A("L_aok:")
        self.stamp("aok")
        for u in range(4):
            for par in (1, 0):
                if 2*u + par == 7: continue
                for tl in range(2):
                    d = D + 8*tl + 4*par
                    A(f"v_mfma_f32_16x16x32_bf16 {vr(d,4)}, {vr(WF+28*tl+4*(2*u+par),4)}, {vr(P+4*u,4)}, {vr(d,4) if u else '0'}")
        for i in range(4): A(f"v_add_f32_dpp v{R+i}, v{D+4+i}, v{D+i} row_ror:8 row_mask:0xf bank_mask:0x3")
        for i in range(4): A(f"v_add_f32_dpp v{R+i}, v{D+8+i}, v{D+12+i} row_ror:8 row_mask:0xf bank_mask:0xc")
        for i in range(4): A(f"v_and_or_b32 v{R+i}, v{R+i}, -16, s{S_T4}")
        A(f"buffer_store_dwordx4 {vr(R,4)}, v{s.A3}, {srd(R_WS)}, s{S_A1} offen sc1")
        self.stamp("ypub")
        A("L_fin:\ns_mov_b64 exec, -1")

if __name__ == "__main__":
    import json
    out = sys.argv[1]
    kw = json.loads(sys.argv[2]) if len(sys.argv) > 2 else {}
    g = G(**kw)
    s = g.gen()
    hdr = open("cdna_kernels/" + NAME + ".s.ref").read().split("; Override launch")[0]
    open(out, "w").write(hdr + s)
    print(out, "lines", s.count("\n"), "nops", g.A.nops)
```

```python
import sys
from asmlib import Asm
NAME = "sequential_preLN__sliding_block_cached__moe_arch_mod__decode"

WS_EPOCH = 0x0
WS_XCT   = 0x1000
WS_GRP   = 0x10000
G_O, G_H, G_A = 0, 8192, 8192 + 10240
WS_SLAB  = 0x60000
WS_YP    = 0xC0000
WS_SREP  = 0x200000
WS_QPART = 0x100000
WS_SIZE  = 0x500000
WS_STAMP = 0x4000000
XS = 1312
L_XN    = 0
L_H     = 10496
L_QP    = 20992
L_RED   = 25088
L_SM    = 33792
L_SIG   = 33856
L_W     = 34816
L_TOT   = L_W + 81920
S_X, S_K, S_V, S_WQ, S_WO, S_WR, S_WG, S_WU, S_WD, S_OUT, S_WS = 16, 18, 20, 22, 24, 28, 30, 32, 34, 36, 40
S_EP, S_T4, S_LOC = 26, 27, 1
S_XT = 38
S_SIG = 0
S_GRP = 82
S_QH, S_QB = 84, 85
S_EJOB = 83
R_K, R_V, R_WQ, R_F, R_WS, R_ACT = 44, 48, 52, 56, 60, 64
S_C4K = 72
S_H, S_B, S_W, S_ROLE, S_IDX = 3, 4, 5, 6, 7
S_SPIN = 9
S_T0, S_T1, S_T2, S_T3 = 10, 11, 12, 13
S_M = 14
S_LM0 = 42
S_FSTEP = 43
S_FCUR = 8
S_MCUR = 23
S_A0, S_A1, S_A2, S_A3 = 68, 69, 70, 71
S_ST = 88
V_L = 1
V_K, V_V, V_F = 2, 3, 4
V_MASK = 8
V_SC = 12
V_ACC = 20
V_Q = 28
V_L16, V_G, V_C = 44, 46, 47
V_X = 48
V_RING = 128
DPPF = "row_mask:0xf bank_mask:0xf"
LOG2E = "0x3fb8aa3b"
def slot(t): return V_RING + 4 * t
def vr(a, n): return f"v[{a}:{a+n-1}]"
def srd(r): return f"s[{r}:{r+3}]"

class G:
    def __init__(self, D=4, D2=None, thr="none", stamps=False, qpos=16, qbar=22, vextra=4, sleep=1, npre=6, nf_in=0, f0=6, fstep=5, wo_lead=0, freeq=4, pfpos=20, pfflags='nt', qflags='sc1', patA=None, patB=None, x1=1, x2=2, k0=4, local=True, rot=True, fflags='', srep=False, etrig=None, wpos=(24,26,28,30), tlb=0, bmask=False, codepf=0, kfirst=0, klin=True, dbg='', qmap=0, wqlate=0, free2=False, qpub=12, pfw=18, pfg=22, pfc=10, wo_late=True, pfn=5):
        self.A = Asm(); self.D = D; self.D2 = D2; self.thr = thr; self.stamps = stamps
        self.vm = []; self.done = 0; self.uid = 0; self.stamped = set()
        self.qpos = qpos; self.qbar = qbar; self.vextra = vextra; self.sleep = sleep; self.npre = npre
        self.nf_in = nf_in; self.f0 = f0; self.fstep = fstep; self.wo_lead = wo_lead; self.freeq = freeq; self.pfpos = pfpos; self.pfflags = pfflags; self.qflags = qflags; self.patA = patA; self.patB = patB; self.x1 = x1; self.x2 = x2; self.nthr = 0; self.k0 = k0; self.local = local; self.rot = rot; self.fflags = fflags; self.srep = srep; self.etrig = etrig; self.wpos = list(wpos); self.nfc = 0; self.tlb = tlb; self.bmask = bmask; self.codepf = codepf; self.kfirst = kfirst; self.klin = klin; self.dbg = dbg; self.qmap = qmap; self.wqlate = wqlate; self.free2 = free2; self.qpubpos = qpub; self.pfw = pfw; self.pfg = pfg; self.pfc = pfc; self.wo_late = wo_late; self.pfn = pfn
    def issue(self, name, text):
        self.A(text); self.vm.append(name)
    def chk_stamps(self):
        if not self.stamps: return
        for nm in self.stamps:
            if nm.startswith("@") and nm not in self.stamped and nm[1:] in self.vm[:self.done]:
                self.stamped.add(nm); self.stamp(nm)
    def wait(self, name):
        i = len(self.vm) - 1 - self.vm[::-1].index(name)
        if i < self.done: return
        self.A(f"s_waitcnt vmcnt({len(self.vm) - 1 - i})"); self.done = i + 1
        self.chk_stamps()
    def throttle(self, X=0):
        self.nthr += 1
        da = (self.patA[self.nthr % len(self.patA)] if self.patA else self.D) + X
        if len(self.vm) - self.done > da - 1:
            self.A(f"s_waitcnt vmcnt({da-1})"); self.done = len(self.vm) - (da - 1)
            self.chk_stamps()
        if self.D2:
            db = (self.patB[self.nthr % len(self.patB)] if self.patB else self.D2) + X
            if len(self.vm) - self.done > db - 1:
                self.uid += 1
                self.A(f"s_cbranch_vccz L_thr{self.uid}\ns_waitcnt vmcnt({db-1})\nL_thr{self.uid}:")
    def setthr(self):
        if self.D2: self.A(f"s_mov_b64 vcc, s[80:81]")
    def stamp(self, name):
        if self.stamps and name in self.stamps:
            i = self.stamps.index(name)
            self.A(f"s_memrealtime s[{S_ST+2*i}:{S_ST+2*i+1}]")
    def spin_guard(self, lab, sleep=None):
        sleep = self.sleep if sleep is None else sleep
        if sleep: self.A(f"s_sleep {sleep}")
        self.A(f"s_sub_u32 s{S_SPIN}, s{S_SPIN}, 1\ns_cmp_eq_u32 s{S_SPIN}, 0\ns_cbranch_scc0 {lab}\ns_branch L_end")
    def rnd_pair(self, a, b, t):
        self.A(f"v_cvt_pk_bf16_f32 v{t}, v{a}, v{b}\nv_lshlrev_b32 v{a}, 16, v{t}\nv_and_b32 v{b}, 0xffff0000, v{t}")
    def rnd1(self, a):
        self.A(f"v_cvt_pk_bf16_f32 v{a}, v{a}, v{a}\nv_and_b32 v{a}, 0xffff0000, v{a}")
    def sentinel(self, base, n, t):
        A = self.A
        A(f"v_max3_u32 v{t}, v{base}, v{base+1}, v{base+2}")
        i = 3
        while i < n:
            if i + 1 < n: A(f"v_max3_u32 v{t}, v{t}, v{base+i}, v{base+i+1}"); i += 2
            else: A(f"v_max_u32 v{t}, v{t}, v{base+i}"); i += 1
        A(f"v_cmp_eq_u32 vcc, -1, v{t}")
    def tagcheck(self, base, n, t, stag, mask):
        A = self.A
        for i in range(n): A(f"v_xor_b32 v{base+i}, s{stag}, v{base+i}")
        if n == 2: A(f"v_or_b32 v{t}, v{base}, v{base+1}")
        else:
            A(f"v_or3_b32 v{t}, v{base}, v{base+1}, v{base+2}")
            i = 3
            while i < n:
                if i + 1 < n: A(f"v_or3_b32 v{t}, v{t}, v{base+i}, v{base+i+1}"); i += 2
                else: A(f"v_or_b32 v{t}, v{t}, v{base+i}"); i += 1
        A(f"v_and_b32 v{t}, {mask}, v{t}\nv_cmp_ne_u32 vcc, 0, v{t}")
    def allred(self, op, v, tmp):
        A = self.A
        for md in ("row_ror:8", "row_ror:4"): A(f"{op}_dpp v{v}, v{v}, v{v} {md} {DPPF}")
        for sw in ("v_permlane16_swap_b32", "v_permlane32_swap_b32"):
            A(f"v_mov_b32 v{tmp}, v{v}\n{sw} v{v}, v{tmp}\n{op} v{v}, v{v}, v{tmp}")
    def layernorm(self, src, f, t, out, keep=None, stats_only=False):
        A = self.A
        if src is not None:
            for i in range(5):
                A(f"v_lshlrev_b32 v{f+2*i}, 16, v{src+i}\nv_and_b32 v{f+2*i+1}, 0xffff0000, v{src+i}")
        A(f"v_readfirstlane_b32 s{S_T0}, v{f}")
        for i in range(10): A(f"v_subrev_f32 v{t+i}, s{S_T0}, v{f+i}")
        s1, s2, s3, s4 = out, out + 1, out + 2, out + 3
        A(f"v_add_f32 v{s1}, v{t}, v{t+1}\nv_mul_f32 v{s2}, v{t}, v{t}\nv_add_f32 v{s3}, v{t+2}, v{t+3}\nv_mul_f32 v{s4}, v{t+1}, v{t+1}")
        for i in range(2, 10, 2):
            A(f"v_fmac_f32 v{s2}, v{t+i}, v{t+i}\nv_fmac_f32 v{s4}, v{t+i+1}, v{t+i+1}")
            if i >= 4: A(f"v_add_f32 v{s1}, v{s1}, v{t+i}\nv_add_f32 v{s3}, v{s3}, v{t+i+1}")
        A(f"v_add_f32 v{s1}, v{s1}, v{s3}\nv_add_f32 v{s2}, v{s2}, v{s4}")
        A(f"v_permlane32_swap_b32 v{s1}, v{s2}\nv_add_f32 v{s1}, v{s1}, v{s2}")
        for m in ("quad_perm:[1,0,3,2]", "quad_perm:[2,3,0,1]", "row_half_mirror", "row_mirror"):
            A(f"v_add_f32_dpp v{s1}, v{s1}, v{s1} {m} {DPPF}")
        A(f"v_add_f32_dpp v{s1}, v{s1}, v{s1} row_bcast:15 row_mask:0xa bank_mask:0xf")
        A(f"v_mul_f32 v{s1}, 0x3acccccd, v{s1}")
        A(f"v_readlane_b32 s{S_T1}, v{s1}, 31\nv_readlane_b32 s{S_T2}, v{s1}, 63")
        A(f"v_mov_b32 v{s2}, s{S_T1}\nv_add_f32 v{s1}, s{S_T0}, v{s2}\nv_fma_f32 v{s2}, -v{s2}, v{s2}, s{S_T2}\nv_max_f32 v{s2}, 0, v{s2}")
        self.rnd_pair(s1, s2, s3)
        A(f"v_add_f32 v{s2}, 0x3727c5ac, v{s2}")
        self.rnd1(s2)
        A(f"v_sqrt_f32 v{s2}, v{s2}")
        if stats_only:
            self.rnd1(s2); A(f"v_rcp_f32 v{s2}, v{s2}")
            return
        for i in range(10): A(f"v_sub_f32 v{t+i}, v{f+i}, v{s1}")
        self.rnd1(s2)
        A(f"v_rcp_f32 v{out+4}, v{s2}")
        if keep: A(f"v_mov_b32 v{keep[0]}, v{s1}\nv_mov_b32 v{keep[1]}, v{out+4}")
        for i in range(5): self.rnd_pair(t+2*i, t+2*i+1, out + 2 + (i & 1))
        for i in range(10): A(f"v_mul_f32 v{t+i}, v{t+i}, v{out+4}")
        for i in range(5): A(f"v_cvt_pk_bf16_f32 v{out+i}, v{t+2*i}, v{t+2*i+1}")
    def ldF(self, counted=None, fl="nt"):
        txt = f"buffer_load_dwordx4 v{V_F}, {srd(R_F)}, s{S_FCUR} offen {fl} lds"
        self.A(f"s_mov_b32 m0, s{S_MCUR}")
        self.A(f"s_add_u32 s{S_MCUR}, s{S_MCUR}, 1024")
        if counted: self.issue(counted, txt); self.A(f"v_xor_b32 v{V_F}, 64, v{V_F}")
        else: self.A(txt)
        self.A(f"s_add_u32 s{S_FCUR}, s{S_FCUR}, s{S_FSTEP}")

    def ldC(self):
        if self.nfc == 5 and self.rot: self.A(f"s_mov_b32 s{S_FCUR}, s86\ns_mov_b32 s{S_MCUR}, s87")
        self.ldF(fl=self.fflags); self.nfc += 1

    def gen(self):
        A = self.A
        A(f"; @launch grid=(256,1,1) block=(512,1,1) lds={L_TOT}")
        A('.amdgcn_target "amdgcn-amd-amdhsa--gfx950"\n.text')
        A(f".globl {NAME}_kernel\n.p2align 8\n.type {NAME}_kernel,@function\n{NAME}_kernel:")
        A("s_cmp_ge_u32 s2, 256\ns_cbranch_scc1 L_end")
        A("s_load_dwordx16 s[16:31], s[0:1], 0\ns_load_dwordx8 s[32:39], s[0:1], 64\ns_load_dwordx2 s[40:41], s[0:1], 96")
        if self.stamps:
            for i in range(1, 7): A(f"s_mov_b64 s[{S_ST+2*i}:{S_ST+2*i+1}], 0")
        self.stamp("start")
        def codepf():
            A(f"""
            s_getpc_b64 s[{S_M}:{S_M+1}]
            L_pc:
            v_lshlrev_b32 v7, 7, v0
            v_min_u32 v7, L_end-L_pc-4, v7
            v_cmp_gt_u32 vcc, 128, v0
            s_cbranch_vccz L_nopf
            global_load_dword v{V_X+44}, v7, s[{S_M}:{S_M+1}]
            L_nopf:
            """)
        if self.codepf == 1: codepf()
        A(f"""
        v_lshrrev_b32 v6, 6, v0
        v_and_b32 v{V_L}, 63, v0
        s_and_b32 s{S_T0}, s2, 7
        v_readfirstlane_b32 s{S_W}, v6
        s_and_b32 s{S_H}, s2, 31
        s_lshr_b32 s{S_B}, s2, 5
        s_lshl_b32 s{S_T3}, s2, 20
        s_add_u32 s{S_T3}, s{S_T3}, 0xC0000
        v_lshlrev_b32 v7, 12, v6
        v_lshlrev_b32 v{V_L16}, 4, v{V_L}
        v_add_u32 v{V_V}, v7, v{V_L16}
        v_and_b32 v{V_K}, 3, v0
        v_lshl_add_u32 v{V_K}, v{V_K}, 4, v7
        v_bfe_u32 v5, v0, 2, 2
        v_lshl_add_u32 v{V_K}, v5, {8 if self.klin else 10}, v{V_K}
        v_bfe_u32 v{V_G}, v0, 4, 2
        v_lshl_add_u32 v{V_K}, v{V_G}, 6, v{V_K}
        v_mul_u32_u24 v{V_ACC}, 1280, v6
        v_lshl_add_u32 v{V_ACC+1}, v{V_L}, 2, v{V_ACC}
        v_add_u32 v{V_ACC}, v{V_ACC}, v{V_L16}
        v_and_b32 v{V_C}, 15, v0
        v_and_b32 v{V_ACC+4}, 1, v6
        v_lshlrev_b32 v{V_ACC+4}, 3, v{V_ACC+4}
        v_lshl_add_u32 v{V_ACC+4}, v{V_G}, 1, v{V_ACC+4}
        v_xor_b32 v{V_ACC+4}, v{V_ACC+4}, v{V_C}
        v_lshlrev_b32 v{V_ACC+4}, 4, v{V_ACC+4}
        v_lshl_add_u32 v{V_ACC+3}, v6, 2, v{V_G}
        v_lshrrev_b32 v{V_ACC+2}, 3, v0
        v_lshlrev_b32 v{V_ACC+2}, 13, v{V_ACC+2}
        v_and_b32 v5, 7, v0
        v_lshl_add_u32 v{V_ACC+2}, v5, 4, v{V_ACC+2}
        """)
        A(f"""
        s_and_b32 s{S_T1}, s{S_B}, 3
        s_mul_i32 s{S_T1}, s{S_T1}, {160*8192}
        s_lshl_b32 s{S_T2}, s{S_H}, 8
        s_add_u32 s{S_T1}, s{S_T1}, s{S_T2}
        s_lshr_b32 s{S_T2}, s{S_B}, 2
        s_lshl_b32 s{S_T2}, s{S_T2}, 7
        s_add_u32 s{S_T1}, s{S_T1}, s{S_T2}
        s_lshl_b32 s{S_LM0}, s{S_W}, 10
        s_add_u32 s{S_LM0}, s{S_LM0}, {L_W}
        s_mov_b32 m0, s{S_LM0}
        s_mov_b32 s{R_WQ+2}, {159*8192+128}
        s_mov_b32 s{R_WQ+3}, 0x20000
        s_mov_b32 s{R_K+2}, 0x40000
        s_mov_b32 s{R_K+3}, 0x20000
        s_mov_b32 s{S_A0}, 0x80000
        s_mov_b32 s{S_A1}, 0x100000
        """)
        self.stamp("prekarg")
        A("s_waitcnt lgkmcnt(0)")
        self.stamp("karg")
        A(f"""
        s_load_dword s{S_EP}, s[{S_WS}:{S_WS+1}], {WS_EPOCH}
        s_add_u32 s{R_WQ}, s{S_WQ}, s{S_T1}
        s_addc_u32 s{R_WQ+1}, s{S_WQ+1}, 0
        s_add_u32 s{R_K}, s{S_K}, s{S_T3}
        s_addc_u32 s{R_K+1}, s{S_K+1}, 0
        """)
        XR = V_Q
        def ldK(t): self.issue(f"K{t}", f"buffer_load_dwordx4 {vr(slot(t),4)}, v{V_K}, {srd(R_K)}, {'s%d'%(S_C4K+(t>>2)) if t>=4 else '0'} offen offset:{(t&3)*(1024 if self.klin else 256)} nt")
        for t in range(self.kfirst): ldK(t)
        self.issue("x0", f"global_load_dwordx4 {vr(XR,4)}, v{V_ACC}, s[{S_X}:{S_X+1}]")
        self.issue("x1", f"global_load_dword v{XR+4}, v{V_ACC+1}, s[{S_X}:{S_X+1}] offset:1024")
        A(f"""
        s_mov_b32 s{R_WS}, s{S_WS}
        s_mov_b32 s{R_WS+1}, s{S_WS+1}
        s_mov_b32 s{R_WS+2}, {WS_SIZE}
        s_mov_b32 s{R_WS+3}, 0x20000
        s_lshl_b32 s{S_GRP}, s{S_T0}, 15
        s_add_u32 s{S_GRP}, s{S_GRP}, {WS_GRP}
        s_lshr_b32 s{S_IDX}, s2, 3
        """)
        self.issue("wq0", f"buffer_load_dwordx4 v{V_ACC+2}, {srd(R_WQ)}, 0 offen nt lds")
        A(f"s_add_u32 m0, s{S_LM0}, 8192")
        for _ in range(self.wqlate): ldK(self.kfirst); self.kfirst += 1
        self.issue("wq1", f"buffer_load_dwordx4 v{V_ACC+2}, {srd(R_WQ)}, s{S_A0} offen nt lds")
        A(f"s_add_u32 m0, s{S_LM0}, 16384")
        for _ in range(self.wqlate): ldK(self.kfirst); self.kfirst += 1
        self.issue("wq2", f"buffer_load_dwordx4 v{V_ACC+2}, {srd(R_WQ)}, s{S_A1} offen nt lds")
        def ldV(t): self.issue(f"V{t}", f"buffer_load_dwordx4 {vr(slot(t),4)}, v{V_V}, {srd(R_V)}, s{S_C4K+(t>>2)} offen offset:{(t&3)*1024} nt")
        for t in range(self.kfirst, self.k0): ldK(t)
        if self.codepf == 2: codepf()
        A(f"""
        s_add_u32 s{R_V}, s{S_V}, s{S_T3}
        s_addc_u32 s{R_V+1}, s{S_V+1}, 0
        s_mov_b32 s{R_V+2}, 0x40000
        s_mov_b32 s{R_V+3}, 0x20000
        s_add_u32 s{S_T1}, s{S_GRP}, {G_A}
        s_add_u32 s{R_ACT}, s{S_WS}, s{S_T1}
        s_addc_u32 s{R_ACT+1}, s{S_WS+1}, 0
        s_mov_b32 s{R_ACT+2}, {7*512}
        s_cmp_eq_u32 s{S_T0}, 7
        s_cselect_b32 s{R_ACT+2}, {5*512}, s{R_ACT+2}
        s_mov_b32 s{R_ACT+3}, 0x20000
        s_mov_b32 s{S_ROLE}, 3
        s_cmp_lt_u32 s{S_IDX}, 20
        s_cbranch_scc1 L_roleok
        s_mov_b32 s{S_ROLE}, 2
        s_sub_u32 s{S_IDX}, s{S_IDX}, 27
        s_cbranch_scc0 L_roleok
        s_add_u32 s{S_IDX}, s{S_IDX}, 7
        s_mul_i32 s{S_T1}, s{S_T0}, 7
        s_add_u32 s{S_T1}, s{S_T1}, s{S_IDX}
        s_cmp_lt_u32 s{S_T1}, 54
        s_cselect_b32 s{S_ROLE}, 1, 0
        L_roleok:
        s_mov_b32 s{S_SPIN}, 0x100000
        """)
        for i in range(8): A(f"s_mov_b32 s{S_C4K+i}, {i*32768}")
        if self.D2:
            A(f"s_getreg_b32 s80, hwreg(HW_REG_XCC_ID)\ns_and_b32 s80, s80, 1\ns_xor_b32 s80, s80, 1\ns_mov_b32 s81, 0")
            if self.thr == "role": A(f"s_cmp_eq_u32 s{S_ROLE}, 3\ns_cselect_b32 s80, 1, 0")
            if self.thr == "nonc": A(f"s_cmp_eq_u32 s{S_ROLE}, 1\ns_cselect_b32 s80, 0, 1")
            if self.thr == "evennonc": A(f"s_cmp_eq_u32 s{S_ROLE}, 1\ns_cselect_b32 s80, 0, s80")
            if self.thr == "both": A(f"s_cmp_eq_u32 s{S_ROLE}, 3\ns_cselect_b32 s80, s80, 0")
        A(f"""
        s_mov_b32 s{R_F+3}, 0x20000
        s_mov_b32 s{S_FCUR}, 0
        s_cmp_eq_u32 s{S_ROLE}, 3
        s_cbranch_scc1 L_rwo
        s_mov_b32 s{R_F+2}, {640*3456}
        s_cmp_eq_u32 s{S_ROLE}, 2
        s_cbranch_scc1 L_rdown
        s_mul_i32 s{S_LM0}, s{S_W}, 10240
        s_add_u32 s{S_LM0}, s{S_LM0}, {L_W}
        s_cmp_lt_u32 s{S_W}, 4
        s_cselect_b32 s{R_F}, s{S_WG}, s{S_WU}
        s_cselect_b32 s{R_F+1}, s{S_WG+1}, s{S_WU+1}
        s_mul_i32 s{S_T2}, s{S_T0}, 7
        s_add_u32 s{S_T2}, s{S_T2}, s{S_IDX}
        s_and_b32 s{S_T1}, s{S_W}, 3
        s_mul_i32 s{S_T1}, s{S_T1}, {160*3456}
        s_lshl_b32 s{S_T2}, s{S_T2}, 6
        s_add_u32 s{S_T1}, s{S_T1}, s{S_T2}
        s_mov_b32 s{S_FSTEP}, {16*3456}
        v_lshrrev_b32 v{V_F}, 2, v{V_L}
        v_mul_u32_u24 v{V_F}, 3456, v{V_F}
        v_and_b32 v7, 3, v0
        s_branch L_rdone
        L_rdown:
        s_mov_b32 s{R_F}, s{S_WD}
        s_mov_b32 s{R_F+1}, s{S_WD+1}
        s_mul_i32 s{S_T1}, s{S_T0}, {224*1280}
        s_lshl_b32 s{S_T2}, s{S_IDX}, 8
        s_add_u32 s{S_T1}, s{S_T1}, s{S_T2}
        s_mov_b32 s{S_FSTEP}, {32*1280}
        s_lshl_b32 s{S_LM0}, s{S_W}, 13
        s_add_u32 s{S_LM0}, s{S_LM0}, {L_W}
        v_mul_u32_u24 v{V_F}, 1280, v{V_ACC+3}
        v_lshrrev_b32 v7, 4, v{V_ACC+4}
        s_branch L_rdone
        L_rwo:
        s_mov_b32 s{R_F}, s{S_WO}
        s_mov_b32 s{R_F+1}, s{S_WO+1}
        s_mov_b32 s{R_F+2}, {4096*1280}
        s_cmp_ge_u32 s{S_IDX}, 10
        s_cselect_b32 s{S_T1}, {16*163840-1280}, 0
        s_lshr_b32 s{S_T2}, s{S_W}, 2
        s_lshl_b32 s{S_T2}, s{S_T2}, 3
        s_add_u32 s{S_T2}, s{S_T2}, s{S_T0}
        s_mul_i32 s{S_T2}, s{S_T2}, 163840
        s_add_u32 s{S_T1}, s{S_T1}, s{S_T2}
        s_lshl_b32 s{S_T2}, s{S_IDX}, 7
        s_add_u32 s{S_T1}, s{S_T1}, s{S_T2}
        s_and_b32 s{S_T2}, s{S_W}, 3
        s_mul_i32 s{S_T2}, s{S_T2}, {32*1280}
        s_add_u32 s{S_T1}, s{S_T1}, s{S_T2}
        s_mov_b32 s{S_FSTEP}, {8*1280}
        s_lshl_b32 s{S_LM0}, s{S_W}, 12
        s_add_u32 s{S_LM0}, s{S_LM0}, {L_W}
        v_lshrrev_b32 v{V_F}, 3, v{V_L}
        v_mul_u32_u24 v{V_F}, 1280, v{V_F}
        v_bfe_u32 v7, v0, 4, 1
        v_lshlrev_b32 v7, 1, v7
        v_xor_b32 v7, v7, v5
        L_rdone:
        v_lshl_add_u32 v{V_F}, v7, 4, v{V_F}
        v_add_u32 v{V_F}, s{S_T1}, v{V_F}
        s_mov_b32 s{S_MCUR}, s{S_LM0}
        """)
        if self.rot:
            A(f"""
            s_add_u32 s{S_T1}, s{S_T0}, s{S_IDX}
            s_cmp_eq_u32 s{S_ROLE}, 1
            s_cselect_b32 s{S_T1}, s{S_T1}, 0
            s_and_b32 s{S_T1}, s{S_T1}, 1
            s_cselect_b32 s{S_FCUR}, {5*16*3456}, 0
            s_cselect_b32 s{S_T1}, 5120, 0
            s_cselect_b32 s86, 0, {5*16*3456}
            s_cselect_b32 s87, 0, 5120
            s_add_u32 s{S_MCUR}, s{S_LM0}, s{S_T1}
            s_add_u32 s87, s{S_LM0}, s87
            """)
        A(f"""
        v_and_b32 v7, 1, v0
        v_lshlrev_b32 v7, 4, v7
        v_mov_b32 v{V_ACC+4}, 0xffff
        v_lshlrev_b32 v7, v7, v{V_ACC+4}
        v_lshrrev_b32 v{V_ACC+4}, 1, v{V_C}
        """)
        for r in range(4): A(f"v_cmp_eq_u32 vcc, {r}, v{V_ACC+4}\nv_cndmask_b32 v{V_MASK+r}, 0, v7, vcc")
        self.stamp("prex")
        self.wait("x1")
        self.stamp("xgot")
        F0, T0 = V_X, V_X + 10
        n0 = len(A.L)
        self.layernorm(XR, F0, T0, XR + 8)
        XO = XR + 8
        A(f"""
        v_mul_u32_u24 v7, {XS}, v6
        v_add_u32 v{V_ACC}, v7, v{V_L16}
        v_lshl_add_u32 v{V_ACC+1}, v{V_L}, 2, v7
        ds_write_b128 v{V_ACC}, {vr(XO,4)} offset:{L_XN}
        ds_write_b32 v{V_ACC+1}, v{XO+4} offset:{L_XN+1024}
        v_bfe_u32 v{V_ACC}, v0, 2, 2
        v_lshlrev_b32 v{V_ACC}, 7, v{V_ACC}
        v_lshl_add_u32 v{V_ACC}, v{V_G}, 10, v{V_ACC}
        v_and_b32 v{V_ACC+1}, 3, v0
        v_lshl_add_u32 v{V_ACC}, v{V_ACC+1}, 3, v{V_ACC}
        v_lshl_add_u32 v{V_ACC}, v6, 5, v{V_ACC}
        v_and_b32 v{V_ACC+2}, 7, v0
        v_mul_u32_u24 v{V_ACC+1}, {XS}, v{V_ACC+2}
        v_lshl_add_u32 v{V_ACC+1}, v{V_G}, 4, v{V_ACC+1}
        s_and_b32 s{S_T2}, s{S_B}, 3
        s_mul_i32 s{S_T1}, s{S_T2}, 320
        v_add_u32 v{V_ACC+1}, s{S_T1}, v{V_ACC+1}
        v_lshlrev_b32 v{V_SC}, 6, v{V_ACC+2}
        v_lshl_add_u32 v{V_SC}, v{V_G}, 4, v{V_SC}
        v_lshl_add_u32 v{V_SC}, v6, 9, v{V_SC}
        v_lshl_add_u32 v{V_SC+1}, v6, 9, v{V_L16}
        v_bfe_u32 v{V_ACC+2}, v0, 2, 3
        v_lshlrev_b32 v{V_ACC+2}, 11, v{V_ACC+2}
        v_lshl_add_u32 v{V_ACC+2}, v6, 6, v{V_ACC+2}
        v_and_b32 v7, 3, v0
        v_lshl_add_u32 v{V_ACC+2}, v7, 4, v{V_ACC+2}
        s_lshl_b32 s{S_T1}, s{S_H}, 14
        s_lshl_b32 s{S_T2}, s{S_T2}, 9
        s_add_u32 s{S_T1}, s{S_T1}, s{S_T2}
        s_lshr_b32 s{S_T2}, s{S_B}, 2
        s_lshl_b32 s{S_T2}, s{S_T2}, 8
        s_add_u32 s{S_T1}, s{S_T1}, s{S_T2}
        s_add_u32 s{S_T1}, s{S_T1}, {WS_QPART}
        """)
        body = A.L[n0:]; del A.L[n0:]
        kn = self.k0
        step = len(body) // (self.npre + 1) if self.npre else 10**9
        for i, line in enumerate(body):
            if i and i % step == 0 and kn < self.k0 + self.npre: ldK(kn); kn += 1
            A(line)
        self.wait("wq2")
        A("s_waitcnt lgkmcnt(0)\ns_barrier")
        self.stamp("bar1")
        A(f"s_add_u32 s{S_EP}, s{S_EP}, 1\ns_and_b32 s{S_T4}, s{S_EP}, 15")
        A(f"""
        s_mov_b32 s{S_A2}, s{S_T1}
        s_getreg_b32 s{S_SIG}, hwreg(HW_REG_XCC_ID, 0, 4)
        s_lshl_b32 s{S_T2}, s{S_EP}, 4
        s_or_b32 s{S_SIG}, s{S_SIG}, s{S_T2}
        s_and_b32 s{S_XT}, s2, 7
        s_lshl_b32 s{S_XT}, s{S_XT}, 8
        s_add_u32 s{S_XT}, s{S_XT}, {WS_XCT}
        s_lshr_b32 s{S_T2}, s2, 3
        s_lshl_b32 s{S_T2}, s{S_T2}, 2
        v_mov_b32 v{V_SC+2}, s{S_T2}
        v_mov_b32 v{V_SC+3}, s{S_SIG}
        v_and_b32 v{V_SC+4}, 31, v0
        v_lshlrev_b32 v{V_SC+4}, 2, v{V_SC+4}
        s_cmp_eq_u32 s{S_W}, 7
        s_cbranch_scc0 L_nosig
        s_mov_b64 exec, 1
        buffer_store_dword v{V_SC+3}, v{V_SC+2}, {srd(R_WS)}, s{S_XT} offen
        s_mov_b64 exec, -1
        L_nosig:
        """)
        A(f"s_cmp_lt_u32 s{S_W}, 4\ns_cbranch_scc0 L_noq")
        for s in range(5):
            for hf in range(2): A(f"ds_read_b64_tr_b16 {vr(F0+4*s+2*hf,2)}, v{V_ACC} offset:{L_W+4096*s+512*hf}")
            A(f"ds_read_b128 {vr(F0+20+4*s,4)}, v{V_ACC+1} offset:{L_XN+64*s}")
        for s in range(5):
            A(f"s_waitcnt lgkmcnt({12-3*s})")
            A(f"v_mfma_f32_16x16x32_bf16 {vr(V_ACC+4,4)}, {vr(F0+4*s,4)}, {vr(F0+20+4*s,4)}, {vr(V_ACC+4,4) if s else '0'}")
        for i in range(4): A(f"v_and_or_b32 v{V_ACC+4+i}, v{V_ACC+4+i}, -16, s{S_T4}")
        A(f"ds_write_b128 v{V_SC}, {vr(V_ACC+4,4)} offset:{L_RED}\ns_mov_b32 exec_hi, 0\ns_waitcnt lgkmcnt(0)")
        A(f"ds_read_b128 {vr(V_ACC+4,4)}, v{V_SC+1} offset:{L_RED}\ns_waitcnt lgkmcnt(0)")
        A("s_mov_b64 exec, -1\nL_noq:")
        if self.tlb:
            A(f"""
            s_cmp_eq_u32 s{S_W}, 5
            s_cbranch_scc0 L_notlb
            s_load_dword s{S_T0}, s[{R_V}:{R_V+1}], 0x0
            v_readfirstlane_b32 s{S_T2}, v{V_F}
            s_and_b32 s{S_T2}, s{S_T2}, -4
            s_load_dword s{S_T1}, s[{R_F}:{R_F+1}], s{S_T2}
            s_load_dword s{S_T3}, s[{S_OUT}:{S_OUT+1}], 0x0
            s_waitcnt lgkmcnt(0)
            L_notlb:
            """)
        self.stamp("qpub")
        self.setthr()
        seq = []
        for t in range(kn, 32):
            if t in self.wpos and not self.wo_late: seq.append(("W", self.wpos.index(t)))
            seq.append(("K", t))
        self.qbar_done = False
        fpos = []
        for t in range(32):
            if t in fpos: seq.append(("F", t))
            if t == 12: seq.append(("T", 0))
            if t == 7: seq.append(("P", 0))
            if t == self.pfw and self.wo_late: seq.append(("R", 0))
            if t == self.pfg: seq.append(("R", 1))
            if t == self.pfc: seq.append(("R", 2))
            seq.append(("V", t))
        if self.pfg == 32: seq.append(("R", 1))
        self.pvdone = -1; self.smax_done = False
        pos = 0
        def ldFx(t):
            assert self.smax_done
            A(f"s_cmp_eq_u32 s{S_ROLE}, 3\ns_cbranch_scc1 L_nof{t}")
            self.ldF()
            A(f"L_nof{t}:")
        def ldW(i):
            assert self.qbar_done
            A(f"s_cmp_eq_u32 s{S_ROLE}, 3\ns_cbranch_scc0 L_now{i}")
            self.ldF(); A(f"v_xor_b32 v{V_F}, 64, v{V_F}")
            A(f"L_now{i}:")
            if i >= 4 - self.nf_in:
                A(f"s_cmp_eq_u32 s{S_ROLE}, 1\ns_cbranch_scc0 L_noc{i}")
                self.ldC()
                A(f"L_noc{i}:")
        def ldT(_):
            self.tail_setup()
        def nxt(D=0):
            nonlocal pos
            k, t = seq[pos]; pos += 1
            if k in "KVPWR": self.throttle(D)
            {"K": ldK, "V": ldV, "F": ldFx, "T": ldT, "W": ldW, "R": self.prefetch, "P": self.xct_load}[k](t)
        def until(item, D=0):
            while f"{item[0]}{item[1]}" not in self.vm: nxt(D)
        for i in range(self.freeq): nxt(self.x2)
        until(("K", self.qpubpos - self.D + 1))
        self.issue("xt0", f"buffer_load_dword v{V_SC+5}, v{V_SC+4}, {srd(R_WS)}, s{S_XT} offen sc1")
        A(f"""
        s_cmp_eq_u32 s{S_W}, 4
        s_cbranch_scc0 L_noclr
        s_lshr_b32 s{S_A2}, s2, 3
        s_mul_i32 s{S_A2}, s{S_A2}, 768
        s_add_u32 s{S_A2}, s{S_A2}, s{S_GRP}
        v_mov_b32 v{V_ACC+2}, v{V_L16}
        v_mov_b32 v{V_ACC+4}, -1
        v_mov_b32 v{V_ACC+5}, -1
        v_mov_b32 v{V_ACC+6}, -1
        v_mov_b32 v{V_ACC+7}, -1
        L_noclr:
        """)
        until(("K", self.qpubpos), 1)
        self.wait("xt0")
        A(f"v_cmp_ne_u32 s[{S_M}:{S_M+1}], s{S_SIG}, v{V_SC+5}\ns_cmp_eq_u64 s[{S_M}:{S_M+1}], 0\ns_cselect_b32 s{S_LOC}, {1 if self.local else 0}, 0")
        A(f"s_cmp_lt_u32 s{S_W}, 5\ns_cbranch_scc0 L_noq2\ns_cmp_eq_u32 s{S_W}, 4\ns_cselect_b32 exec_hi, 0xffff, 0")
        self.setloc()
        if self.stamps and "qloc" in self.stamps: A("s_cbranch_scc0 L_nqs"); self.stamp("qloc"); A("L_nqs:")
        self.lstore(f"buffer_store_dwordx4 {vr(V_ACC+4,4)}, v{V_ACC+2}, {srd(R_WS)}, s{S_A2} offen")
        A("s_mov_b64 exec, -1\nL_noq2:")
        nclr = len(self.vm)
        until(("K", self.qpos))
        A(f"""
        s_cmp_eq_u32 s{S_W}, 4
        s_cbranch_scc0 L_nocnt
        s_waitcnt vmcnt({len(self.vm) - nclr})
        s_mov_b64 exec, 1
        """)
        self.setloc()
        self.lstore(f"buffer_store_dword v{V_SC+3}, v{V_SC+2}, {srd(R_WS)}, s{S_XT} offen offset:128")
        A("s_mov_b64 exec, -1\nL_nocnt:")
        self.setthr()
        QA = V_X
        A(f"""
        v_lshlrev_b32 v{QA}, 2, v0
        s_lshl_b32 s{S_T1}, s{S_H}, 14
        s_lshl_b32 s{S_T2}, s{S_B}, 11
        s_add_u32 s{S_T1}, s{S_T1}, s{S_T2}
        s_add_u32 s{S_T1}, s{S_T1}, {WS_QPART}
        v_bfe_u32 v{QA+2}, v0, 2, 2
        v_lshlrev_b32 v{QA+2}, 9, v{QA+2}
        v_lshl_add_u32 v{QA+2}, v{V_G}, 7, v{QA+2}
        v_and_b32 v7, 3, v0
        v_lshl_add_u32 v{QA+2}, v7, 5, v{QA+2}
        """)
        qtxt = f"buffer_load_dword v{QA+4}, v{QA}, {srd(R_WS)}, s{S_T1} offen {self.qflags}"
        self.issue("qg", qtxt)
        for _ in range(self.D - 1): nxt(self.x1)
        nxt(self.x1)
        self.wait("qg")
        A("L_qchk:")
        A(f"v_xor_b32 v{QA+4}, s{S_T4}, v{QA+4}\nv_and_b32 v6, 15, v{QA+4}\nv_cmp_ne_u32 vcc, 0, v6")
        A("s_cbranch_vccz L_qok")
        A(qtxt + "\ns_waitcnt vmcnt(0)")
        self.spin_guard("L_qchk")
        A("L_qok:")
        self.setthr()
        self.stamp("qgot")
        A(f"ds_write_b32 v{QA}, v{QA+4} offset:{L_QP}")
        until(("K", self.qbar - 2))
        until(("K", self.qbar), self.x2)
        A("s_waitcnt lgkmcnt(0)\ns_barrier")
        self.stamp("qbar"); self.qbar_done = True
        for hf in range(2): A(f"ds_read_b128 {vr(V_ACC+4*hf,4)}, v{QA+2} offset:{L_QP+hf*16}")
        nxt(self.x1)
        A("s_waitcnt lgkmcnt(0)")
        for m in ("row_ror:8", "row_ror:4"):
            for i in range(8): A(f"v_add_f32_dpp v{V_ACC+i}, v{V_ACC+i}, v{V_ACC+i} {m} {DPPF}")
        for i in range(4): A(f"v_cvt_pk_bf16_f32 v{V_ACC+i}, v{V_ACC+2*i}, v{V_ACC+2*i+1}")
        nxt(self.x1)
        for u in range(4):
            A(f"s_mov_b32 s{S_M}, {0x000F000F << (4*u)}\ns_mov_b32 s{S_M+1}, {0x000F000F << (4*u)}")
            for r in range(4): A(f"v_cndmask_b32 v{V_Q+4*u+r}, 0, v{V_ACC+r}, s[{S_M}:{S_M+1}]")
        def extract(T):
            a = V_ACC + 4 * (T & 1)
            A(f"v_mov_b32_dpp v{V_SC+T}, v{a} quad_perm:[0,0,0,0] {DPPF}")
            for q in range(1, 4): A(f"v_add_f32_dpp v{V_SC+T}, v{a+q}, v{V_SC+T} quad_perm:[{q},{q},{q},{q}] {DPPF}")
        for T in range(8):
            a = V_ACC + 4 * (T & 1)
            until(("K", 4*T+3))
            while len(self.vm) - 1 - self.vm.index(f"K{4*T+3}") < self.D - 1:
                k, t = seq[pos]
                if k == "V": assert t < 4 * T, (t, T)
                nxt()
            self.wait(f"K{4*T+3}")
            for u in range(4):
                A(f"v_mfma_f32_16x16x32_bf16 {vr(a,4)}, {vr(V_Q+4*u,4)}, {vr(slot(4*T+u),4)}, {vr(a,4) if u else '0'}")
            if T: extract(T - 1)
        nxt()
        extract(7)
        t0 = V_ACC
        for a in range(4):
            x, y = V_SC + 2*a, V_SC + 2*a + 1
            self.rnd_pair(x, y, t0 + a)
            A(f"v_mul_f32 v{x}, 0x3db504f3, v{x}\nv_mul_f32 v{y}, 0x3db504f3, v{y}")
            self.rnd_pair(x, y, t0 + a)
        m, tm, l = V_Q, V_Q + 2, V_Q + 1
        A(f"v_max3_f32 v{m}, v{V_SC}, v{V_SC+1}, v{V_SC+2}\nv_max3_f32 v{tm}, v{V_SC+3}, v{V_SC+4}, v{V_SC+5}")
        A(f"v_max3_f32 v{m}, v{m}, v{V_SC+6}, v{V_SC+7}\nv_max_f32 v{m}, v{m}, v{tm}")
        self.allred("v_max_f32", m, tm)
        for i in range(8): A(f"v_sub_f32 v{t0+i}, v{V_SC+i}, v{m}")
        for i in range(8): A(f"v_mul_f32 v{t0+i}, {LOG2E}, v{t0+i}")
        for i in range(8): A(f"v_exp_f32 v{t0+i}, v{t0+i}")
        for i in range(4): A(f"v_add_f32 v{t0+i}, v{t0+i}, v{t0+4+i}")
        A(f"v_add_f32 v{t0}, v{t0}, v{t0+2}\nv_add_f32 v{t0+1}, v{t0+1}, v{t0+3}\nv_add_f32 v{l}, v{t0}, v{t0+1}")
        self.allred("v_add_f32", l, tm)
        A(f"""
        s_lshl_b32 s{S_T1}, s{S_W}, 3
        v_mov_b32 v7, s{S_T1}
        ds_write_b64 v7, {vr(m,2)} offset:{L_SM}
        v_and_b32 v7, 7, v0
        v_lshlrev_b32 v7, 3, v7
        """)
        for i in range(self.vextra):
            if seq[pos][0] == "V": nxt(self.x2)
        A(f"s_waitcnt lgkmcnt(0)\ns_barrier\nds_read_b64 {vr(m,2)}, v7 offset:{L_SM}")
        self.stamp("smax"); self.smax_done = True
        nxt(self.x1)
        A("s_waitcnt lgkmcnt(0)")
        A(f"v_max_f32_dpp v{tm}, v{m}, v{m} quad_perm:[1,0,3,2] {DPPF}")
        for md in ("quad_perm:[2,3,0,1]", "row_half_mirror"): A(f"v_max_f32_dpp v{tm}, v{tm}, v{tm} {md} {DPPF}")
        A(f"v_sub_f32 v{m}, v{m}, v{tm}\nv_mul_f32 v{m}, {LOG2E}, v{m}\nv_exp_f32 v{m}, v{m}")
        for i in range(8): A(f"v_sub_f32 v{V_SC+i}, v{V_SC+i}, v{tm}")
        A(f"v_mul_f32 v{l}, v{l}, v{m}")
        for i in range(8): A(f"v_mul_f32 v{V_SC+i}, {LOG2E}, v{V_SC+i}")
        for md in ("quad_perm:[1,0,3,2]", "quad_perm:[2,3,0,1]", "row_half_mirror"):
            A(f"v_add_f32_dpp v{l}, v{l}, v{l} {md} {DPPF}")
        for i in range(8): A(f"v_exp_f32 v{V_SC+i}, v{V_SC+i}")
        A(f"v_rcp_f32 v{l}, v{l}")
        nxt(self.x1)
        for i in range(8): A(f"v_mul_f32 v{V_SC+i}, v{V_SC+i}, v{l}")
        for i in range(8): A(f"v_cvt_pk_bf16_f32 v{V_SC+i}, v{V_SC+i}, v{V_SC+i}")
        if self.klin:
            A(f"v_bfe_u32 v7, v0, 2, 2\nv_lshlrev_b32 v7, 6, v7\nv_lshl_add_u32 v7, v{V_G}, 4, v7")
            for i in range(8): A(f"ds_bpermute_b32 v{V_SC+i}, v7, v{V_SC+i}")
            A("s_waitcnt lgkmcnt(0)")
        oacc = V_ACC
        def mkA(t):
            a = V_Q + 4 * (t & 1)
            for r in range(4): A(f"v_and_b32_dpp v{a+r}, v{V_SC+(t>>2)}, v{V_MASK+r} row_newbcast:{4*(t&3)} {DPPF}")
        def pvstep(t):
            if t < 31: mkA(t + 1)
            self.wait(f"V{t}")
            A(f"v_mfma_f32_16x16x32_bf16 {vr(oacc,4)}, {vr(V_Q+4*(t&1),4)}, {vr(slot(t),4)}, {vr(oacc,4) if t else '0'}")
        mkA(0)
        t = 0
        while True:
            until(("V", t))
            while pos < len(seq) and len(self.vm) - 1 - self.vm.index(f"V{t}") < self.D - 1: nxt()
            if pos == len(seq) and self.wo_late: break
            pvstep(t); t += 1
            if t == 32: break
        if self.wo_late:
            save = (list(self.vm), self.done, set(self.stamped))
            A(f"s_cmp_eq_u32 s{S_ROLE}, 3\ns_cbranch_scc1 L_pvwo")
            for variant in (0, 1):
                self.vm, self.done, self.stamped = list(save[0]), save[1], set(save[2])
                if variant: A("L_pvwo:")
                nw = 0
                for tt in range(t, 32):
                    if variant and nw < 4 and tt > t: self.ldF(f"W{nw}", fl=""); nw += 1
                    pvstep(tt)
                if variant:
                    while nw < 4: self.ldF(f"W{nw}", fl=""); nw += 1
                else: A("s_branch L_pvdone")
            A("L_pvdone:")
        self.stamp("pv")
        if "notail" not in self.dbg: self.tail()
        if self.stamps:
            self.stamp("end")
            A(f"""
            s_waitcnt vmcnt(0) lgkmcnt(0)
            s_add_u32 s{S_WS}, s{S_WS}, {WS_STAMP}
            s_addc_u32 s{S_WS+1}, s{S_WS+1}, 0
            s_lshl_b32 s{S_T1}, s2, 3
            s_add_u32 s{S_T1}, s{S_T1}, s{S_W}
            s_lshl_b32 s{S_T1}, s{S_T1}, 6
            v_mov_b32 v6, s{S_T1}
            """)
            for i in range(14): A(f"v_mov_b32 v{slot(0)+i}, s{S_ST+i}")
            A(f"v_mov_b32 v{slot(0)+14}, s{S_ROLE}\nv_mov_b32 v{slot(0)+15}, 0x80000000\ns_mov_b64 exec, 1")
            for i in range(4): A(f"global_store_dwordx4 v6, {vr(slot(i),4)}, s[{S_WS}:{S_WS+1}] offset:{16*i}")
        A("L_end:\ns_endpgm")
        A('.section .rodata,"a"\n.p2align 6')
        A(f".amdhsa_kernel {NAME}_kernel")
        A("""
        .amdhsa_next_free_vgpr 256
        .amdhsa_next_free_sgpr 102
        .amdhsa_accum_offset 256
        .amdhsa_group_segment_fixed_size 0
        .amdhsa_kernarg_size 104
        .amdhsa_user_sgpr_count 2
        .amdhsa_user_sgpr_kernarg_segment_ptr 1
        .amdhsa_system_sgpr_workgroup_id_x 1
        .amdhsa_float_denorm_mode_32 3
        .end_amdhsa_kernel
        """)
        txt = A.finish()
        import re
        out = []
        for l in txt.split("\n"):
            if "nowq" in self.dbg and f"s_mov_b32 s{R_WQ+2}," in l: l = f"s_mov_b32 s{R_WQ+2}, 0x100000\nv_mov_b32 v{V_ACC+2}, 0x200000"
            if "nox" in self.dbg.split() and "global_load" in l and f"s[{S_X}:{S_X+1}]" in l and "v59" not in l: l = f"buffer_load_dword v{V_Q}, v{V_ACC+2}, {srd(R_WQ)}, 0 offen"
            if "now" in self.dbg.split() and "L_now" in l and "cbranch" in l: l = l.replace("s_cbranch_scc0", "s_branch")
            if "nost" in self.dbg and "store" in l and "sc1" in l: l = "s_nop 0"
            if "nost" in self.dbg and ("s_cbranch_vccz L_qok" in l or "s_cbranch_vccz L_xok" in l): l = l.replace("s_cbranch_vccz", "s_branch")
            if "xnont" in self.dbg and "global_load" in l and f"s[{S_X}:{S_X+1}]" in l: l = l.replace(" nt", "")
            if "noclr" in self.dbg and "buffer_store_dwordx4 v[12:15]" in l: l = "s_nop 0"
            if "noxct" in self.dbg and "global_store_dword v5, v7" in l: l = "s_nop 0"
            if "noxct" in self.dbg and "s_cbranch_vccz L_xok" in l: l = l.replace("s_cbranch_vccz", "s_branch")
            if "qplain" in self.dbg and "buffer_store_dwordx4 v[24:27]" in l: l = l.replace(" sc1", "")
            if "noatom" in self.dbg and "s_atomic_add" in l: l = "s_nop 0"
            if "noatom" in self.dbg and "s_cbranch_scc1 L_xok" in l: l = "s_branch L_xok"
            if "noatom" in self.dbg and "s_cmp_eq_u32 s1, s0" in l: l = "s_cmp_eq_u32 s0, s0"
            if "kvhx" in self.dbg and "s_lshl_b32 s13, s2, 20" in l: l = "s_lshl_b32 s13, s10, 2\ns_lshr_b32 s12, s3, 3\ns_add_u32 s13, s13, s12\ns_lshl_b32 s12, s4, 5\ns_add_u32 s13, s13, s12\ns_lshl_b32 s13, s13, 20"
            if "nobar" in self.dbg and "s_barrier" in l: l = "s_nop 0"
            out.append(l)
        return "\n".join(out)

    OW, OR, OS = V_X, V_X+1, V_X+2
    A0, A1, A2, A3, A4, A5, A6, A7 = [V_X+3+i for i in range(8)]
    XP = V_X + 11; XC = V_X + 12; L4 = V_X + 13; WR = V_X + 16
    WF = V_X + 24

    def lstore(self, txt):
        self.uid += 1
        self.A(f"s_cbranch_scc1 L_ls{self.uid}\n{txt} sc1\ns_branch L_le{self.uid}\nL_ls{self.uid}:\n{txt}\nL_le{self.uid}:")
    def setloc(self):
        self.A(f"s_cmp_eq_u32 s{S_LOC}, 1")

    def xct_load(self, _):
        A = self.A; s = self
        A(f"v_and_b32 v{s.L4}, 31, v0\nv_lshlrev_b32 v{s.L4}, 2, v{s.L4}")
        self.issue("xct", f"buffer_load_dword v{s.XC}, v{s.L4}, {srd(R_WS)}, s{S_XT} offen offset:128 sc1")

    def prefetch(self, k):
        A = self.A
        if k == 0:
            A(f"""
            s_mul_i32 s{S_T0}, s{S_H}, 163840
            s_mul_i32 s{S_T1}, s{S_B}, 20480
            s_add_u32 s{S_T0}, s{S_T0}, s{S_T1}
            s_mul_i32 s{S_T1}, s{S_W}, 2560
            s_add_u32 s{S_T0}, s{S_T0}, s{S_T1}
            s_add_u32 s{S_M}, s{S_WO}, s{S_T0}
            s_addc_u32 s{S_M+1}, s{S_WO+1}, 0
            v_lshlrev_b32 v6, 7, v{V_L}
            s_mov_b64 exec, 0xfffff
            """)
        elif k == 1:
            A(f"""
            s_and_b32 s{S_T0}, s2, 7
            s_mul_i32 s{S_T0}, s{S_T0}, 448
            s_and_b32 s{S_T0}, s{S_T0}, -128
            s_min_u32 s{S_T0}, s{S_T0}, {3456-512}
            s_lshr_b32 s{S_T1}, s2, 3
            s_lshl_b32 s{S_T1}, s{S_T1}, 2
            s_and_b32 s{S_T2}, s{S_W}, 3
            s_add_u32 s{S_T1}, s{S_T1}, s{S_T2}
            s_lshr_b32 s{S_T2}, s{S_T1}, 4
            s_mul_i32 s{S_T2}, s{S_T2}, {80*3456}
            s_and_b32 s{S_T1}, s{S_T1}, 15
            s_mul_i32 s{S_T1}, s{S_T1}, {self.pfn*3456}
            s_add_u32 s{S_T0}, s{S_T0}, s{S_T1}
            s_add_u32 s{S_T0}, s{S_T0}, s{S_T2}
            s_add_u32 s{S_T0}, s{S_T0}, {(80-16*self.pfn)*3456}
            s_cmp_lt_u32 s{S_W}, 4
            s_cselect_b32 s{S_M}, s{S_WG}, s{S_WU}
            s_cselect_b32 s{S_M+1}, s{S_WG+1}, s{S_WU+1}
            s_add_u32 s{S_M}, s{S_M}, s{S_T0}
            s_addc_u32 s{S_M+1}, s{S_M+1}, 0
            v_lshrrev_b32 v6, 2, v{V_L}
            v_mul_u32_u24 v6, 3456, v6
            v_and_b32 v7, 3, v0
            v_lshl_add_u32 v6, v7, 7, v6
            s_mov_b64 exec, {(1 << (4*self.pfn)) - 1}
            """)
        else:
            A(f"""
            s_getpc_b64 s[{S_M}:{S_M+1}]
            L_pc:
            s_lshr_b32 s{S_T0}, s2, 3
            s_and_b32 s{S_T0}, s{S_T0}, 15
            s_lshl_b32 s{S_T0}, s{S_T0}, 3
            s_add_u32 s{S_T0}, s{S_T0}, s{S_W}
            s_lshl_b32 s{S_T0}, s{S_T0}, 7
            s_min_u32 s{S_T0}, s{S_T0}, L_end-L_pc-4
            v_mov_b32 v6, s{S_T0}
            s_mov_b64 exec, 1
            """)
        self.issue(f"pf{k}", f"global_load_dword v45, v6, s[{S_M}:{S_M+1}]")
        A("s_mov_b64 exec, -1")

    def tail_setup(self):
        A = self.A; s = self
        self.wait("xct")
        A(f"""
        L_xchk:
        v_xor_b32 v6, s{S_SIG}, v{s.XC}
        v_cmp_lt_u32 vcc, 15, v6
        s_cbranch_vccz L_xok
        buffer_load_dword v{s.XC}, v{s.L4}, {srd(R_WS)}, s{S_XT} offen offset:128 sc1
        s_waitcnt vmcnt(0)
        """)
        self.spin_guard("L_xchk", 2)
        A(f"""
        L_xok:
        v_cmp_ne_u32 vcc, 0, v6
        s_cmp_eq_u64 vcc, 0
        s_cselect_b32 s{S_LOC}, {1 if self.local else 0}, 0
        v_lshlrev_b32 v{s.L4}, 2, v{V_L}
        v_lshlrev_b32 v{s.OW}, 5, v{V_C}
        v_lshl_add_u32 v{s.OW}, v{V_G}, 4, v{s.OW}
        s_lshl_b32 s{S_T1}, s{S_W}, 9
        v_add_u32 v{s.OW}, s{S_T1}, v{s.OW}
        v_bfe_u32 v7, v0, 5, 1
        v_lshlrev_b32 v{s.OR}, 3, v{V_L}
        v_lshrrev_b32 v6, 2, v{V_L}
        v_lshlrev_b32 v{s.OS}, 7, v6
        v_and_b32 v6, 3, v0
        v_lshl_add_u32 v{s.OS}, v6, 2, v{s.OS}
        s_lshr_b32 s{S_T1}, s{S_H}, 3
        s_lshl_b32 s{S_T1}, s{S_T1}, 7
        s_add_u32 s{S_T1}, s{S_T1}, s{S_B}
        s_lshl_b32 s{S_T1}, s{S_T1}, 4
        v_add_u32 v{s.OS}, s{S_T1}, v{s.OS}
        s_mul_i32 s{S_A3}, s{S_W}, 1280
        s_add_u32 s{S_A3}, s{S_A3}, s{S_GRP}
        s_add_u32 s{S_A3}, s{S_A3}, {G_H}
        v_and_b32 v5, 7, v0
        v_bfe_u32 v6, v0, 3, 1
        s_and_b32 s{S_T0}, s2, 7
        s_and_b32 s{S_T1}, s{S_W}, 3
        s_cmp_eq_u32 s{S_ROLE}, 3
        s_cbranch_scc0 L_tsffn
        """)
        A(f"""
        v_lshlrev_b32 v{s.A0}, 4, v5
        v_lshl_add_u32 v{s.A0}, v6, 9, v{s.A0}
        v_lshl_add_u32 v{s.A0}, v{V_G}, 7, v{s.A0}
        s_cmp_ge_u32 s{S_IDX}, 10
        s_cselect_b32 s{S_A0}, 4096, 0
        s_add_u32 s{S_A0}, s{S_A0}, s{S_GRP}
        v_bfe_u32 v{s.A1}, v0, 3, 2
        v_xor_b32 v{s.A1}, s{S_T1}, v{s.A1}
        v_lshlrev_b32 v{s.A1}, 5, v{s.A1}
        v_and_b32 v{s.A2}, 3, v0
        v_lshl_add_u32 v{s.A1}, v{s.A2}, 3, v{s.A1}
        v_bfe_u32 v{s.A4}, v0, 2, 2
        v_lshl_add_u32 v{s.A1}, v{s.A4}, 7, v{s.A1}
        v_lshl_add_u32 v{s.A1}, v{V_G}, 10, v{s.A1}
        v_add_u32 v{s.A1}, {L_W}, v{s.A1}
        v_lshlrev_b32 v{s.A3}, 4, v5
        v_lshl_add_u32 v{s.A3}, v{V_G}, 7, v{s.A3}
        s_mul_i32 s{S_A1}, s{S_T0}, 20480
        s_lshl_b32 s{S_T2}, s{S_IDX}, 11
        s_add_u32 s{S_A1}, s{S_A1}, s{S_T2}
        s_cmp_ge_u32 s{S_IDX}, 10
        s_cselect_b32 s{S_T2}, {7*20480}, 0
        s_add_u32 s{S_A1}, s{S_A1}, s{S_T2}
        s_lshl_b32 s{S_T2}, s{S_T1}, 9
        s_add_u32 s{S_A1}, s{S_A1}, s{S_T2}
        s_add_u32 s{S_A1}, s{S_A1}, {WS_SLAB}
        v_lshl_add_u32 v{s.A4}, v7, 2, v{s.A4}
        v_mul_u32_u24 v{s.A4}, 20480, v{s.A4}
        v_bfe_u32 v5, v0, 4, 1
        v_lshl_add_u32 v{s.A4}, v5, 6, v{s.A4}
        v_lshl_add_u32 v{s.A4}, v{s.A2}, 4, v{s.A4}
        s_lshl_b32 s{S_T2}, s{S_IDX}, 10
        s_lshl_b32 s{S_T3}, s{S_W}, 7
        s_add_u32 s{S_T2}, s{S_T2}, s{S_T3}
        v_add_u32 v{s.A4}, s{S_T2}, v{s.A4}
        v_lshl_add_u32 v5, v5, 2, v{s.A2}
        v_lshlrev_b32 v{s.A6}, 4, v5
        v_mul_u32_u24 v{s.A5}, 1280, v5
        v_lshl_add_u32 v{s.A5}, v7, 2, v{s.A5}
        s_lshl_b32 s{S_T2}, s{S_IDX}, 6
        s_lshl_b32 s{S_T3}, s{S_W}, 3
        s_add_u32 s{S_T2}, s{S_T2}, s{S_T3}
        v_add_u32 v{s.A5}, s{S_T2}, v{s.A5}
        s_add_u32 s{S_A2}, s{S_GRP}, {G_H}
        s_mov_b32 s84, {WS_SLAB}
        s_mov_b32 s85, {WS_SLAB + 8*20480}
        s_mov_b32 s86, {WS_YP}
        """)
        if self.bmask:
            A(f"""
            v_lshl_add_u32 v{s.A7}, v6, 5, v{s.A5}
            s_cmp_lt_u32 s{S_W}, 4
            s_cbranch_scc0 L_noxp
            s_mov_b32 exec_lo, 0x0f0f0f0f
            s_mov_b32 exec_hi, 0x0f0f0f0f
            global_load_dword v{s.XP}, v{s.A7}, s[{S_X}:{S_X+1}] nt
            s_mov_b64 exec, -1
            L_noxp:
            """)
        else:
            A(f"""
            s_mov_b32 exec_lo, 0x000f000f
            s_mov_b32 exec_hi, 0x000f000f
            global_load_dword v{s.XP}, v{s.A5}, s[{S_X}:{S_X+1}] nt
            s_mov_b64 exec, -1
            """)
        A(f"""
        """)
        if not self.wo_late: self.wofrags()
        if self.srep:
            A(f"""
            s_add_u32 s{S_A1}, s{S_A1}, {WS_SREP - WS_SLAB}
            v_mul_u32_u24 v6, {16*20480}, v6
            v_add_u32 v{s.A3}, v{s.A3}, v6
            s_mul_i32 s84, s{S_T0}, {16*20480}
            s_add_u32 s84, s84, {WS_SREP}
            s_add_u32 s85, s84, {8*20480}
            """)
        A(f"""
        s_and_b32 s{S_T2}, s{S_IDX}, 7
        s_cmp_eq_u32 s{S_T2}, s{S_T0}
        s_cselect_b32 s{S_EJOB}, 1, 0
        s_cbranch_scc0 L_tsdone
        global_load_dwordx4 {vr(s.WR,4)}, v{V_L16}, s[{S_WR}:{S_WR+1}] nt
        global_load_dword v{s.WR+4}, v{s.L4}, s[{S_WR}:{S_WR+1}] offset:1024 nt
        s_mov_b64 exec, 1
        global_load_dword v{s.XC}, v{s.A5}, s[{S_OUT}:{S_OUT+1}] nt
        s_mov_b64 exec, -1
        s_branch L_tsdone
        L_tsffn:
        s_cmp_eq_u32 s{S_ROLE}, 2
        s_cbranch_scc1 L_tsdown
        """)
        A(f"""
        s_lshl_b32 s{S_T2}, s{S_W}, 3
        v_mov_b32 v{s.A0}, s{S_T2}
        v_lshlrev_b32 v{s.A1}, 3, v5
        s_mul_i32 s{S_T2}, s{S_W}, {XS}
        v_add_u32 v{s.A2}, s{S_T2}, v{V_L16}
        v_add_u32 v{s.A3}, s{S_T2}, v{s.L4}
        s_mul_i32 s{S_T2}, s{S_W}, 1056
        v_add_u32 v{s.A5}, s{S_T2}, v{V_L16}
        v_lshlrev_b32 v{s.A6}, 4, v5
        v_mul_u32_u24 v6, {4*1056}, v6
        v_add_u32 v{s.A6}, v{s.A6}, v6
        v_bfe_u32 v6, v0, 4, 1
        v_lshl_add_u32 v{s.A6}, v6, 3, v{s.A6}
        v_lshl_add_u32 v{s.A6}, v7, 8, v{s.A6}
        s_lshr_b32 s{S_T2}, s{S_T1}, 1
        s_lshl_b32 s{S_T2}, s{S_T2}, 7
        s_and_b32 s{S_T3}, s{S_T1}, 1
        s_lshl_b32 s{S_T3}, s{S_T3}, 9
        s_add_u32 s{S_T2}, s{S_T2}, s{S_T3}
        v_add_u32 v{s.A6}, s{S_T2}, v{s.A6}
        v_mul_u32_u24 v{s.A4}, {XS}, v5
        v_lshl_add_u32 v{s.A4}, v{V_G}, 4, v{s.A4}
        s_mul_i32 s{S_T2}, s{S_T1}, 320
        v_add_u32 v{s.A4}, s{S_T2}, v{s.A4}
        v_bfe_u32 v{s.A7}, v0, 2, 2
        v_lshlrev_b32 v{s.A7}, 6, v{s.A7}
        v_and_b32 v6, 3, v0
        v_lshl_add_u32 v{s.A7}, v6, 3, v{s.A7}
        v_lshl_add_u32 v{s.A7}, v{V_G}, 9, v{s.A7}
        v_add_u32 v{s.A7}, s{S_LM0}, v{s.A7}
        v_lshlrev_b32 v{s.XP}, 4, v5
        v_lshl_add_u32 v{s.XP}, v{V_G}, 2, v{s.XP}
        s_lshl_b32 s{S_A2}, s{S_IDX}, 9
        s_lshl_b32 s{S_T2}, s{S_T1}, 7
        s_add_u32 s{S_A2}, s{S_A2}, s{S_T2}
        s_branch L_tsdone
        L_tsdown:
        v_lshlrev_b32 v{s.A0}, 4, v5
        v_lshl_add_u32 v{s.A0}, v6, 9, v{s.A0}
        v_lshl_add_u32 v{s.A0}, v{V_G}, 7, v{s.A0}
        s_lshl_b32 s{S_T2}, s{S_T1}, 2
        v_bfe_u32 v{s.A1}, v0, 1, 1
        v_add_u32 v{s.A1}, s{S_T2}, v{s.A1}
        v_bfe_u32 v{s.A2}, v0, 2, 2
        v_lshlrev_b32 v{s.A3}, 1, v{s.A2}
        v_xor_b32 v{s.A1}, v{s.A1}, v{s.A3}
        v_lshlrev_b32 v{s.A1}, 4, v{s.A1}
        v_lshl_add_u32 v{s.A1}, v{s.A2}, 8, v{s.A1}
        v_and_b32 v{s.A2}, 1, v0
        v_lshl_add_u32 v{s.A1}, v{s.A2}, 3, v{s.A1}
        v_lshl_add_u32 v{s.A1}, v{V_G}, 14, v{s.A1}
        v_add_u32 v{s.A1}, {L_W}, v{s.A1}
        v_xor_b32 v{s.A2}, 32, v{s.A1}
        v_xor_b32 v{s.A6}, 128, v{s.A1}
        v_xor_b32 v{s.A7}, 160, v{s.A1}
        v_mov_b32 v{s.A3}, v{s.A0}
        s_mul_i32 s{S_A1}, s{S_T0}, 20480
        s_lshl_b32 s{S_T2}, s{S_IDX}, 12
        s_add_u32 s{S_A1}, s{S_A1}, s{S_T2}
        s_lshl_b32 s{S_T2}, s{S_T1}, 10
        s_add_u32 s{S_A1}, s{S_A1}, s{S_T2}
        s_add_u32 s{S_A1}, s{S_A1}, {WS_YP}
        L_tsdone:
        """)
        self.setthr()

    def wofrags(self):
        for st in range(8):
            for hf in range(2): self.A(f"ds_read_b64_tr_b16 {vr(self.WF+4*st+2*hf,2)}, v{self.A1} offset:{4096*st+512*hf}")
            if st == 6: self.A("s_waitcnt lgkmcnt(8)")
    def red_lanes(self, P):
        A = self.A
        A(f"v_permlane32_swap_b32 v{P}, v{P+2}\nv_permlane32_swap_b32 v{P+1}, v{P+3}")
        A(f"v_add_f32 v{P}, v{P}, v{P+2}\nv_add_f32 v{P+1}, v{P+1}, v{P+3}")
        for md in ("row_ror:8", "row_ror:4"):
            for i in range(2): A(f"v_add_f32_dpp v{P+i}, v{P+i}, v{P+i} {md} {DPPF}")
    def hpoll(self, lab, HR):
        A = self.A; s = self
        A(f"L_{lab}poll:")
        A(f"buffer_load_dwordx4 {vr(HR,4)}, v{V_L16}, {srd(R_WS)}, s{S_A3} offen sc1")
        A(f"buffer_load_dword v{HR+4}, v{s.L4}, {srd(R_WS)}, s{S_A3} offen offset:1024 sc1")
        A("s_waitcnt vmcnt(0)")
        self.sentinel(HR, 5, 6)
        A(f"s_cbranch_vccz L_{lab}ok")
        self.spin_guard(f"L_{lab}poll")
        A(f"L_{lab}ok:")

    def tail(self):
        A = self.A; s = self
        oacc = V_ACC; P = slot(0); WF = s.WF
        A(f"""
        s_cmp_eq_u32 s{S_W}, 0
        s_mov_b32 exec_hi, 0
        s_nop 4
        ds_write_b128 v{s.OW}, {vr(oacc,4)} offset:{L_QP}
        s_mov_b64 exec, -1
        s_waitcnt lgkmcnt(0)
        s_barrier
        s_cbranch_scc0 L_noopub
        """)
        for i in range(4): A(f"ds_read2st64_b64 {vr(P+4*i,4)}, v{s.OR} offset0:{L_QP//512+2*i} offset1:{L_QP//512+2*i+1}")
        self.setloc()
        A("s_waitcnt lgkmcnt(2)")
        A(f"v_pk_add_f32 {vr(P,2)}, {vr(P,2)}, {vr(P+2,2)}\nv_pk_add_f32 {vr(P+4,2)}, {vr(P+4,2)}, {vr(P+6,2)}\nv_pk_add_f32 {vr(P,2)}, {vr(P,2)}, {vr(P+4,2)}")
        A("s_waitcnt lgkmcnt(0)")
        A(f"v_pk_add_f32 {vr(P+8,2)}, {vr(P+8,2)}, {vr(P+10,2)}\nv_pk_add_f32 {vr(P+12,2)}, {vr(P+12,2)}, {vr(P+14,2)}")
        A(f"v_pk_add_f32 {vr(P,2)}, {vr(P,2)}, {vr(P+8,2)}\nv_pk_add_f32 {vr(P,2)}, {vr(P,2)}, {vr(P+12,2)}")
        A(f"v_cvt_pk_bf16_f32 v{P}, v{P}, v{P+1}\nv_min_u32 v{P}, -2, v{P}")
        self.lstore(f"buffer_store_dword v{P}, v{s.OS}, {srd(R_WS)}, s{S_GRP} offen")
        A("L_noopub:")
        self.stamp("opub")
        A(f"s_cmp_eq_u32 s{S_ROLE}, 3\ns_cbranch_scc0 L_ffn")
        if self.wo_late:
            A(f"""
            s_cmp_eq_u32 s{S_W}, 0
            s_cbranch_scc1 L_w0
            s_waitcnt vmcnt(0)
            L_w0:
            s_waitcnt vmcnt(1)
            s_cmp_lt_u32 s{S_W}, 4
            s_barrier
            s_cbranch_scc1 L_low
            """)
            self.stamp("wogot")
            self.wofrags()
        else: A(f"s_cmp_lt_u32 s{S_W}, 4\ns_cbranch_scc1 L_low")
        A("L_opoll:")
        for u in range(4): A(f"buffer_load_dwordx4 {vr(P+4*u,4)}, v{s.A0}, {srd(R_WS)}, s{S_A0} offen offset:{1024*u} sc1")
        A("s_waitcnt vmcnt(0) lgkmcnt(0)")
        self.sentinel(P, 16, 6)
        A("s_cbranch_vccz L_ook")
        self.spin_guard("L_opoll")
        A("L_ook:")
        self.stamp("ook")
        D = slot(4)
        for u in range(4):
            for par in range(2):
                d = D + 4*par
                A(f"v_mfma_f32_16x16x32_bf16 {vr(d,4)}, {vr(WF+4*(2*u+par),4)}, {vr(P+4*u,4)}, {vr(d,4) if u else '0'}")
        if self.srep:
            R = slot(6)
            for i in range(4): A(f"v_add_f32_dpp v{R+i}, v{D+4+i}, v{D+i} row_ror:8 row_mask:0xf bank_mask:0x3")
            for i in range(4): A(f"v_add_f32_dpp v{R+i}, v{D+i}, v{D+4+i} row_ror:8 row_mask:0xf bank_mask:0xc")
            for i in range(4): A(f"v_and_or_b32 v{R+i}, v{R+i}, -16, s{S_T4}")
            for r in range(4):
                A(f"buffer_store_dwordx4 {vr(R,4)}, v{s.A3}, {srd(R_WS)}, s{S_A1} offen sc1")
                if r < 3: A(f"s_add_u32 s{S_A1}, s{S_A1}, {2*16*20480}")
        else:
            for i in range(4): A(f"v_add_f32_dpp v{D+i}, v{D+4+i}, v{D+i} row_ror:8 {DPPF}")
            A("s_mov_b32 exec_lo, 0x00ff00ff\ns_mov_b32 exec_hi, 0x00ff00ff")
            for i in range(4): A(f"v_and_or_b32 v{D+i}, v{D+i}, -16, s{S_T4}")
            A(f"buffer_store_dwordx4 {vr(D,4)}, v{s.A3}, {srd(R_WS)}, s{S_A1} offen sc1")
            A("s_mov_b64 exec, -1")
        self.stamp("slab")
        P = slot(8); HP = P + 20
        if not self.bmask:
            A("L_low:\ns_barrier")
            A(f"v_lshlrev_b32 v{P+8}, 16, v{s.XP}\nv_and_b32 v{P+9}, 0xffff0000, v{s.XP}")
            A("L_redpoll:")
            for t in range(2): A(f"buffer_load_dwordx4 {vr(P+4*t,4)}, v{s.A4}, {srd(R_WS)}, s{84+t} offen sc1")
            A("s_waitcnt vmcnt(0)")
            self.tagcheck(P, 8, 6, S_T4, 15)
            A("s_cbranch_vccz L_redok")
            self.spin_guard("L_redpoll")
            A("L_redok:")
            self.stamp("redok")
            for hh in (0, 2): A(f"v_pk_add_f32 {vr(P+hh,2)}, {vr(P+hh,2)}, {vr(P+4+hh,2)}")
            self.setloc()
            self.red_lanes(P)
            self.rnd_pair(P, P + 1, P + 2)
            A(f"""
            v_add_f32 v{P}, v{P}, v{P+8}
            v_add_f32 v{P+1}, v{P+1}, v{P+9}
            v_cvt_pk_bf16_f32 v{HP}, v{P}, v{P+1}
            s_mov_b32 exec_lo, 0x000f000f
            s_mov_b32 exec_hi, 0x000f000f
            v_min_u32 v{HP}, -2, v{HP}
            """)
            self.lstore(f"buffer_store_dword v{HP}, v{s.A5}, {srd(R_WS)}, s{S_A2} offen")
            A(f"s_mov_b64 exec, -1")
        else:
            A("s_branch L_bdone\nL_low:")
            A(f"v_lshlrev_b32 v{P+16}, 16, v{s.XP}\nv_and_b32 v{P+17}, 0xffff0000, v{s.XP}")
            A("L_redpoll:")
            for tl in range(2):
                for t in range(2): A(f"buffer_load_dwordx4 {vr(P+8*tl+4*t,4)}, v{s.A4}, {srd(R_WS)}, s{84+t} offen offset:{512*tl} sc1")
            A("s_waitcnt vmcnt(0)")
            self.tagcheck(P, 16, 6, S_T4, 15)
            A("s_and_b64 exec, exec, vcc\ns_cbranch_execz L_redok")
            self.spin_guard("L_redpoll")
            A("L_redok:\ns_mov_b64 exec, -1")
            self.stamp("redok")
            for tl in range(2):
                for hh in (0, 2): A(f"v_pk_add_f32 {vr(P+8*tl+hh,2)}, {vr(P+8*tl+hh,2)}, {vr(P+8*tl+4+hh,2)}")
            self.setloc()
            for tl in range(2): A(f"v_permlane32_swap_b32 v{P+8*tl}, v{P+8*tl+2}\nv_permlane32_swap_b32 v{P+8*tl+1}, v{P+8*tl+3}")
            for tl in range(2): A(f"v_pk_add_f32 {vr(P+8*tl,2)}, {vr(P+8*tl,2)}, {vr(P+8*tl+2,2)}")
            for i in range(2): A(f"v_add_f32_dpp v{P+4+i}, v{P+i}, v{P+i} row_ror:8 row_mask:0xf bank_mask:0x3")
            for i in range(2): A(f"v_add_f32_dpp v{P+4+i}, v{P+8+i}, v{P+8+i} row_ror:8 row_mask:0xf bank_mask:0xc")
            for i in range(2): A(f"v_add_f32_dpp v{P+i}, v{P+4+i}, v{P+4+i} row_shl:4 {DPPF}")
            self.rnd_pair(P, P + 1, P + 2)
            A(f"""
            v_add_f32 v{P}, v{P}, v{P+16}
            v_add_f32 v{P+1}, v{P+1}, v{P+17}
            s_mov_b32 exec_lo, 0x0f0f0f0f
            s_mov_b32 exec_hi, 0x0f0f0f0f
            v_cvt_pk_bf16_f32 v{HP}, v{P}, v{P+1}
            v_min_u32 v{HP}, -2, v{HP}
            """)
            self.lstore(f"buffer_store_dword v{HP}, v{s.A7}, {srd(R_WS)}, s{S_A2} offen")
            A(f"s_mov_b64 exec, -1")
        self.stamp("hpub")
        A(f"L_bdone:\ns_cmp_eq_u32 s{S_EJOB}, 0\ns_cbranch_scc1 L_fin")
        HR = slot(14); HO = slot(16); F1 = slot(18); T1 = slot(21)
        self.hpoll("e", HR)
        self.layernorm(HR, F1, T1, HO, keep=(F1+10, F1+11))
        for i in range(5):
            A(f"v_lshlrev_b32 v{F1+2*i}, 16, v{HO+i}\nv_and_b32 v{F1+2*i+1}, 0xffff0000, v{HO+i}")
            A(f"v_lshlrev_b32 v{T1+2*i}, 16, v{s.WR+i}\nv_and_b32 v{T1+2*i+1}, 0xffff0000, v{s.WR+i}")
        A(f"v_mul_f32 v6, v{F1}, v{T1}")
        for i in range(1, 10): A(f"v_fmac_f32 v6, v{F1+i}, v{T1+i}")
        for md in ("quad_perm:[1,0,3,2]", "quad_perm:[2,3,0,1]"): A(f"v_add_f32_dpp v6, v6, v6 {md} {DPPF}")
        self.allred("v_add_f32", 6, F1)
        self.rnd1(6)
        A(f"v_mul_f32 v6, 0xbfb8aa3b, v6\nv_exp_f32 v6, v6\nv_add_f32 v6, 1.0, v6\nv_rcp_f32 v6, v6")
        self.rnd1(6)
        A(f"""
        v_mov_b32 v{F1+8}, v6
        s_lshl_b32 s{S_T1}, s{S_W}, 4
        v_mov_b32 v7, s{S_T1}
        ds_write_b128 v7, {vr(F1+8,4)} offset:{L_RED}
        s_waitcnt lgkmcnt(0)
        s_barrier
        s_mov_b32 exec_lo, 0x000f000f
        s_mov_b32 exec_hi, 0x000f000f
        buffer_load_dword v{HP}, v{s.A5}, {srd(R_WS)}, s{S_A2} offen sc1
        s_mov_b64 exec, -1
        ds_read_b128 {vr(F1,4)}, v{s.A6} offset:{L_RED}
        s_waitcnt vmcnt(0)
        v_lshlrev_b32 v{T1}, 16, v{HP}
        v_and_b32 v{T1+1}, 0xffff0000, v{HP}
        s_waitcnt lgkmcnt(0)
        v_sub_f32 v{T1+2}, v{T1}, v{F1+2}
        v_sub_f32 v{T1+3}, v{T1+1}, v{F1+2}
        """)
        self.rnd_pair(T1+2, T1+3, T1+4)
        A(f"v_mul_f32 v{T1+2}, v{T1+2}, v{F1+3}\nv_mul_f32 v{T1+3}, v{T1+3}, v{F1+3}")
        self.rnd_pair(T1+2, T1+3, T1+4)
        if self.etrig is not None:
            A(f"v_lshlrev_b32 v7, 7, v{V_L}\nL_tpoll:")
            A(f"buffer_load_dword v6, v7, {srd(R_ACT)}, 0 offen sc1\ns_waitcnt vmcnt(0)\nv_cmp_eq_u32 vcc, -1, v6\ns_cbranch_vccz L_tok")
            self.spin_guard("L_tpoll")
            A("L_tok:")
            if self.etrig: A(f"s_sleep {self.etrig}")
        A("L_ypoll:")
        A(f"buffer_load_dwordx4 {vr(P,4)}, v{s.A4}, {srd(R_WS)}, s86 offen sc1")
        A("s_waitcnt vmcnt(0)")
        self.tagcheck(P, 4, 6, S_T4, 15)
        A("s_cbranch_vccz L_yok")
        self.spin_guard("L_ypoll")
        A("L_yok:")
        self.stamp("yok")
        self.red_lanes(P)
        self.rnd_pair(P, P+1, P+2)
        A(f"v_mul_f32 v{P}, v{P}, v{F1}\nv_mul_f32 v{P+1}, v{P+1}, v{F1}")
        self.rnd_pair(P, P+1, P+2)
        A(f"v_add_f32 v{P}, v{P}, v{T1+2}\nv_add_f32 v{P+1}, v{P+1}, v{T1+3}")
        self.rnd_pair(P, P+1, P+2)
        A(f"""
        v_add_f32 v{P}, v{P}, v{T1}
        v_add_f32 v{P+1}, v{P+1}, v{T1+1}
        s_mov_b32 exec_lo, 0x000f000f
        s_mov_b32 exec_hi, 0x000f000f
        v_cvt_pk_bf16_f32 v{P}, v{P}, v{P+1}
        global_store_dword v{s.A5}, v{P}, s[{S_OUT}:{S_OUT+1}]
        s_or_b32 s{S_T1}, s2, s{S_W}
        s_cbranch_scc1 L_fin
        v_mov_b32 v6, {WS_EPOCH}
        v_mov_b32 v7, s{S_EP}
        s_mov_b64 exec, 1
        global_store_dword v6, v7, s[{S_WS}:{S_WS+1}] sc1
        s_branch L_fin
        L_ffn:
        s_cmp_eq_u32 s{S_ROLE}, 0
        s_cbranch_scc1 L_fin
        s_cmp_eq_u32 s{S_ROLE}, 2
        s_barrier
        s_cbranch_scc1 L_down
        """)
        HR = slot(4); HO = slot(6); F1 = slot(8); T1 = slot(11)
        A(f"buffer_load_dwordx4 {vr(HR,4)}, v{V_L16}, {srd(R_WS)}, s{S_A3} offen sc1")
        A(f"buffer_load_dword v{HR+4}, v{s.L4}, {srd(R_WS)}, s{S_A3} offen offset:1024 sc1")
        while self.nfc < 10: self.ldC()
        A("s_waitcnt vmcnt(0)")
        for st in range(5):
            for tl in range(2):
                for hf in range(2): A(f"ds_read_b64_tr_b16 {vr(WF+20*tl+4*st+2*hf,2)}, v{s.A7} offset:{2048*st+256*hf+32*tl}")
            if st == 2: A("s_waitcnt lgkmcnt(4)")
        BF = slot(16); DA = V_ACC; CS = slot(24)
        for i in range(4): A(f"v_mov_b32 v{BF+i}, 0x3f803f80")
        A("s_waitcnt lgkmcnt(0)")
        for st in range(5):
            for tl in range(2):
                A(f"v_mfma_f32_16x16x32_bf16 {vr(DA+4*tl,4)}, {vr(WF+20*tl+4*st,4)}, {vr(BF,4)}, {vr(DA+4*tl,4) if st else '0'}")
        def redw():
            for i in range(4): A(f"v_mov_b32_dpp v{DA+i}, v{DA+4+i} quad_perm:[0,1,2,3] row_mask:0xf bank_mask:0xc")
            A(f"ds_write_b128 v{s.A5}, {vr(DA,4)} offset:{L_RED}")
        def redr(B):
            for i in range(4): A(f"ds_read_b64 {vr(B+2*i,2)}, v{s.A6} offset:{L_RED+1056*i}")
        def reds(B):
            A(f"v_pk_add_f32 {vr(B,2)}, {vr(B,2)}, {vr(B+2,2)}\nv_pk_add_f32 {vr(B+4,2)}, {vr(B+4,2)}, {vr(B+6,2)}\nv_pk_add_f32 {vr(B,2)}, {vr(B,2)}, {vr(B+4,2)}")
        redw(); A("s_waitcnt lgkmcnt(0)\ns_barrier"); redr(CS); A("s_waitcnt lgkmcnt(0)"); reds(CS)
        self.stamp("fgot")
        self.hpoll("h", HR)
        self.stamp("hok")
        A(f"ds_write_b128 v{s.A2}, {vr(HR,4)} offset:{L_XN}\nds_write_b32 v{s.A3}, v{HR+4} offset:{L_XN+1024}")
        n0 = len(A.L)
        self.layernorm(HR, F1, T1, HO, stats_only=True)
        st_lines = A.L[n0:]; del A.L[n0:]
        for l in st_lines[:11]: A(l)
        A("s_waitcnt lgkmcnt(0)\ns_barrier")
        self.stamp("lnbar")
        for st in range(5): A(f"ds_read_b128 {vr(BF+4*st,4)}, v{s.A4} offset:{L_XN+64*st}")
        rest = st_lines[11:]
        for l in rest[:20]: A(l)
        rest = rest[20:]
        mf = []
        for st in range(5):
            for tl in range(2):
                mf.append((f"s_waitcnt lgkmcnt({4-st})\n" if tl == 0 else "") + f"v_mfma_f32_16x16x32_bf16 {vr(DA+4*tl,4)}, {vr(WF+20*tl+4*st,4)}, {vr(BF+4*st,4)}, {vr(DA+4*tl,4) if st else '0'}")
        per = [3, 3, 3, 2, 1, 1, 1, 1, 2, 2]
        for m_, k in zip(mf, per):
            A(m_)
            for l in rest[:k]: A(l)
            rest = rest[k:]
        for l in rest: A(l)
        A(f"s_cmp_lt_u32 s{S_W}, 4")
        redw()
        A(f"ds_write_b64 v{s.A0}, {vr(HO,2)} offset:{L_SM}")
        self.stamp("cmf")
        A("s_waitcnt lgkmcnt(0)\ns_barrier\ns_cbranch_scc0 L_fin")
        self.stamp("cbar")
        redr(BF)
        A(f"ds_read_b64 {vr(BF+8,2)}, v{s.A1} offset:{L_SM}")
        self.setloc()
        A("s_waitcnt lgkmcnt(1)"); reds(BF); A("s_waitcnt lgkmcnt(0)")
        for i in range(2): A(f"v_fma_f32 v{BF+i}, -v{BF+8}, v{CS+i}, v{BF+i}")
        for i in range(2): A(f"v_mul_f32 v{BF+i}, v{BF+i}, v{BF+9}")
        for i in range(2): A(f"v_mul_f32 v{BF+4+i}, 0xbfb8aa3b, v{BF+i}")
        for i in range(2): A(f"v_exp_f32 v{BF+4+i}, v{BF+4+i}")
        for i in range(2): A(f"v_mul_f32_dpp v{BF+2+i}, v{BF+i}, v{BF+i} row_ror:8 {DPPF}")
        for i in range(2): A(f"v_add_f32 v{BF+4+i}, 1.0, v{BF+4+i}")
        for i in range(2): A(f"v_rcp_f32 v{BF+4+i}, v{BF+4+i}")
        A("s_mov_b32 exec_lo, 0x00ff00ff\ns_mov_b32 exec_hi, 0x00ff00ff")
        for i in range(2): A(f"v_mul_f32 v{BF+4+i}, v{BF+4+i}, v{BF+2+i}")
        A(f"v_cvt_pk_bf16_f32 v{BF}, v{BF+4}, v{BF+5}\nv_min_u32 v{BF}, -2, v{BF}")
        self.lstore(f"buffer_store_dword v{BF}, v{s.XP}, {srd(R_ACT)}, s{S_A2} offen")
        self.stamp("apub")
        A("s_branch L_fin\nL_down:")
        for i in range(7): self.ldF()
        A(f"s_cmp_lt_u32 s{S_W}, 4\ns_waitcnt vmcnt(0)\ns_barrier\ns_cbranch_scc0 L_fin")
        n = 0
        for tl in range(2):
            for st in range(7):
                for hf in range(2):
                    a = [[s.A1, s.A6], [s.A2, s.A7]][tl][hf]
                    A(f"ds_read_b64_tr_b16 {vr(WF+28*tl+4*st+2*hf,2)}, v{a} offset:{8192*hf+1024*st}")
                    n += 1
                    if n % 8 == 0 and n >= 8: A("s_waitcnt lgkmcnt(4)")
        self.stamp("fgot")
        P = slot(0); D = slot(4); R = slot(8)
        A("L_apoll:")
        for u in range(4): A(f"buffer_load_dwordx4 {vr(P+4*u,4)}, v{s.A0}, {srd(R_ACT)}, 0 offen offset:{1024*u} sc1")
        A("s_waitcnt vmcnt(0) lgkmcnt(0)")
        self.sentinel(P, 16, 6)
        A("s_cbranch_vccz L_aok")
        self.spin_guard("L_apoll")
        A("L_aok:")
        self.stamp("aok")
        for u in range(4):
            for par in (1, 0):
                if 2*u + par == 7: continue
                for tl in range(2):
                    d = D + 8*tl + 4*par
                    A(f"v_mfma_f32_16x16x32_bf16 {vr(d,4)}, {vr(WF+28*tl+4*(2*u+par),4)}, {vr(P+4*u,4)}, {vr(d,4) if u else '0'}")
        for i in range(4): A(f"v_add_f32_dpp v{R+i}, v{D+4+i}, v{D+i} row_ror:8 row_mask:0xf bank_mask:0x3")
        for i in range(4): A(f"v_add_f32_dpp v{R+i}, v{D+8+i}, v{D+12+i} row_ror:8 row_mask:0xf bank_mask:0xc")
        for i in range(4): A(f"v_and_or_b32 v{R+i}, v{R+i}, -16, s{S_T4}")
        A(f"buffer_store_dwordx4 {vr(R,4)}, v{s.A3}, {srd(R_WS)}, s{S_A1} offen sc1")
        self.stamp("ypub")
        A("L_fin:\ns_mov_b64 exec, -1")

if __name__ == "__main__":
    import json
    out = sys.argv[1]
    kw = json.loads(sys.argv[2]) if len(sys.argv) > 2 else {}
    g = G(**kw)
    s = g.gen()
    hdr = open("cdna_kernels/" + NAME + ".s.ref").read().split("; Override launch")[0]
    open(out, "w").write(hdr + s)
    print(out, "lines", s.count("\n"), "nops", g.A.nops)
```

```python
import sys
from asmlib import Asm
NAME = "sequential_preLN__sliding_block_cached__moe_arch_mod__decode"

WS_EPOCH = 0x0
WS_XCT   = 0x1000
WS_GRP   = 0x10000
G_O, G_H, G_A = 0, 8192, 8192 + 10240
WS_SLAB  = 0x60000
WS_YP    = 0xC0000
WS_SREP  = 0x200000
WS_QPART = 0x100000
WS_SIZE  = 0x500000
WS_STAMP = 0x4000000
XS = 1312
L_XN    = 0
L_H     = 10496
L_QP    = 20992
L_RED   = 25088
L_SM    = 33792
L_SIG   = 33856
L_W     = 34816
L_TOT   = L_W + 81920
S_X, S_K, S_V, S_WQ, S_WO, S_WR, S_WG, S_WU, S_WD, S_OUT, S_WS = 16, 18, 20, 22, 24, 28, 30, 32, 34, 36, 40
S_EP, S_T4, S_LOC = 26, 27, 1
S_XT = 38
S_SIG = 0
S_GRP = 82
S_QH, S_QB = 84, 85
S_EJOB = 83
R_K, R_V, R_WQ, R_F, R_WS, R_ACT = 44, 48, 52, 56, 60, 64
S_C4K = 72
S_H, S_B, S_W, S_ROLE, S_IDX = 3, 4, 5, 6, 7
S_SPIN = 9
S_T0, S_T1, S_T2, S_T3 = 10, 11, 12, 13
S_M = 14
S_LM0 = 42
S_FSTEP = 43
S_FCUR = 8
S_MCUR = 23
S_A0, S_A1, S_A2, S_A3 = 68, 69, 70, 71
S_ST = 88
V_L = 1
V_K, V_V, V_F = 2, 3, 4
V_MASK = 8
V_SC = 12
V_ACC = 20
V_Q = 28
V_L16, V_G, V_C = 44, 46, 47
V_X = 48
V_RING = 128
DPPF = "row_mask:0xf bank_mask:0xf"
LOG2E = "0x3fb8aa3b"
def slot(t): return V_RING + 4 * t
def vr(a, n): return f"v[{a}:{a+n-1}]"
def srd(r): return f"s[{r}:{r+3}]"

class G:
    def __init__(self, D=4, D2=None, thr="none", stamps=False, qpos=16, qbar=22, vextra=4, sleep=1, npre=6, nf_in=0, f0=6, fstep=5, wo_lead=0, freeq=4, pfpos=20, pfflags='nt', qflags='sc1', patA=None, patB=None, x1=1, x2=2, k0=4, local=True, rot=True, fflags='', srep=False, etrig=None, wpos=(24,26,28,30), tlb=0, bmask=False, codepf=0, kfirst=0, klin=True, dbg='', qmap=0, wqlate=0, free2=False, qpub=12, pfw=18, pfg=22, pfc=10, wo_late=True, pfn=5, dbgout=False):
        self.A = Asm(); self.D = D; self.D2 = D2; self.thr = thr; self.stamps = stamps
        self.vm = []; self.done = 0; self.uid = 0; self.stamped = set()
        self.qpos = qpos; self.qbar = qbar; self.vextra = vextra; self.sleep = sleep; self.npre = npre
        self.nf_in = nf_in; self.f0 = f0; self.fstep = fstep; self.wo_lead = wo_lead; self.freeq = freeq; self.pfpos = pfpos; self.pfflags = pfflags; self.qflags = qflags; self.patA = patA; self.patB = patB; self.x1 = x1; self.x2 = x2; self.nthr = 0; self.k0 = k0; self.local = local; self.rot = rot; self.fflags = fflags; self.srep = srep; self.etrig = etrig; self.wpos = list(wpos); self.nfc = 0; self.tlb = tlb; self.bmask = bmask; self.codepf = codepf; self.kfirst = kfirst; self.klin = klin; self.dbg = dbg; self.qmap = qmap; self.wqlate = wqlate; self.free2 = free2; self.qpubpos = qpub; self.pfw = pfw; self.pfg = pfg; self.pfc = pfc; self.wo_late = wo_late; self.pfn = pfn; self.dbgout = dbgout
    def issue(self, name, text):
        self.A(text); self.vm.append(name)
    def chk_stamps(self):
        if not self.stamps: return
        for nm in self.stamps:
            if nm.startswith("@") and nm not in self.stamped and nm[1:] in self.vm[:self.done]:
                self.stamped.add(nm); self.stamp(nm)
    def wait(self, name):
        i = len(self.vm) - 1 - self.vm[::-1].index(name)
        if i < self.done: return
        self.A(f"s_waitcnt vmcnt({len(self.vm) - 1 - i})"); self.done = i + 1
        self.chk_stamps()
    def throttle(self, X=0):
        self.nthr += 1
        da = (self.patA[self.nthr % len(self.patA)] if self.patA else self.D) + X
        if len(self.vm) - self.done > da - 1:
            self.A(f"s_waitcnt vmcnt({da-1})"); self.done = len(self.vm) - (da - 1)
            self.chk_stamps()
        if self.D2:
            db = (self.patB[self.nthr % len(self.patB)] if self.patB else self.D2) + X
            if len(self.vm) - self.done > db - 1:
                self.uid += 1
                self.A(f"s_cbranch_vccz L_thr{self.uid}\ns_waitcnt vmcnt({db-1})\nL_thr{self.uid}:")
    def setthr(self):
        if self.D2: self.A(f"s_mov_b64 vcc, s[80:81]")
    def stamp(self, name):
        if self.stamps and name in self.stamps:
            i = self.stamps.index(name)
            self.A(f"s_memrealtime s[{S_ST+2*i}:{S_ST+2*i+1}]")
    def spin_guard(self, lab, sleep=None):
        sleep = self.sleep if sleep is None else sleep
        if sleep: self.A(f"s_sleep {sleep}")
        self.A(f"s_sub_u32 s{S_SPIN}, s{S_SPIN}, 1\ns_cmp_eq_u32 s{S_SPIN}, 0\ns_cbranch_scc0 {lab}\ns_branch L_end")
    def rnd_pair(self, a, b, t):
        self.A(f"v_cvt_pk_bf16_f32 v{t}, v{a}, v{b}\nv_lshlrev_b32 v{a}, 16, v{t}\nv_and_b32 v{b}, 0xffff0000, v{t}")
    def rnd1(self, a):
        self.A(f"v_cvt_pk_bf16_f32 v{a}, v{a}, v{a}\nv_and_b32 v{a}, 0xffff0000, v{a}")
    def sentinel(self, base, n, t):
        A = self.A
        A(f"v_max3_u32 v{t}, v{base}, v{base+1}, v{base+2}")
        i = 3
        while i < n:
            if i + 1 < n: A(f"v_max3_u32 v{t}, v{t}, v{base+i}, v{base+i+1}"); i += 2
            else: A(f"v_max_u32 v{t}, v{t}, v{base+i}"); i += 1
        A(f"v_cmp_eq_u32 vcc, -1, v{t}")
    def tagcheck(self, base, n, t, stag, mask):
        A = self.A
        for i in range(n): A(f"v_xor_b32 v{base+i}, s{stag}, v{base+i}")
        if n == 2: A(f"v_or_b32 v{t}, v{base}, v{base+1}")
        else:
            A(f"v_or3_b32 v{t}, v{base}, v{base+1}, v{base+2}")
            i = 3
            while i < n:
                if i + 1 < n: A(f"v_or3_b32 v{t}, v{t}, v{base+i}, v{base+i+1}"); i += 2
                else: A(f"v_or_b32 v{t}, v{t}, v{base+i}"); i += 1
        A(f"v_and_b32 v{t}, {mask}, v{t}\nv_cmp_ne_u32 vcc, 0, v{t}")
    def allred(self, op, v, tmp):
        A = self.A
        for md in ("row_ror:8", "row_ror:4"): A(f"{op}_dpp v{v}, v{v}, v{v} {md} {DPPF}")
        for sw in ("v_permlane16_swap_b32", "v_permlane32_swap_b32"):
            A(f"v_mov_b32 v{tmp}, v{v}\n{sw} v{v}, v{tmp}\n{op} v{v}, v{v}, v{tmp}")
    def layernorm(self, src, f, t, out, keep=None, stats_only=False):
        A = self.A
        if src is not None:
            for i in range(5):
                A(f"v_lshlrev_b32 v{f+2*i}, 16, v{src+i}\nv_and_b32 v{f+2*i+1}, 0xffff0000, v{src+i}")
        A(f"v_readfirstlane_b32 s{S_T0}, v{f}")
        for i in range(10): A(f"v_subrev_f32 v{t+i}, s{S_T0}, v{f+i}")
        s1, s2, s3, s4 = out, out + 1, out + 2, out + 3
        A(f"v_add_f32 v{s1}, v{t}, v{t+1}\nv_mul_f32 v{s2}, v{t}, v{t}\nv_add_f32 v{s3}, v{t+2}, v{t+3}\nv_mul_f32 v{s4}, v{t+1}, v{t+1}")
        for i in range(2, 10, 2):
            A(f"v_fmac_f32 v{s2}, v{t+i}, v{t+i}\nv_fmac_f32 v{s4}, v{t+i+1}, v{t+i+1}")
            if i >= 4: A(f"v_add_f32 v{s1}, v{s1}, v{t+i}\nv_add_f32 v{s3}, v{s3}, v{t+i+1}")
        A(f"v_add_f32 v{s1}, v{s1}, v{s3}\nv_add_f32 v{s2}, v{s2}, v{s4}")
        A(f"v_permlane32_swap_b32 v{s1}, v{s2}\nv_add_f32 v{s1}, v{s1}, v{s2}")
        for m in ("quad_perm:[1,0,3,2]", "quad_perm:[2,3,0,1]", "row_half_mirror", "row_mirror"):
            A(f"v_add_f32_dpp v{s1}, v{s1}, v{s1} {m} {DPPF}")
        A(f"v_add_f32_dpp v{s1}, v{s1}, v{s1} row_bcast:15 row_mask:0xa bank_mask:0xf")
        A(f"v_mul_f32 v{s1}, 0x3acccccd, v{s1}")
        A(f"v_readlane_b32 s{S_T1}, v{s1}, 31\nv_readlane_b32 s{S_T2}, v{s1}, 63")
        A(f"v_mov_b32 v{s2}, s{S_T1}\nv_add_f32 v{s1}, s{S_T0}, v{s2}\nv_fma_f32 v{s2}, -v{s2}, v{s2}, s{S_T2}\nv_max_f32 v{s2}, 0, v{s2}")
        self.rnd_pair(s1, s2, s3)
        A(f"v_add_f32 v{s2}, 0x3727c5ac, v{s2}")
        self.rnd1(s2)
        A(f"v_sqrt_f32 v{s2}, v{s2}")
        if stats_only:
            self.rnd1(s2); A(f"v_rcp_f32 v{s2}, v{s2}")
            return
        for i in range(10): A(f"v_sub_f32 v{t+i}, v{f+i}, v{s1}")
        self.rnd1(s2)
        A(f"v_rcp_f32 v{out+4}, v{s2}")
        if keep: A(f"v_mov_b32 v{keep[0]}, v{s1}\nv_mov_b32 v{keep[1]}, v{out+4}")
        for i in range(5): self.rnd_pair(t+2*i, t+2*i+1, out + 2 + (i & 1))
        for i in range(10): A(f"v_mul_f32 v{t+i}, v{t+i}, v{out+4}")
        for i in range(5): A(f"v_cvt_pk_bf16_f32 v{out+i}, v{t+2*i}, v{t+2*i+1}")
    def ldF(self, counted=None, fl="nt"):
        txt = f"buffer_load_dwordx4 v{V_F}, {srd(R_F)}, s{S_FCUR} offen {fl} lds"
        self.A(f"s_mov_b32 m0, s{S_MCUR}")
        self.A(f"s_add_u32 s{S_MCUR}, s{S_MCUR}, 1024")
        if counted: self.issue(counted, txt); self.A(f"v_xor_b32 v{V_F}, 64, v{V_F}")
        else: self.A(txt)
        self.A(f"s_add_u32 s{S_FCUR}, s{S_FCUR}, s{S_FSTEP}")

    def ldC(self):
        if self.nfc == 5 and self.rot: self.A(f"s_mov_b32 s{S_FCUR}, s86\ns_mov_b32 s{S_MCUR}, s87")
        self.ldF(fl=self.fflags); self.nfc += 1

    def gen(self):
        A = self.A
        A(f"; @launch grid=(256,1,1) block=(512,1,1) lds={L_TOT}")
        A('.amdgcn_target "amdgcn-amd-amdhsa--gfx950"\n.text')
        A(f".globl {NAME}_kernel\n.p2align 8\n.type {NAME}_kernel,@function\n{NAME}_kernel:")
        A("s_cmp_ge_u32 s2, 256\ns_cbranch_scc1 L_end")
        A("s_load_dwordx16 s[16:31], s[0:1], 0\ns_load_dwordx8 s[32:39], s[0:1], 64\ns_load_dwordx2 s[40:41], s[0:1], 96")
        if self.stamps:
            for i in range(1, 7): A(f"s_mov_b64 s[{S_ST+2*i}:{S_ST+2*i+1}], 0")
        self.stamp("start")
        def codepf():
            A(f"""
            s_getpc_b64 s[{S_M}:{S_M+1}]
            L_pc:
            v_lshlrev_b32 v7, 7, v0
            v_min_u32 v7, L_end-L_pc-4, v7
            v_cmp_gt_u32 vcc, 128, v0
            s_cbranch_vccz L_nopf
            global_load_dword v{V_X+44}, v7, s[{S_M}:{S_M+1}]
            L_nopf:
            """)
        if self.codepf == 1: codepf()
        A(f"""
        v_lshrrev_b32 v6, 6, v0
        v_and_b32 v{V_L}, 63, v0
        s_and_b32 s{S_T0}, s2, 7
        v_readfirstlane_b32 s{S_W}, v6
        s_and_b32 s{S_H}, s2, 31
        s_lshr_b32 s{S_B}, s2, 5
        s_lshl_b32 s{S_T3}, s2, 20
        s_add_u32 s{S_T3}, s{S_T3}, 0xC0000
        v_lshlrev_b32 v7, 12, v6
        v_lshlrev_b32 v{V_L16}, 4, v{V_L}
        v_add_u32 v{V_V}, v7, v{V_L16}
        v_and_b32 v{V_K}, 3, v0
        v_lshl_add_u32 v{V_K}, v{V_K}, 4, v7
        v_bfe_u32 v5, v0, 2, 2
        v_lshl_add_u32 v{V_K}, v5, {8 if self.klin else 10}, v{V_K}
        v_bfe_u32 v{V_G}, v0, 4, 2
        v_lshl_add_u32 v{V_K}, v{V_G}, 6, v{V_K}
        v_mul_u32_u24 v{V_ACC}, 1280, v6
        v_lshl_add_u32 v{V_ACC+1}, v{V_L}, 2, v{V_ACC}
        v_add_u32 v{V_ACC}, v{V_ACC}, v{V_L16}
        v_and_b32 v{V_C}, 15, v0
        v_and_b32 v{V_ACC+4}, 1, v6
        v_lshlrev_b32 v{V_ACC+4}, 3, v{V_ACC+4}
        v_lshl_add_u32 v{V_ACC+4}, v{V_G}, 1, v{V_ACC+4}
        v_xor_b32 v{V_ACC+4}, v{V_ACC+4}, v{V_C}
        v_lshlrev_b32 v{V_ACC+4}, 4, v{V_ACC+4}
        v_lshl_add_u32 v{V_ACC+3}, v6, 2, v{V_G}
        v_lshrrev_b32 v{V_ACC+2}, 3, v0
        v_lshlrev_b32 v{V_ACC+2}, 13, v{V_ACC+2}
        v_and_b32 v5, 7, v0
        v_lshl_add_u32 v{V_ACC+2}, v5, 4, v{V_ACC+2}
        """)
        A(f"""
        s_and_b32 s{S_T1}, s{S_B}, 3
        s_mul_i32 s{S_T1}, s{S_T1}, {160*8192}
        s_lshl_b32 s{S_T2}, s{S_H}, 8
        s_add_u32 s{S_T1}, s{S_T1}, s{S_T2}
        s_lshr_b32 s{S_T2}, s{S_B}, 2
        s_lshl_b32 s{S_T2}, s{S_T2}, 7
        s_add_u32 s{S_T1}, s{S_T1}, s{S_T2}
        s_lshl_b32 s{S_LM0}, s{S_W}, 10
        s_add_u32 s{S_LM0}, s{S_LM0}, {L_W}
        s_mov_b32 m0, s{S_LM0}
        s_mov_b32 s{R_WQ+2}, {159*8192+128}
        s_mov_b32 s{R_WQ+3}, 0x20000
        s_mov_b32 s{R_K+2}, 0x40000
        s_mov_b32 s{R_K+3}, 0x20000
        s_mov_b32 s{S_A0}, 0x80000
        s_mov_b32 s{S_A1}, 0x100000
        """)
        self.stamp("prekarg")
        A("s_waitcnt lgkmcnt(0)")
        self.stamp("karg")
        if self.dbgout: A("v_mov_b32 v126, s38\nv_mov_b32 v127, s39")
        A(f"""
        s_load_dword s{S_EP}, s[{S_WS}:{S_WS+1}], {WS_EPOCH}
        s_add_u32 s{R_WQ}, s{S_WQ}, s{S_T1}
        s_addc_u32 s{R_WQ+1}, s{S_WQ+1}, 0
        s_add_u32 s{R_K}, s{S_K}, s{S_T3}
        s_addc_u32 s{R_K+1}, s{S_K+1}, 0
        """)
        XR = V_Q
        def ldK(t): self.issue(f"K{t}", f"buffer_load_dwordx4 {vr(slot(t),4)}, v{V_K}, {srd(R_K)}, {'s%d'%(S_C4K+(t>>2)) if t>=4 else '0'} offen offset:{(t&3)*(1024 if self.klin else 256)} nt")
        for t in range(self.kfirst): ldK(t)
        self.issue("x0", f"global_load_dwordx4 {vr(XR,4)}, v{V_ACC}, s[{S_X}:{S_X+1}]")
        self.issue("x1", f"global_load_dword v{XR+4}, v{V_ACC+1}, s[{S_X}:{S_X+1}] offset:1024")
        A(f"""
        s_mov_b32 s{R_WS}, s{S_WS}
        s_mov_b32 s{R_WS+1}, s{S_WS+1}
        s_mov_b32 s{R_WS+2}, {WS_SIZE}
        s_mov_b32 s{R_WS+3}, 0x20000
        s_lshl_b32 s{S_GRP}, s{S_T0}, 15
        s_add_u32 s{S_GRP}, s{S_GRP}, {WS_GRP}
        s_lshr_b32 s{S_IDX}, s2, 3
        """)
        self.issue("wq0", f"buffer_load_dwordx4 v{V_ACC+2}, {srd(R_WQ)}, 0 offen nt lds")
        A(f"s_add_u32 m0, s{S_LM0}, 8192")
        for _ in range(self.wqlate): ldK(self.kfirst); self.kfirst += 1
        self.issue("wq1", f"buffer_load_dwordx4 v{V_ACC+2}, {srd(R_WQ)}, s{S_A0} offen nt lds")
        A(f"s_add_u32 m0, s{S_LM0}, 16384")
        for _ in range(self.wqlate): ldK(self.kfirst); self.kfirst += 1
        self.issue("wq2", f"buffer_load_dwordx4 v{V_ACC+2}, {srd(R_WQ)}, s{S_A1} offen nt lds")
        def ldV(t): self.issue(f"V{t}", f"buffer_load_dwordx4 {vr(slot(t),4)}, v{V_V}, {srd(R_V)}, s{S_C4K+(t>>2)} offen offset:{(t&3)*1024} nt")
        for t in range(self.kfirst, self.k0): ldK(t)
        if self.codepf == 2: codepf()
        A(f"""
        s_add_u32 s{R_V}, s{S_V}, s{S_T3}
        s_addc_u32 s{R_V+1}, s{S_V+1}, 0
        s_mov_b32 s{R_V+2}, 0x40000
        s_mov_b32 s{R_V+3}, 0x20000
        s_add_u32 s{S_T1}, s{S_GRP}, {G_A}
        s_add_u32 s{R_ACT}, s{S_WS}, s{S_T1}
        s_addc_u32 s{R_ACT+1}, s{S_WS+1}, 0
        s_mov_b32 s{R_ACT+2}, {7*512}
        s_cmp_eq_u32 s{S_T0}, 7
        s_cselect_b32 s{R_ACT+2}, {5*512}, s{R_ACT+2}
        s_mov_b32 s{R_ACT+3}, 0x20000
        s_mov_b32 s{S_ROLE}, 3
        s_cmp_lt_u32 s{S_IDX}, 20
        s_cbranch_scc1 L_roleok
        s_mov_b32 s{S_ROLE}, 2
        s_sub_u32 s{S_IDX}, s{S_IDX}, 27
        s_cbranch_scc0 L_roleok
        s_add_u32 s{S_IDX}, s{S_IDX}, 7
        s_mul_i32 s{S_T1}, s{S_T0}, 7
        s_add_u32 s{S_T1}, s{S_T1}, s{S_IDX}
        s_cmp_lt_u32 s{S_T1}, 54
        s_cselect_b32 s{S_ROLE}, 1, 0
        L_roleok:
        s_mov_b32 s{S_SPIN}, 0x100000
        """)
        for i in range(8): A(f"s_mov_b32 s{S_C4K+i}, {i*32768}")
        if self.D2:
            A(f"s_getreg_b32 s80, hwreg(HW_REG_XCC_ID)\ns_and_b32 s80, s80, 1\ns_xor_b32 s80, s80, 1\ns_mov_b32 s81, 0")
            if self.thr == "role": A(f"s_cmp_eq_u32 s{S_ROLE}, 3\ns_cselect_b32 s80, 1, 0")
            if self.thr == "nonc": A(f"s_cmp_eq_u32 s{S_ROLE}, 1\ns_cselect_b32 s80, 0, 1")
            if self.thr == "evennonc": A(f"s_cmp_eq_u32 s{S_ROLE}, 1\ns_cselect_b32 s80, 0, s80")
            if self.thr == "both": A(f"s_cmp_eq_u32 s{S_ROLE}, 3\ns_cselect_b32 s80, s80, 0")
        A(f"""
        s_mov_b32 s{R_F+3}, 0x20000
        s_mov_b32 s{S_FCUR}, 0
        s_cmp_eq_u32 s{S_ROLE}, 3
        s_cbranch_scc1 L_rwo
        s_mov_b32 s{R_F+2}, {640*3456}
        s_cmp_eq_u32 s{S_ROLE}, 2
        s_cbranch_scc1 L_rdown
        s_mul_i32 s{S_LM0}, s{S_W}, 10240
        s_add_u32 s{S_LM0}, s{S_LM0}, {L_W}
        s_cmp_lt_u32 s{S_W}, 4
        s_cselect_b32 s{R_F}, s{S_WG}, s{S_WU}
        s_cselect_b32 s{R_F+1}, s{S_WG+1}, s{S_WU+1}
        s_mul_i32 s{S_T2}, s{S_T0}, 7
        s_add_u32 s{S_T2}, s{S_T2}, s{S_IDX}
        s_and_b32 s{S_T1}, s{S_W}, 3
        s_mul_i32 s{S_T1}, s{S_T1}, {160*3456}
        s_lshl_b32 s{S_T2}, s{S_T2}, 6
        s_add_u32 s{S_T1}, s{S_T1}, s{S_T2}
        s_mov_b32 s{S_FSTEP}, {16*3456}
        v_lshrrev_b32 v{V_F}, 2, v{V_L}
        v_mul_u32_u24 v{V_F}, 3456, v{V_F}
        v_and_b32 v7, 3, v0
        s_branch L_rdone
        L_rdown:
        s_mov_b32 s{R_F}, s{S_WD}
        s_mov_b32 s{R_F+1}, s{S_WD+1}
        s_mul_i32 s{S_T1}, s{S_T0}, {224*1280}
        s_lshl_b32 s{S_T2}, s{S_IDX}, 8
        s_add_u32 s{S_T1}, s{S_T1}, s{S_T2}
        s_mov_b32 s{S_FSTEP}, {32*1280}
        s_lshl_b32 s{S_LM0}, s{S_W}, 13
        s_add_u32 s{S_LM0}, s{S_LM0}, {L_W}
        v_mul_u32_u24 v{V_F}, 1280, v{V_ACC+3}
        v_lshrrev_b32 v7, 4, v{V_ACC+4}
        s_branch L_rdone
        L_rwo:
        s_mov_b32 s{R_F}, s{S_WO}
        s_mov_b32 s{R_F+1}, s{S_WO+1}
        s_mov_b32 s{R_F+2}, {4096*1280}
        s_cmp_ge_u32 s{S_IDX}, 10
        s_cselect_b32 s{S_T1}, {16*163840-1280}, 0
        s_lshr_b32 s{S_T2}, s{S_W}, 2
        s_lshl_b32 s{S_T2}, s{S_T2}, 3
        s_add_u32 s{S_T2}, s{S_T2}, s{S_T0}
        s_mul_i32 s{S_T2}, s{S_T2}, 163840
        s_add_u32 s{S_T1}, s{S_T1}, s{S_T2}
        s_lshl_b32 s{S_T2}, s{S_IDX}, 7
        s_add_u32 s{S_T1}, s{S_T1}, s{S_T2}
        s_and_b32 s{S_T2}, s{S_W}, 3
        s_mul_i32 s{S_T2}, s{S_T2}, {32*1280}
        s_add_u32 s{S_T1}, s{S_T1}, s{S_T2}
        s_mov_b32 s{S_FSTEP}, {8*1280}
        s_lshl_b32 s{S_LM0}, s{S_W}, 12
        s_add_u32 s{S_LM0}, s{S_LM0}, {L_W}
        v_lshrrev_b32 v{V_F}, 3, v{V_L}
        v_mul_u32_u24 v{V_F}, 1280, v{V_F}
        v_bfe_u32 v7, v0, 4, 1
        v_lshlrev_b32 v7, 1, v7
        v_xor_b32 v7, v7, v5
        L_rdone:
        v_lshl_add_u32 v{V_F}, v7, 4, v{V_F}
        v_add_u32 v{V_F}, s{S_T1}, v{V_F}
        s_mov_b32 s{S_MCUR}, s{S_LM0}
        """)
        if self.rot:
            A(f"""
            s_add_u32 s{S_T1}, s{S_T0}, s{S_IDX}
            s_cmp_eq_u32 s{S_ROLE}, 1
            s_cselect_b32 s{S_T1}, s{S_T1}, 0
            s_and_b32 s{S_T1}, s{S_T1}, 1
            s_cselect_b32 s{S_FCUR}, {5*16*3456}, 0
            s_cselect_b32 s{S_T1}, 5120, 0
            s_cselect_b32 s86, 0, {5*16*3456}
            s_cselect_b32 s87, 0, 5120
            s_add_u32 s{S_MCUR}, s{S_LM0}, s{S_T1}
            s_add_u32 s87, s{S_LM0}, s87
            """)
        A(f"""
        v_and_b32 v7, 1, v0
        v_lshlrev_b32 v7, 4, v7
        v_mov_b32 v{V_ACC+4}, 0xffff
        v_lshlrev_b32 v7, v7, v{V_ACC+4}
        v_lshrrev_b32 v{V_ACC+4}, 1, v{V_C}
        """)
        for r in range(4): A(f"v_cmp_eq_u32 vcc, {r}, v{V_ACC+4}\nv_cndmask_b32 v{V_MASK+r}, 0, v7, vcc")
        self.stamp("prex")
        self.wait("x1")
        self.stamp("xgot")
        F0, T0 = V_X, V_X + 10
        n0 = len(A.L)
        self.layernorm(XR, F0, T0, XR + 8)
        XO = XR + 8
        A(f"""
        v_mul_u32_u24 v7, {XS}, v6
        v_add_u32 v{V_ACC}, v7, v{V_L16}
        v_lshl_add_u32 v{V_ACC+1}, v{V_L}, 2, v7
        ds_write_b128 v{V_ACC}, {vr(XO,4)} offset:{L_XN}
        ds_write_b32 v{V_ACC+1}, v{XO+4} offset:{L_XN+1024}
        v_bfe_u32 v{V_ACC}, v0, 2, 2
        v_lshlrev_b32 v{V_ACC}, 7, v{V_ACC}
        v_lshl_add_u32 v{V_ACC}, v{V_G}, 10, v{V_ACC}
        v_and_b32 v{V_ACC+1}, 3, v0
        v_lshl_add_u32 v{V_ACC}, v{V_ACC+1}, 3, v{V_ACC}
        v_lshl_add_u32 v{V_ACC}, v6, 5, v{V_ACC}
        v_and_b32 v{V_ACC+2}, 7, v0
        v_mul_u32_u24 v{V_ACC+1}, {XS}, v{V_ACC+2}
        v_lshl_add_u32 v{V_ACC+1}, v{V_G}, 4, v{V_ACC+1}
        s_and_b32 s{S_T2}, s{S_B}, 3
        s_mul_i32 s{S_T1}, s{S_T2}, 320
        v_add_u32 v{V_ACC+1}, s{S_T1}, v{V_ACC+1}
        v_lshlrev_b32 v{V_SC}, 6, v{V_ACC+2}
        v_lshl_add_u32 v{V_SC}, v{V_G}, 4, v{V_SC}
        v_lshl_add_u32 v{V_SC}, v6, 9, v{V_SC}
        v_lshl_add_u32 v{V_SC+1}, v6, 9, v{V_L16}
        v_bfe_u32 v{V_ACC+2}, v0, 2, 3
        v_lshlrev_b32 v{V_ACC+2}, 11, v{V_ACC+2}
        v_lshl_add_u32 v{V_ACC+2}, v6, 6, v{V_ACC+2}
        v_and_b32 v7, 3, v0
        v_lshl_add_u32 v{V_ACC+2}, v7, 4, v{V_ACC+2}
        s_lshl_b32 s{S_T1}, s{S_H}, 14
        s_lshl_b32 s{S_T2}, s{S_T2}, 9
        s_add_u32 s{S_T1}, s{S_T1}, s{S_T2}
        s_lshr_b32 s{S_T2}, s{S_B}, 2
        s_lshl_b32 s{S_T2}, s{S_T2}, 8
        s_add_u32 s{S_T1}, s{S_T1}, s{S_T2}
        s_add_u32 s{S_T1}, s{S_T1}, {WS_QPART}
        """)
        body = A.L[n0:]; del A.L[n0:]
        kn = self.k0
        step = len(body) // (self.npre + 1) if self.npre else 10**9
        for i, line in enumerate(body):
            if i and i % step == 0 and kn < self.k0 + self.npre: ldK(kn); kn += 1
            A(line)
        self.wait("wq2")
        A("s_waitcnt lgkmcnt(0)\ns_barrier")
        self.stamp("bar1")
        A(f"s_add_u32 s{S_EP}, s{S_EP}, 1\ns_and_b32 s{S_T4}, s{S_EP}, 15")
        A(f"""
        s_mov_b32 s{S_A2}, s{S_T1}
        s_getreg_b32 s{S_SIG}, hwreg(HW_REG_XCC_ID, 0, 4)
        s_lshl_b32 s{S_T2}, s{S_EP}, 4
        s_or_b32 s{S_SIG}, s{S_SIG}, s{S_T2}
        s_and_b32 s{S_XT}, s2, 7
        s_lshl_b32 s{S_XT}, s{S_XT}, 8
        s_add_u32 s{S_XT}, s{S_XT}, {WS_XCT}
        s_lshr_b32 s{S_T2}, s2, 3
        s_lshl_b32 s{S_T2}, s{S_T2}, 2
        v_mov_b32 v{V_SC+2}, s{S_T2}
        v_mov_b32 v{V_SC+3}, s{S_SIG}
        v_and_b32 v{V_SC+4}, 31, v0
        v_lshlrev_b32 v{V_SC+4}, 2, v{V_SC+4}
        s_cmp_eq_u32 s{S_W}, 7
        s_cbranch_scc0 L_nosig
        s_mov_b64 exec, 1
        buffer_store_dword v{V_SC+3}, v{V_SC+2}, {srd(R_WS)}, s{S_XT} offen
        s_mov_b64 exec, -1
        L_nosig:
        """)
        A(f"s_cmp_lt_u32 s{S_W}, 4\ns_cbranch_scc0 L_noq")
        for s in range(5):
            for hf in range(2): A(f"ds_read_b64_tr_b16 {vr(F0+4*s+2*hf,2)}, v{V_ACC} offset:{L_W+4096*s+512*hf}")
            A(f"ds_read_b128 {vr(F0+20+4*s,4)}, v{V_ACC+1} offset:{L_XN+64*s}")
        for s in range(5):
            A(f"s_waitcnt lgkmcnt({12-3*s})")
            A(f"v_mfma_f32_16x16x32_bf16 {vr(V_ACC+4,4)}, {vr(F0+4*s,4)}, {vr(F0+20+4*s,4)}, {vr(V_ACC+4,4) if s else '0'}")
        for i in range(4): A(f"v_and_or_b32 v{V_ACC+4+i}, v{V_ACC+4+i}, -16, s{S_T4}")
        A(f"ds_write_b128 v{V_SC}, {vr(V_ACC+4,4)} offset:{L_RED}\ns_mov_b32 exec_hi, 0\ns_waitcnt lgkmcnt(0)")
        A(f"ds_read_b128 {vr(V_ACC+4,4)}, v{V_SC+1} offset:{L_RED}\ns_waitcnt lgkmcnt(0)")
        A("s_mov_b64 exec, -1\nL_noq:")
        if self.tlb:
            A(f"""
            s_cmp_eq_u32 s{S_W}, 5
            s_cbranch_scc0 L_notlb
            s_load_dword s{S_T0}, s[{R_V}:{R_V+1}], 0x0
            v_readfirstlane_b32 s{S_T2}, v{V_F}
            s_and_b32 s{S_T2}, s{S_T2}, -4
            s_load_dword s{S_T1}, s[{R_F}:{R_F+1}], s{S_T2}
            s_load_dword s{S_T3}, s[{S_OUT}:{S_OUT+1}], 0x0
            s_waitcnt lgkmcnt(0)
            L_notlb:
            """)
        self.stamp("qpub")
        self.setthr()
        seq = []
        for t in range(kn, 32):
            if t in self.wpos and not self.wo_late: seq.append(("W", self.wpos.index(t)))
            seq.append(("K", t))
        self.qbar_done = False
        fpos = []
        for t in range(32):
            if t in fpos: seq.append(("F", t))
            if t == 12: seq.append(("T", 0))
            if t == 7: seq.append(("P", 0))
            if t == self.pfw and self.wo_late: seq.append(("R", 0))
            if t == self.pfg: seq.append(("R", 1))
            if t == self.pfc: seq.append(("R", 2))
            seq.append(("V", t))
        if self.pfg == 32: seq.append(("R", 1))
        self.pvdone = -1; self.smax_done = False
        pos = 0
        def ldFx(t):
            assert self.smax_done
            A(f"s_cmp_eq_u32 s{S_ROLE}, 3\ns_cbranch_scc1 L_nof{t}")
            self.ldF()
            A(f"L_nof{t}:")
        def ldW(i):
            assert self.qbar_done
            A(f"s_cmp_eq_u32 s{S_ROLE}, 3\ns_cbranch_scc0 L_now{i}")
            self.ldF(); A(f"v_xor_b32 v{V_F}, 64, v{V_F}")
            A(f"L_now{i}:")
            if i >= 4 - self.nf_in:
                A(f"s_cmp_eq_u32 s{S_ROLE}, 1\ns_cbranch_scc0 L_noc{i}")
                self.ldC()
                A(f"L_noc{i}:")
        def ldT(_):
            self.tail_setup()
        def nxt(D=0):
            nonlocal pos
            k, t = seq[pos]; pos += 1
            if k in "KVPWR": self.throttle(D)
            {"K": ldK, "V": ldV, "F": ldFx, "T": ldT, "W": ldW, "R": self.prefetch, "P": self.xct_load}[k](t)
        def until(item, D=0):
            while f"{item[0]}{item[1]}" not in self.vm: nxt(D)
        for i in range(self.freeq): nxt(self.x2)
        until(("K", self.qpubpos - self.D + 1))
        self.issue("xt0", f"buffer_load_dword v{V_SC+5}, v{V_SC+4}, {srd(R_WS)}, s{S_XT} offen sc1")
        A(f"""
        s_cmp_eq_u32 s{S_W}, 4
        s_cbranch_scc0 L_noclr
        s_lshr_b32 s{S_A2}, s2, 3
        s_mul_i32 s{S_A2}, s{S_A2}, 768
        s_add_u32 s{S_A2}, s{S_A2}, s{S_GRP}
        v_mov_b32 v{V_ACC+2}, v{V_L16}
        v_mov_b32 v{V_ACC+4}, -1
        v_mov_b32 v{V_ACC+5}, -1
        v_mov_b32 v{V_ACC+6}, -1
        v_mov_b32 v{V_ACC+7}, -1
        L_noclr:
        """)
        until(("K", self.qpubpos), 1)
        self.wait("xt0")
        A(f"v_cmp_ne_u32 s[{S_M}:{S_M+1}], s{S_SIG}, v{V_SC+5}\ns_cmp_eq_u64 s[{S_M}:{S_M+1}], 0\ns_cselect_b32 s{S_LOC}, {1 if self.local else 0}, 0")
        A(f"s_cmp_lt_u32 s{S_W}, 5\ns_cbranch_scc0 L_noq2\ns_cmp_eq_u32 s{S_W}, 4\ns_cselect_b32 exec_hi, 0xffff, 0")
        self.setloc()
        if self.stamps and "qloc" in self.stamps: A("s_cbranch_scc0 L_nqs"); self.stamp("qloc"); A("L_nqs:")
        self.lstore(f"buffer_store_dwordx4 {vr(V_ACC+4,4)}, v{V_ACC+2}, {srd(R_WS)}, s{S_A2} offen")
        A("s_mov_b64 exec, -1\nL_noq2:")
        nclr = len(self.vm)
        until(("K", self.qpos))
        A(f"""
        s_cmp_eq_u32 s{S_W}, 4
        s_cbranch_scc0 L_nocnt
        s_waitcnt vmcnt({len(self.vm) - nclr})
        s_mov_b64 exec, 1
        """)
        self.setloc()
        self.lstore(f"buffer_store_dword v{V_SC+3}, v{V_SC+2}, {srd(R_WS)}, s{S_XT} offen offset:128")
        A("s_mov_b64 exec, -1\nL_nocnt:")
        self.setthr()
        QA = V_X
        A(f"""
        v_lshlrev_b32 v{QA}, 2, v0
        s_lshl_b32 s{S_T1}, s{S_H}, 14
        s_lshl_b32 s{S_T2}, s{S_B}, 11
        s_add_u32 s{S_T1}, s{S_T1}, s{S_T2}
        s_add_u32 s{S_T1}, s{S_T1}, {WS_QPART}
        v_bfe_u32 v{QA+2}, v0, 2, 2
        v_lshlrev_b32 v{QA+2}, 9, v{QA+2}
        v_lshl_add_u32 v{QA+2}, v{V_G}, 7, v{QA+2}
        v_and_b32 v7, 3, v0
        v_lshl_add_u32 v{QA+2}, v7, 5, v{QA+2}
        """)
        qtxt = f"buffer_load_dword v{QA+4}, v{QA}, {srd(R_WS)}, s{S_T1} offen {self.qflags}"
        self.issue("qg", qtxt)
        for _ in range(self.D - 1): nxt(self.x1)
        nxt(self.x1)
        self.wait("qg")
        A("L_qchk:")
        A(f"v_xor_b32 v{QA+4}, s{S_T4}, v{QA+4}\nv_and_b32 v6, 15, v{QA+4}\nv_cmp_ne_u32 vcc, 0, v6")
        A("s_cbranch_vccz L_qok")
        A(qtxt + "\ns_waitcnt vmcnt(0)")
        self.spin_guard("L_qchk")
        A("L_qok:")
        self.setthr()
        self.stamp("qgot")
        A(f"ds_write_b32 v{QA}, v{QA+4} offset:{L_QP}")
        until(("K", self.qbar - 2))
        until(("K", self.qbar), self.x2)
        A("s_waitcnt lgkmcnt(0)\ns_barrier")
        self.stamp("qbar"); self.qbar_done = True
        for hf in range(2): A(f"ds_read_b128 {vr(V_ACC+4*hf,4)}, v{QA+2} offset:{L_QP+hf*16}")
        nxt(self.x1)
        A("s_waitcnt lgkmcnt(0)")
        for m in ("row_ror:8", "row_ror:4"):
            for i in range(8): A(f"v_add_f32_dpp v{V_ACC+i}, v{V_ACC+i}, v{V_ACC+i} {m} {DPPF}")
        for i in range(4): A(f"v_cvt_pk_bf16_f32 v{V_ACC+i}, v{V_ACC+2*i}, v{V_ACC+2*i+1}")
        nxt(self.x1)
        for u in range(4):
            A(f"s_mov_b32 s{S_M}, {0x000F000F << (4*u)}\ns_mov_b32 s{S_M+1}, {0x000F000F << (4*u)}")
            for r in range(4): A(f"v_cndmask_b32 v{V_Q+4*u+r}, 0, v{V_ACC+r}, s[{S_M}:{S_M+1}]")
        def extract(T):
            a = V_ACC + 4 * (T & 1)
            A(f"v_mov_b32_dpp v{V_SC+T}, v{a} quad_perm:[0,0,0,0] {DPPF}")
            for q in range(1, 4): A(f"v_add_f32_dpp v{V_SC+T}, v{a+q}, v{V_SC+T} quad_perm:[{q},{q},{q},{q}] {DPPF}")
        for T in range(8):
            a = V_ACC + 4 * (T & 1)
            until(("K", 4*T+3))
            while len(self.vm) - 1 - self.vm.index(f"K{4*T+3}") < self.D - 1:
                k, t = seq[pos]
                if k == "V": assert t < 4 * T, (t, T)
                nxt()
            self.wait(f"K{4*T+3}")
            for u in range(4):
                A(f"v_mfma_f32_16x16x32_bf16 {vr(a,4)}, {vr(V_Q+4*u,4)}, {vr(slot(4*T+u),4)}, {vr(a,4) if u else '0'}")
            if T: extract(T - 1)
        nxt()
        extract(7)
        t0 = V_ACC
        for a in range(4):
            x, y = V_SC + 2*a, V_SC + 2*a + 1
            self.rnd_pair(x, y, t0 + a)
            A(f"v_mul_f32 v{x}, 0x3db504f3, v{x}\nv_mul_f32 v{y}, 0x3db504f3, v{y}")
            self.rnd_pair(x, y, t0 + a)
        m, tm, l = V_Q, V_Q + 2, V_Q + 1
        A(f"v_max3_f32 v{m}, v{V_SC}, v{V_SC+1}, v{V_SC+2}\nv_max3_f32 v{tm}, v{V_SC+3}, v{V_SC+4}, v{V_SC+5}")
        A(f"v_max3_f32 v{m}, v{m}, v{V_SC+6}, v{V_SC+7}\nv_max_f32 v{m}, v{m}, v{tm}")
        self.allred("v_max_f32", m, tm)
        for i in range(8): A(f"v_sub_f32 v{t0+i}, v{V_SC+i}, v{m}")
        for i in range(8): A(f"v_mul_f32 v{t0+i}, {LOG2E}, v{t0+i}")
        for i in range(8): A(f"v_exp_f32 v{t0+i}, v{t0+i}")
        for i in range(4): A(f"v_add_f32 v{t0+i}, v{t0+i}, v{t0+4+i}")
        A(f"v_add_f32 v{t0}, v{t0}, v{t0+2}\nv_add_f32 v{t0+1}, v{t0+1}, v{t0+3}\nv_add_f32 v{l}, v{t0}, v{t0+1}")
        self.allred("v_add_f32", l, tm)
        A(f"""
        s_lshl_b32 s{S_T1}, s{S_W}, 3
        v_mov_b32 v7, s{S_T1}
        ds_write_b64 v7, {vr(m,2)} offset:{L_SM}
        v_and_b32 v7, 7, v0
        v_lshlrev_b32 v7, 3, v7
        """)
        for i in range(self.vextra):
            if seq[pos][0] == "V": nxt(self.x2)
        A(f"s_waitcnt lgkmcnt(0)\ns_barrier\nds_read_b64 {vr(m,2)}, v7 offset:{L_SM}")
        self.stamp("smax"); self.smax_done = True
        nxt(self.x1)
        A("s_waitcnt lgkmcnt(0)")
        A(f"v_max_f32_dpp v{tm}, v{m}, v{m} quad_perm:[1,0,3,2] {DPPF}")
        for md in ("quad_perm:[2,3,0,1]", "row_half_mirror"): A(f"v_max_f32_dpp v{tm}, v{tm}, v{tm} {md} {DPPF}")
        A(f"v_sub_f32 v{m}, v{m}, v{tm}\nv_mul_f32 v{m}, {LOG2E}, v{m}\nv_exp_f32 v{m}, v{m}")
        for i in range(8): A(f"v_sub_f32 v{V_SC+i}, v{V_SC+i}, v{tm}")
        A(f"v_mul_f32 v{l}, v{l}, v{m}")
        for i in range(8): A(f"v_mul_f32 v{V_SC+i}, {LOG2E}, v{V_SC+i}")
        for md in ("quad_perm:[1,0,3,2]", "quad_perm:[2,3,0,1]", "row_half_mirror"):
            A(f"v_add_f32_dpp v{l}, v{l}, v{l} {md} {DPPF}")
        for i in range(8): A(f"v_exp_f32 v{V_SC+i}, v{V_SC+i}")
        A(f"v_rcp_f32 v{l}, v{l}")
        nxt(self.x1)
        for i in range(8): A(f"v_mul_f32 v{V_SC+i}, v{V_SC+i}, v{l}")
        for i in range(8): A(f"v_cvt_pk_bf16_f32 v{V_SC+i}, v{V_SC+i}, v{V_SC+i}")
        if self.klin:
            A(f"v_bfe_u32 v7, v0, 2, 2\nv_lshlrev_b32 v7, 6, v7\nv_lshl_add_u32 v7, v{V_G}, 4, v7")
            for i in range(8): A(f"ds_bpermute_b32 v{V_SC+i}, v7, v{V_SC+i}")
            A("s_waitcnt lgkmcnt(0)")
        oacc = V_ACC
        def mkA(t):
            a = V_Q + 4 * (t & 1)
            for r in range(4): A(f"v_and_b32_dpp v{a+r}, v{V_SC+(t>>2)}, v{V_MASK+r} row_newbcast:{4*(t&3)} {DPPF}")
        def pvstep(t):
            if t < 31: mkA(t + 1)
            self.wait(f"V{t}")
            A(f"v_mfma_f32_16x16x32_bf16 {vr(oacc,4)}, {vr(V_Q+4*(t&1),4)}, {vr(slot(t),4)}, {vr(oacc,4) if t else '0'}")
        mkA(0)
        t = 0
        while True:
            until(("V", t))
            while pos < len(seq) and len(self.vm) - 1 - self.vm.index(f"V{t}") < self.D - 1: nxt()
            if pos == len(seq) and self.wo_late: break
            pvstep(t); t += 1
            if t == 32: break
        if self.wo_late:
            save = (list(self.vm), self.done, set(self.stamped))
            A(f"s_cmp_eq_u32 s{S_ROLE}, 3\ns_cbranch_scc1 L_pvwo")
            for variant in (0, 1):
                self.vm, self.done, self.stamped = list(save[0]), save[1], set(save[2])
                if variant: A("L_pvwo:")
                nw = 0
                for tt in range(t, 32):
                    if variant and nw < 4 and tt > t: self.ldF(f"W{nw}", fl=""); nw += 1
                    pvstep(tt)
                if variant:
                    while nw < 4: self.ldF(f"W{nw}", fl=""); nw += 1
                else: A("s_branch L_pvdone")
            A("L_pvdone:")
        self.stamp("pv")
        if "notail" not in self.dbg: self.tail()
        if self.dbgout:
            self.stamp("end")
            A("s_waitcnt vmcnt(0) lgkmcnt(0)\ns_mov_b64 exec, 1")
            A(f"s_cmp_eq_u32 s{S_ROLE}, 2\ns_cbranch_scc1 L_end")
            A(f"s_not_b32 s{S_T0}, s{S_ST}\nv_mov_b32 v6, s{S_T0}\nglobal_atomic_umax v[126:127], v6, off offset:28")
            for i in range(7): A(f"v_mov_b32 v6, s{S_ST+2*i}\nglobal_atomic_umax v[126:127], v6, off offset:{4*i}")
        elif self.stamps:
            self.stamp("end")
            A(f"""
            s_waitcnt vmcnt(0) lgkmcnt(0)
            s_add_u32 s{S_WS}, s{S_WS}, {WS_STAMP}
            s_addc_u32 s{S_WS+1}, s{S_WS+1}, 0
            s_lshl_b32 s{S_T1}, s2, 3
            s_add_u32 s{S_T1}, s{S_T1}, s{S_W}
            s_lshl_b32 s{S_T1}, s{S_T1}, 6
            v_mov_b32 v6, s{S_T1}
            """)
            for i in range(14): A(f"v_mov_b32 v{slot(0)+i}, s{S_ST+i}")
            A(f"v_mov_b32 v{slot(0)+14}, s{S_ROLE}\nv_mov_b32 v{slot(0)+15}, 0x80000000\ns_mov_b64 exec, 1")
            for i in range(4): A(f"global_store_dwordx4 v6, {vr(slot(i),4)}, s[{S_WS}:{S_WS+1}] offset:{16*i}")
        A("L_end:\ns_endpgm")
        A('.section .rodata,"a"\n.p2align 6')
        A(f".amdhsa_kernel {NAME}_kernel")
        A("""
        .amdhsa_next_free_vgpr 256
        .amdhsa_next_free_sgpr 102
        .amdhsa_accum_offset 256
        .amdhsa_group_segment_fixed_size 0
        .amdhsa_kernarg_size 104
        .amdhsa_user_sgpr_count 2
        .amdhsa_user_sgpr_kernarg_segment_ptr 1
        .amdhsa_system_sgpr_workgroup_id_x 1
        .amdhsa_float_denorm_mode_32 3
        .end_amdhsa_kernel
        """)
        txt = A.finish()
        import re
        out = []
        for l in txt.split("\n"):
            if "nowq" in self.dbg and f"s_mov_b32 s{R_WQ+2}," in l: l = f"s_mov_b32 s{R_WQ+2}, 0x100000\nv_mov_b32 v{V_ACC+2}, 0x200000"
            if "nox" in self.dbg.split() and "global_load" in l and f"s[{S_X}:{S_X+1}]" in l and "v59" not in l: l = f"buffer_load_dword v{V_Q}, v{V_ACC+2}, {srd(R_WQ)}, 0 offen"
            if "now" in self.dbg.split() and "L_now" in l and "cbranch" in l: l = l.replace("s_cbranch_scc0", "s_branch")
            if "nost" in self.dbg and "store" in l and "sc1" in l: l = "s_nop 0"
            if "nost" in self.dbg and ("s_cbranch_vccz L_qok" in l or "s_cbranch_vccz L_xok" in l): l = l.replace("s_cbranch_vccz", "s_branch")
            if "xnont" in self.dbg and "global_load" in l and f"s[{S_X}:{S_X+1}]" in l: l = l.replace(" nt", "")
            if "noclr" in self.dbg and "buffer_store_dwordx4 v[12:15]" in l: l = "s_nop 0"
            if "noxct" in self.dbg and "global_store_dword v5, v7" in l: l = "s_nop 0"
            if "noxct" in self.dbg and "s_cbranch_vccz L_xok" in l: l = l.replace("s_cbranch_vccz", "s_branch")
            if "qplain" in self.dbg and "buffer_store_dwordx4 v[24:27]" in l: l = l.replace(" sc1", "")
            if "noatom" in self.dbg and "s_atomic_add" in l: l = "s_nop 0"
            if "noatom" in self.dbg and "s_cbranch_scc1 L_xok" in l: l = "s_branch L_xok"
            if "noatom" in self.dbg and "s_cmp_eq_u32 s1, s0" in l: l = "s_cmp_eq_u32 s0, s0"
            if "kvhx" in self.dbg and "s_lshl_b32 s13, s2, 20" in l: l = "s_lshl_b32 s13, s10, 2\ns_lshr_b32 s12, s3, 3\ns_add_u32 s13, s13, s12\ns_lshl_b32 s12, s4, 5\ns_add_u32 s13, s13, s12\ns_lshl_b32 s13, s13, 20"
            if "nobar" in self.dbg and "s_barrier" in l: l = "s_nop 0"
            out.append(l)
        return "\n".join(out)

    OW, OR, OS = V_X, V_X+1, V_X+2
    A0, A1, A2, A3, A4, A5, A6, A7 = [V_X+3+i for i in range(8)]
    XP = V_X + 11; XC = V_X + 12; L4 = V_X + 13; WR = V_X + 16
    WF = V_X + 24

    def lstore(self, txt):
        self.uid += 1
        self.A(f"s_cbranch_scc1 L_ls{self.uid}\n{txt} sc1\ns_branch L_le{self.uid}\nL_ls{self.uid}:\n{txt}\nL_le{self.uid}:")
    def setloc(self):
        self.A(f"s_cmp_eq_u32 s{S_LOC}, 1")

    def xct_load(self, _):
        A = self.A; s = self
        A(f"v_and_b32 v{s.L4}, 31, v0\nv_lshlrev_b32 v{s.L4}, 2, v{s.L4}")
        self.issue("xct", f"buffer_load_dword v{s.XC}, v{s.L4}, {srd(R_WS)}, s{S_XT} offen offset:128 sc1")

    def prefetch(self, k):
        A = self.A
        if k == 0:
            A(f"""
            s_mul_i32 s{S_T0}, s{S_H}, 163840
            s_mul_i32 s{S_T1}, s{S_B}, 20480
            s_add_u32 s{S_T0}, s{S_T0}, s{S_T1}
            s_mul_i32 s{S_T1}, s{S_W}, 2560
            s_add_u32 s{S_T0}, s{S_T0}, s{S_T1}
            s_add_u32 s{S_M}, s{S_WO}, s{S_T0}
            s_addc_u32 s{S_M+1}, s{S_WO+1}, 0
            v_lshlrev_b32 v6, 7, v{V_L}
            s_mov_b64 exec, 0xfffff
            """)
        elif k == 1:
            A(f"""
            s_and_b32 s{S_T0}, s2, 7
            s_mul_i32 s{S_T0}, s{S_T0}, 448
            s_and_b32 s{S_T0}, s{S_T0}, -128
            s_min_u32 s{S_T0}, s{S_T0}, {3456-512}
            s_lshr_b32 s{S_T1}, s2, 3
            s_lshl_b32 s{S_T1}, s{S_T1}, 2
            s_and_b32 s{S_T2}, s{S_W}, 3
            s_add_u32 s{S_T1}, s{S_T1}, s{S_T2}
            s_lshr_b32 s{S_T2}, s{S_T1}, 4
            s_mul_i32 s{S_T2}, s{S_T2}, {80*3456}
            s_and_b32 s{S_T1}, s{S_T1}, 15
            s_mul_i32 s{S_T1}, s{S_T1}, {self.pfn*3456}
            s_add_u32 s{S_T0}, s{S_T0}, s{S_T1}
            s_add_u32 s{S_T0}, s{S_T0}, s{S_T2}
            s_add_u32 s{S_T0}, s{S_T0}, {(80-16*self.pfn)*3456}
            s_cmp_lt_u32 s{S_W}, 4
            s_cselect_b32 s{S_M}, s{S_WG}, s{S_WU}
            s_cselect_b32 s{S_M+1}, s{S_WG+1}, s{S_WU+1}
            s_add_u32 s{S_M}, s{S_M}, s{S_T0}
            s_addc_u32 s{S_M+1}, s{S_M+1}, 0
            v_lshrrev_b32 v6, 2, v{V_L}
            v_mul_u32_u24 v6, 3456, v6
            v_and_b32 v7, 3, v0
            v_lshl_add_u32 v6, v7, 7, v6
            s_mov_b64 exec, {(1 << (4*self.pfn)) - 1}
            """)
        else:
            A(f"""
            s_getpc_b64 s[{S_M}:{S_M+1}]
            L_pc:
            s_lshr_b32 s{S_T0}, s2, 3
            s_and_b32 s{S_T0}, s{S_T0}, 15
            s_lshl_b32 s{S_T0}, s{S_T0}, 3
            s_add_u32 s{S_T0}, s{S_T0}, s{S_W}
            s_lshl_b32 s{S_T0}, s{S_T0}, 7
            s_min_u32 s{S_T0}, s{S_T0}, L_end-L_pc-4
            v_mov_b32 v6, s{S_T0}
            s_mov_b64 exec, 1
            """)
        self.issue(f"pf{k}", f"global_load_dword v45, v6, s[{S_M}:{S_M+1}]")
        A("s_mov_b64 exec, -1")

    def tail_setup(self):
        A = self.A; s = self
        self.wait("xct")
        A(f"""
        L_xchk:
        v_xor_b32 v6, s{S_SIG}, v{s.XC}
        v_cmp_lt_u32 vcc, 15, v6
        s_cbranch_vccz L_xok
        buffer_load_dword v{s.XC}, v{s.L4}, {srd(R_WS)}, s{S_XT} offen offset:128 sc1
        s_waitcnt vmcnt(0)
        """)
        self.spin_guard("L_xchk", 2)
        A(f"""
        L_xok:
        v_cmp_ne_u32 vcc, 0, v6
        s_cmp_eq_u64 vcc, 0
        s_cselect_b32 s{S_LOC}, {1 if self.local else 0}, 0
        v_lshlrev_b32 v{s.L4}, 2, v{V_L}
        v_lshlrev_b32 v{s.OW}, 5, v{V_C}
        v_lshl_add_u32 v{s.OW}, v{V_G}, 4, v{s.OW}
        s_lshl_b32 s{S_T1}, s{S_W}, 9
        v_add_u32 v{s.OW}, s{S_T1}, v{s.OW}
        v_bfe_u32 v7, v0, 5, 1
        v_lshlrev_b32 v{s.OR}, 3, v{V_L}
        v_lshrrev_b32 v6, 2, v{V_L}
        v_lshlrev_b32 v{s.OS}, 7, v6
        v_and_b32 v6, 3, v0
        v_lshl_add_u32 v{s.OS}, v6, 2, v{s.OS}
        s_lshr_b32 s{S_T1}, s{S_H}, 3
        s_lshl_b32 s{S_T1}, s{S_T1}, 7
        s_add_u32 s{S_T1}, s{S_T1}, s{S_B}
        s_lshl_b32 s{S_T1}, s{S_T1}, 4
        v_add_u32 v{s.OS}, s{S_T1}, v{s.OS}
        s_mul_i32 s{S_A3}, s{S_W}, 1280
        s_add_u32 s{S_A3}, s{S_A3}, s{S_GRP}
        s_add_u32 s{S_A3}, s{S_A3}, {G_H}
        v_and_b32 v5, 7, v0
        v_bfe_u32 v6, v0, 3, 1
        s_and_b32 s{S_T0}, s2, 7
        s_and_b32 s{S_T1}, s{S_W}, 3
        s_cmp_eq_u32 s{S_ROLE}, 3
        s_cbranch_scc0 L_tsffn
        """)
        A(f"""
        v_lshlrev_b32 v{s.A0}, 4, v5
        v_lshl_add_u32 v{s.A0}, v6, 9, v{s.A0}
        v_lshl_add_u32 v{s.A0}, v{V_G}, 7, v{s.A0}
        s_cmp_ge_u32 s{S_IDX}, 10
        s_cselect_b32 s{S_A0}, 4096, 0
        s_add_u32 s{S_A0}, s{S_A0}, s{S_GRP}
        v_bfe_u32 v{s.A1}, v0, 3, 2
        v_xor_b32 v{s.A1}, s{S_T1}, v{s.A1}
        v_lshlrev_b32 v{s.A1}, 5, v{s.A1}
        v_and_b32 v{s.A2}, 3, v0
        v_lshl_add_u32 v{s.A1}, v{s.A2}, 3, v{s.A1}
        v_bfe_u32 v{s.A4}, v0, 2, 2
        v_lshl_add_u32 v{s.A1}, v{s.A4}, 7, v{s.A1}
        v_lshl_add_u32 v{s.A1}, v{V_G}, 10, v{s.A1}
        v_add_u32 v{s.A1}, {L_W}, v{s.A1}
        v_lshlrev_b32 v{s.A3}, 4, v5
        v_lshl_add_u32 v{s.A3}, v{V_G}, 7, v{s.A3}
        s_mul_i32 s{S_A1}, s{S_T0}, 20480
        s_lshl_b32 s{S_T2}, s{S_IDX}, 11
        s_add_u32 s{S_A1}, s{S_A1}, s{S_T2}
        s_cmp_ge_u32 s{S_IDX}, 10
        s_cselect_b32 s{S_T2}, {7*20480}, 0
        s_add_u32 s{S_A1}, s{S_A1}, s{S_T2}
        s_lshl_b32 s{S_T2}, s{S_T1}, 9
        s_add_u32 s{S_A1}, s{S_A1}, s{S_T2}
        s_add_u32 s{S_A1}, s{S_A1}, {WS_SLAB}
        v_lshl_add_u32 v{s.A4}, v7, 2, v{s.A4}
        v_mul_u32_u24 v{s.A4}, 20480, v{s.A4}
        v_bfe_u32 v5, v0, 4, 1
        v_lshl_add_u32 v{s.A4}, v5, 6, v{s.A4}
        v_lshl_add_u32 v{s.A4}, v{s.A2}, 4, v{s.A4}
        s_lshl_b32 s{S_T2}, s{S_IDX}, 10
        s_lshl_b32 s{S_T3}, s{S_W}, 7
        s_add_u32 s{S_T2}, s{S_T2}, s{S_T3}
        v_add_u32 v{s.A4}, s{S_T2}, v{s.A4}
        v_lshl_add_u32 v5, v5, 2, v{s.A2}
        v_lshlrev_b32 v{s.A6}, 4, v5
        v_mul_u32_u24 v{s.A5}, 1280, v5
        v_lshl_add_u32 v{s.A5}, v7, 2, v{s.A5}
        s_lshl_b32 s{S_T2}, s{S_IDX}, 6
        s_lshl_b32 s{S_T3}, s{S_W}, 3
        s_add_u32 s{S_T2}, s{S_T2}, s{S_T3}
        v_add_u32 v{s.A5}, s{S_T2}, v{s.A5}
        s_add_u32 s{S_A2}, s{S_GRP}, {G_H}
        s_mov_b32 s84, {WS_SLAB}
        s_mov_b32 s85, {WS_SLAB + 8*20480}
        s_mov_b32 s86, {WS_YP}
        """)
        if self.bmask:
            A(f"""
            v_lshl_add_u32 v{s.A7}, v6, 5, v{s.A5}
            s_cmp_lt_u32 s{S_W}, 4
            s_cbranch_scc0 L_noxp
            s_mov_b32 exec_lo, 0x0f0f0f0f
            s_mov_b32 exec_hi, 0x0f0f0f0f
            global_load_dword v{s.XP}, v{s.A7}, s[{S_X}:{S_X+1}] nt
            s_mov_b64 exec, -1
            L_noxp:
            """)
        else:
            A(f"""
            s_mov_b32 exec_lo, 0x000f000f
            s_mov_b32 exec_hi, 0x000f000f
            global_load_dword v{s.XP}, v{s.A5}, s[{S_X}:{S_X+1}] nt
            s_mov_b64 exec, -1
            """)
        A(f"""
        """)
        if not self.wo_late: self.wofrags()
        if self.srep:
            A(f"""
            s_add_u32 s{S_A1}, s{S_A1}, {WS_SREP - WS_SLAB}
            v_mul_u32_u24 v6, {16*20480}, v6
            v_add_u32 v{s.A3}, v{s.A3}, v6
            s_mul_i32 s84, s{S_T0}, {16*20480}
            s_add_u32 s84, s84, {WS_SREP}
            s_add_u32 s85, s84, {8*20480}
            """)
        A(f"""
        s_and_b32 s{S_T2}, s{S_IDX}, 7
        s_cmp_eq_u32 s{S_T2}, s{S_T0}
        s_cselect_b32 s{S_EJOB}, 1, 0
        s_cbranch_scc0 L_tsdone
        global_load_dwordx4 {vr(s.WR,4)}, v{V_L16}, s[{S_WR}:{S_WR+1}] nt
        global_load_dword v{s.WR+4}, v{s.L4}, s[{S_WR}:{S_WR+1}] offset:1024 nt
        s_mov_b64 exec, 1
        global_load_dword v{s.XC}, v{s.A5}, s[{S_OUT}:{S_OUT+1}] nt
        s_mov_b64 exec, -1
        s_branch L_tsdone
        L_tsffn:
        s_cmp_eq_u32 s{S_ROLE}, 2
        s_cbranch_scc1 L_tsdown
        """)
        A(f"""
        s_lshl_b32 s{S_T2}, s{S_W}, 3
        v_mov_b32 v{s.A0}, s{S_T2}
        v_lshlrev_b32 v{s.A1}, 3, v5
        s_mul_i32 s{S_T2}, s{S_W}, {XS}
        v_add_u32 v{s.A2}, s{S_T2}, v{V_L16}
        v_add_u32 v{s.A3}, s{S_T2}, v{s.L4}
        s_mul_i32 s{S_T2}, s{S_W}, 1056
        v_add_u32 v{s.A5}, s{S_T2}, v{V_L16}
        v_lshlrev_b32 v{s.A6}, 4, v5
        v_mul_u32_u24 v6, {4*1056}, v6
        v_add_u32 v{s.A6}, v{s.A6}, v6
        v_bfe_u32 v6, v0, 4, 1
        v_lshl_add_u32 v{s.A6}, v6, 3, v{s.A6}
        v_lshl_add_u32 v{s.A6}, v7, 8, v{s.A6}
        s_lshr_b32 s{S_T2}, s{S_T1}, 1
        s_lshl_b32 s{S_T2}, s{S_T2}, 7
        s_and_b32 s{S_T3}, s{S_T1}, 1
        s_lshl_b32 s{S_T3}, s{S_T3}, 9
        s_add_u32 s{S_T2}, s{S_T2}, s{S_T3}
        v_add_u32 v{s.A6}, s{S_T2}, v{s.A6}
        v_mul_u32_u24 v{s.A4}, {XS}, v5
        v_lshl_add_u32 v{s.A4}, v{V_G}, 4, v{s.A4}
        s_mul_i32 s{S_T2}, s{S_T1}, 320
        v_add_u32 v{s.A4}, s{S_T2}, v{s.A4}
        v_bfe_u32 v{s.A7}, v0, 2, 2
        v_lshlrev_b32 v{s.A7}, 6, v{s.A7}
        v_and_b32 v6, 3, v0
        v_lshl_add_u32 v{s.A7}, v6, 3, v{s.A7}
        v_lshl_add_u32 v{s.A7}, v{V_G}, 9, v{s.A7}
        v_add_u32 v{s.A7}, s{S_LM0}, v{s.A7}
        v_lshlrev_b32 v{s.XP}, 4, v5
        v_lshl_add_u32 v{s.XP}, v{V_G}, 2, v{s.XP}
        s_lshl_b32 s{S_A2}, s{S_IDX}, 9
        s_lshl_b32 s{S_T2}, s{S_T1}, 7
        s_add_u32 s{S_A2}, s{S_A2}, s{S_T2}
        s_branch L_tsdone
        L_tsdown:
        v_lshlrev_b32 v{s.A0}, 4, v5
        v_lshl_add_u32 v{s.A0}, v6, 9, v{s.A0}
        v_lshl_add_u32 v{s.A0}, v{V_G}, 7, v{s.A0}
        s_lshl_b32 s{S_T2}, s{S_T1}, 2
        v_bfe_u32 v{s.A1}, v0, 1, 1
        v_add_u32 v{s.A1}, s{S_T2}, v{s.A1}
        v_bfe_u32 v{s.A2}, v0, 2, 2
        v_lshlrev_b32 v{s.A3}, 1, v{s.A2}
        v_xor_b32 v{s.A1}, v{s.A1}, v{s.A3}
        v_lshlrev_b32 v{s.A1}, 4, v{s.A1}
        v_lshl_add_u32 v{s.A1}, v{s.A2}, 8, v{s.A1}
        v_and_b32 v{s.A2}, 1, v0
        v_lshl_add_u32 v{s.A1}, v{s.A2}, 3, v{s.A1}
        v_lshl_add_u32 v{s.A1}, v{V_G}, 14, v{s.A1}
        v_add_u32 v{s.A1}, {L_W}, v{s.A1}
        v_xor_b32 v{s.A2}, 32, v{s.A1}
        v_xor_b32 v{s.A6}, 128, v{s.A1}
        v_xor_b32 v{s.A7}, 160, v{s.A1}
        v_mov_b32 v{s.A3}, v{s.A0}
        s_mul_i32 s{S_A1}, s{S_T0}, 20480
        s_lshl_b32 s{S_T2}, s{S_IDX}, 12
        s_add_u32 s{S_A1}, s{S_A1}, s{S_T2}
        s_lshl_b32 s{S_T2}, s{S_T1}, 10
        s_add_u32 s{S_A1}, s{S_A1}, s{S_T2}
        s_add_u32 s{S_A1}, s{S_A1}, {WS_YP}
        L_tsdone:
        """)
        self.setthr()

    def wofrags(self):
        for st in range(8):
            for hf in range(2): self.A(f"ds_read_b64_tr_b16 {vr(self.WF+4*st+2*hf,2)}, v{self.A1} offset:{4096*st+512*hf}")
            if st == 6: self.A("s_waitcnt lgkmcnt(8)")
    def red_lanes(self, P):
        A = self.A
        A(f"v_permlane32_swap_b32 v{P}, v{P+2}\nv_permlane32_swap_b32 v{P+1}, v{P+3}")
        A(f"v_add_f32 v{P}, v{P}, v{P+2}\nv_add_f32 v{P+1}, v{P+1}, v{P+3}")
        for md in ("row_ror:8", "row_ror:4"):
            for i in range(2): A(f"v_add_f32_dpp v{P+i}, v{P+i}, v{P+i} {md} {DPPF}")
    def hpoll(self, lab, HR):
        A = self.A; s = self
        A(f"L_{lab}poll:")
        A(f"buffer_load_dwordx4 {vr(HR,4)}, v{V_L16}, {srd(R_WS)}, s{S_A3} offen sc1")
        A(f"buffer_load_dword v{HR+4}, v{s.L4}, {srd(R_WS)}, s{S_A3} offen offset:1024 sc1")
        A("s_waitcnt vmcnt(0)")
        self.sentinel(HR, 5, 6)
        A(f"s_cbranch_vccz L_{lab}ok")
        self.spin_guard(f"L_{lab}poll")
        A(f"L_{lab}ok:")

    def tail(self):
        A = self.A; s = self
        oacc = V_ACC; P = slot(0); WF = s.WF
        A(f"""
        s_cmp_eq_u32 s{S_W}, 0
        s_mov_b32 exec_hi, 0
        s_nop 4
        ds_write_b128 v{s.OW}, {vr(oacc,4)} offset:{L_QP}
        s_mov_b64 exec, -1
        s_waitcnt lgkmcnt(0)
        s_barrier
        s_cbranch_scc0 L_noopub
        """)
        for i in range(4): A(f"ds_read2st64_b64 {vr(P+4*i,4)}, v{s.OR} offset0:{L_QP//512+2*i} offset1:{L_QP//512+2*i+1}")
        self.setloc()
        A("s_waitcnt lgkmcnt(2)")
        A(f"v_pk_add_f32 {vr(P,2)}, {vr(P,2)}, {vr(P+2,2)}\nv_pk_add_f32 {vr(P+4,2)}, {vr(P+4,2)}, {vr(P+6,2)}\nv_pk_add_f32 {vr(P,2)}, {vr(P,2)}, {vr(P+4,2)}")
        A("s_waitcnt lgkmcnt(0)")
        A(f"v_pk_add_f32 {vr(P+8,2)}, {vr(P+8,2)}, {vr(P+10,2)}\nv_pk_add_f32 {vr(P+12,2)}, {vr(P+12,2)}, {vr(P+14,2)}")
        A(f"v_pk_add_f32 {vr(P,2)}, {vr(P,2)}, {vr(P+8,2)}\nv_pk_add_f32 {vr(P,2)}, {vr(P,2)}, {vr(P+12,2)}")
        A(f"v_cvt_pk_bf16_f32 v{P}, v{P}, v{P+1}\nv_min_u32 v{P}, -2, v{P}")
        self.lstore(f"buffer_store_dword v{P}, v{s.OS}, {srd(R_WS)}, s{S_GRP} offen")
        A("L_noopub:")
        self.stamp("opub")
        A(f"s_cmp_eq_u32 s{S_ROLE}, 3\ns_cbranch_scc0 L_ffn")
        if self.wo_late:
            A(f"""
            s_cmp_eq_u32 s{S_W}, 0
            s_cbranch_scc1 L_w0
            s_waitcnt vmcnt(0)
            L_w0:
            s_waitcnt vmcnt(1)
            s_cmp_lt_u32 s{S_W}, 4
            s_barrier
            s_cbranch_scc1 L_low
            """)
            self.stamp("wogot")
            self.wofrags()
        else: A(f"s_cmp_lt_u32 s{S_W}, 4\ns_cbranch_scc1 L_low")
        A("L_opoll:")
        for u in range(4): A(f"buffer_load_dwordx4 {vr(P+4*u,4)}, v{s.A0}, {srd(R_WS)}, s{S_A0} offen offset:{1024*u} sc1")
        A("s_waitcnt vmcnt(0) lgkmcnt(0)")
        self.sentinel(P, 16, 6)
        A("s_cbranch_vccz L_ook")
        self.spin_guard("L_opoll")
        A("L_ook:")
        self.stamp("ook")
        D = slot(4)
        for u in range(4):
            for par in range(2):
                d = D + 4*par
                A(f"v_mfma_f32_16x16x32_bf16 {vr(d,4)}, {vr(WF+4*(2*u+par),4)}, {vr(P+4*u,4)}, {vr(d,4) if u else '0'}")
        if self.srep:
            R = slot(6)
            for i in range(4): A(f"v_add_f32_dpp v{R+i}, v{D+4+i}, v{D+i} row_ror:8 row_mask:0xf bank_mask:0x3")
            for i in range(4): A(f"v_add_f32_dpp v{R+i}, v{D+i}, v{D+4+i} row_ror:8 row_mask:0xf bank_mask:0xc")
            for i in range(4): A(f"v_and_or_b32 v{R+i}, v{R+i}, -16, s{S_T4}")
            for r in range(4):
                A(f"buffer_store_dwordx4 {vr(R,4)}, v{s.A3}, {srd(R_WS)}, s{S_A1} offen sc1")
                if r < 3: A(f"s_add_u32 s{S_A1}, s{S_A1}, {2*16*20480}")
        else:
            for i in range(4): A(f"v_add_f32_dpp v{D+i}, v{D+4+i}, v{D+i} row_ror:8 {DPPF}")
            A("s_mov_b32 exec_lo, 0x00ff00ff\ns_mov_b32 exec_hi, 0x00ff00ff")
            for i in range(4): A(f"v_and_or_b32 v{D+i}, v{D+i}, -16, s{S_T4}")
            A(f"buffer_store_dwordx4 {vr(D,4)}, v{s.A3}, {srd(R_WS)}, s{S_A1} offen sc1")
            A("s_mov_b64 exec, -1")
        self.stamp("slab")
        P = slot(8); HP = P + 20
        if not self.bmask:
            A("L_low:\ns_barrier")
            A(f"v_lshlrev_b32 v{P+8}, 16, v{s.XP}\nv_and_b32 v{P+9}, 0xffff0000, v{s.XP}")
            A("L_redpoll:")
            for t in range(2): A(f"buffer_load_dwordx4 {vr(P+4*t,4)}, v{s.A4}, {srd(R_WS)}, s{84+t} offen sc1")
            A("s_waitcnt vmcnt(0)")
            self.tagcheck(P, 8, 6, S_T4, 15)
            A("s_cbranch_vccz L_redok")
            self.spin_guard("L_redpoll")
            A("L_redok:")
            self.stamp("redok")
            for hh in (0, 2): A(f"v_pk_add_f32 {vr(P+hh,2)}, {vr(P+hh,2)}, {vr(P+4+hh,2)}")
            self.setloc()
            self.red_lanes(P)
            self.rnd_pair(P, P + 1, P + 2)
            A(f"""
            v_add_f32 v{P}, v{P}, v{P+8}
            v_add_f32 v{P+1}, v{P+1}, v{P+9}
            v_cvt_pk_bf16_f32 v{HP}, v{P}, v{P+1}
            s_mov_b32 exec_lo, 0x000f000f
            s_mov_b32 exec_hi, 0x000f000f
            v_min_u32 v{HP}, -2, v{HP}
            """)
            self.lstore(f"buffer_store_dword v{HP}, v{s.A5}, {srd(R_WS)}, s{S_A2} offen")
            A(f"s_mov_b64 exec, -1")
        else:
            A("s_branch L_bdone\nL_low:")
            A(f"v_lshlrev_b32 v{P+16}, 16, v{s.XP}\nv_and_b32 v{P+17}, 0xffff0000, v{s.XP}")
            A("L_redpoll:")
            for tl in range(2):
                for t in range(2): A(f"buffer_load_dwordx4 {vr(P+8*tl+4*t,4)}, v{s.A4}, {srd(R_WS)}, s{84+t} offen offset:{512*tl} sc1")
            A("s_waitcnt vmcnt(0)")
            self.tagcheck(P, 16, 6, S_T4, 15)
            A("s_and_b64 exec, exec, vcc\ns_cbranch_execz L_redok")
            self.spin_guard("L_redpoll")
            A("L_redok:\ns_mov_b64 exec, -1")
            self.stamp("redok")
            for tl in range(2):
                for hh in (0, 2): A(f"v_pk_add_f32 {vr(P+8*tl+hh,2)}, {vr(P+8*tl+hh,2)}, {vr(P+8*tl+4+hh,2)}")
            self.setloc()
            for tl in range(2): A(f"v_permlane32_swap_b32 v{P+8*tl}, v{P+8*tl+2}\nv_permlane32_swap_b32 v{P+8*tl+1}, v{P+8*tl+3}")
            for tl in range(2): A(f"v_pk_add_f32 {vr(P+8*tl,2)}, {vr(P+8*tl,2)}, {vr(P+8*tl+2,2)}")
            for i in range(2): A(f"v_add_f32_dpp v{P+4+i}, v{P+i}, v{P+i} row_ror:8 row_mask:0xf bank_mask:0x3")
            for i in range(2): A(f"v_add_f32_dpp v{P+4+i}, v{P+8+i}, v{P+8+i} row_ror:8 row_mask:0xf bank_mask:0xc")
            for i in range(2): A(f"v_add_f32_dpp v{P+i}, v{P+4+i}, v{P+4+i} row_shl:4 {DPPF}")
            self.rnd_pair(P, P + 1, P + 2)
            A(f"""
            v_add_f32 v{P}, v{P}, v{P+16}
            v_add_f32 v{P+1}, v{P+1}, v{P+17}
            s_mov_b32 exec_lo, 0x0f0f0f0f
            s_mov_b32 exec_hi, 0x0f0f0f0f
            v_cvt_pk_bf16_f32 v{HP}, v{P}, v{P+1}
            v_min_u32 v{HP}, -2, v{HP}
            """)
            self.lstore(f"buffer_store_dword v{HP}, v{s.A7}, {srd(R_WS)}, s{S_A2} offen")
            A(f"s_mov_b64 exec, -1")
        self.stamp("hpub")
        A(f"L_bdone:\ns_cmp_eq_u32 s{S_EJOB}, 0\ns_cbranch_scc1 L_fin")
        HR = slot(14); HO = slot(16); F1 = slot(18); T1 = slot(21)
        self.hpoll("e", HR)
        self.layernorm(HR, F1, T1, HO, keep=(F1+10, F1+11))
        for i in range(5):
            A(f"v_lshlrev_b32 v{F1+2*i}, 16, v{HO+i}\nv_and_b32 v{F1+2*i+1}, 0xffff0000, v{HO+i}")
            A(f"v_lshlrev_b32 v{T1+2*i}, 16, v{s.WR+i}\nv_and_b32 v{T1+2*i+1}, 0xffff0000, v{s.WR+i}")
        A(f"v_mul_f32 v6, v{F1}, v{T1}")
        for i in range(1, 10): A(f"v_fmac_f32 v6, v{F1+i}, v{T1+i}")
        for md in ("quad_perm:[1,0,3,2]", "quad_perm:[2,3,0,1]"): A(f"v_add_f32_dpp v6, v6, v6 {md} {DPPF}")
        self.allred("v_add_f32", 6, F1)
        self.rnd1(6)
        A(f"v_mul_f32 v6, 0xbfb8aa3b, v6\nv_exp_f32 v6, v6\nv_add_f32 v6, 1.0, v6\nv_rcp_f32 v6, v6")
        self.rnd1(6)
        A(f"""
        v_mov_b32 v{F1+8}, v6
        s_lshl_b32 s{S_T1}, s{S_W}, 4
        v_mov_b32 v7, s{S_T1}
        ds_write_b128 v7, {vr(F1+8,4)} offset:{L_RED}
        s_waitcnt lgkmcnt(0)
        s_barrier
        s_mov_b32 exec_lo, 0x000f000f
        s_mov_b32 exec_hi, 0x000f000f
        buffer_load_dword v{HP}, v{s.A5}, {srd(R_WS)}, s{S_A2} offen sc1
        s_mov_b64 exec, -1
        ds_read_b128 {vr(F1,4)}, v{s.A6} offset:{L_RED}
        s_waitcnt vmcnt(0)
        v_lshlrev_b32 v{T1}, 16, v{HP}
        v_and_b32 v{T1+1}, 0xffff0000, v{HP}
        s_waitcnt lgkmcnt(0)
        v_sub_f32 v{T1+2}, v{T1}, v{F1+2}
        v_sub_f32 v{T1+3}, v{T1+1}, v{F1+2}
        """)
        self.rnd_pair(T1+2, T1+3, T1+4)
        A(f"v_mul_f32 v{T1+2}, v{T1+2}, v{F1+3}\nv_mul_f32 v{T1+3}, v{T1+3}, v{F1+3}")
        self.rnd_pair(T1+2, T1+3, T1+4)
        if self.etrig is not None:
            A(f"v_lshlrev_b32 v7, 7, v{V_L}\nL_tpoll:")
            A(f"buffer_load_dword v6, v7, {srd(R_ACT)}, 0 offen sc1\ns_waitcnt vmcnt(0)\nv_cmp_eq_u32 vcc, -1, v6\ns_cbranch_vccz L_tok")
            self.spin_guard("L_tpoll")
            A("L_tok:")
            if self.etrig: A(f"s_sleep {self.etrig}")
        A("L_ypoll:")
        A(f"buffer_load_dwordx4 {vr(P,4)}, v{s.A4}, {srd(R_WS)}, s86 offen sc1")
        A("s_waitcnt vmcnt(0)")
        self.tagcheck(P, 4, 6, S_T4, 15)
        A("s_cbranch_vccz L_yok")
        self.spin_guard("L_ypoll")
        A("L_yok:")
        self.stamp("yok")
        self.red_lanes(P)
        self.rnd_pair(P, P+1, P+2)
        A(f"v_mul_f32 v{P}, v{P}, v{F1}\nv_mul_f32 v{P+1}, v{P+1}, v{F1}")
        self.rnd_pair(P, P+1, P+2)
        A(f"v_add_f32 v{P}, v{P}, v{T1+2}\nv_add_f32 v{P+1}, v{P+1}, v{T1+3}")
        self.rnd_pair(P, P+1, P+2)
        A(f"""
        v_add_f32 v{P}, v{P}, v{T1}
        v_add_f32 v{P+1}, v{P+1}, v{T1+1}
        s_mov_b32 exec_lo, 0x000f000f
        s_mov_b32 exec_hi, 0x000f000f
        v_cvt_pk_bf16_f32 v{P}, v{P}, v{P+1}
        global_store_dword v{s.A5}, v{P}, s[{S_OUT}:{S_OUT+1}]
        s_or_b32 s{S_T1}, s2, s{S_W}
        s_cbranch_scc1 L_fin
        v_mov_b32 v6, {WS_EPOCH}
        v_mov_b32 v7, s{S_EP}
        s_mov_b64 exec, 1
        global_store_dword v6, v7, s[{S_WS}:{S_WS+1}] sc1
        s_branch L_fin
        L_ffn:
        s_cmp_eq_u32 s{S_ROLE}, 0
        s_cbranch_scc1 L_fin
        s_cmp_eq_u32 s{S_ROLE}, 2
        s_barrier
        s_cbranch_scc1 L_down
        """)
        HR = slot(4); HO = slot(6); F1 = slot(8); T1 = slot(11)
        A(f"buffer_load_dwordx4 {vr(HR,4)}, v{V_L16}, {srd(R_WS)}, s{S_A3} offen sc1")
        A(f"buffer_load_dword v{HR+4}, v{s.L4}, {srd(R_WS)}, s{S_A3} offen offset:1024 sc1")
        while self.nfc < 10: self.ldC()
        A("s_waitcnt vmcnt(0)")
        for st in range(5):
            for tl in range(2):
                for hf in range(2): A(f"ds_read_b64_tr_b16 {vr(WF+20*tl+4*st+2*hf,2)}, v{s.A7} offset:{2048*st+256*hf+32*tl}")
            if st == 2: A("s_waitcnt lgkmcnt(4)")
        BF = slot(16); DA = V_ACC; CS = slot(24)
        for i in range(4): A(f"v_mov_b32 v{BF+i}, 0x3f803f80")
        A("s_waitcnt lgkmcnt(0)")
        for st in range(5):
            for tl in range(2):
                A(f"v_mfma_f32_16x16x32_bf16 {vr(DA+4*tl,4)}, {vr(WF+20*tl+4*st,4)}, {vr(BF,4)}, {vr(DA+4*tl,4) if st else '0'}")
        def redw():
            for i in range(4): A(f"v_mov_b32_dpp v{DA+i}, v{DA+4+i} quad_perm:[0,1,2,3] row_mask:0xf bank_mask:0xc")
            A(f"ds_write_b128 v{s.A5}, {vr(DA,4)} offset:{L_RED}")
        def redr(B):
            for i in range(4): A(f"ds_read_b64 {vr(B+2*i,2)}, v{s.A6} offset:{L_RED+1056*i}")
        def reds(B):
            A(f"v_pk_add_f32 {vr(B,2)}, {vr(B,2)}, {vr(B+2,2)}\nv_pk_add_f32 {vr(B+4,2)}, {vr(B+4,2)}, {vr(B+6,2)}\nv_pk_add_f32 {vr(B,2)}, {vr(B,2)}, {vr(B+4,2)}")
        redw(); A("s_waitcnt lgkmcnt(0)\ns_barrier"); redr(CS); A("s_waitcnt lgkmcnt(0)"); reds(CS)
        self.stamp("fgot")
        self.hpoll("h", HR)
        self.stamp("hok")
        A(f"ds_write_b128 v{s.A2}, {vr(HR,4)} offset:{L_XN}\nds_write_b32 v{s.A3}, v{HR+4} offset:{L_XN+1024}")
        n0 = len(A.L)
        self.layernorm(HR, F1, T1, HO, stats_only=True)
        st_lines = A.L[n0:]; del A.L[n0:]
        for l in st_lines[:11]: A(l)
        A("s_waitcnt lgkmcnt(0)\ns_barrier")
        self.stamp("lnbar")
        for st in range(5): A(f"ds_read_b128 {vr(BF+4*st,4)}, v{s.A4} offset:{L_XN+64*st}")
        rest = st_lines[11:]
        for l in rest[:20]: A(l)
        rest = rest[20:]
        mf = []
        for st in range(5):
            for tl in range(2):
                mf.append((f"s_waitcnt lgkmcnt({4-st})\n" if tl == 0 else "") + f"v_mfma_f32_16x16x32_bf16 {vr(DA+4*tl,4)}, {vr(WF+20*tl+4*st,4)}, {vr(BF+4*st,4)}, {vr(DA+4*tl,4) if st else '0'}")
        per = [3, 3, 3, 2, 1, 1, 1, 1, 2, 2]
        for m_, k in zip(mf, per):
            A(m_)
            for l in rest[:k]: A(l)
            rest = rest[k:]
        for l in rest: A(l)
        A(f"s_cmp_lt_u32 s{S_W}, 4")
        redw()
        A(f"ds_write_b64 v{s.A0}, {vr(HO,2)} offset:{L_SM}")
        self.stamp("cmf")
        A("s_waitcnt lgkmcnt(0)\ns_barrier\ns_cbranch_scc0 L_fin")
        self.stamp("cbar")
        redr(BF)
        A(f"ds_read_b64 {vr(BF+8,2)}, v{s.A1} offset:{L_SM}")
        self.setloc()
        A("s_waitcnt lgkmcnt(1)"); reds(BF); A("s_waitcnt lgkmcnt(0)")
        for i in range(2): A(f"v_fma_f32 v{BF+i}, -v{BF+8}, v{CS+i}, v{BF+i}")
        for i in range(2): A(f"v_mul_f32 v{BF+i}, v{BF+i}, v{BF+9}")
        for i in range(2): A(f"v_mul_f32 v{BF+4+i}, 0xbfb8aa3b, v{BF+i}")
        for i in range(2): A(f"v_exp_f32 v{BF+4+i}, v{BF+4+i}")
        for i in range(2): A(f"v_mul_f32_dpp v{BF+2+i}, v{BF+i}, v{BF+i} row_ror:8 {DPPF}")
        for i in range(2): A(f"v_add_f32 v{BF+4+i}, 1.0, v{BF+4+i}")
        for i in range(2): A(f"v_rcp_f32 v{BF+4+i}, v{BF+4+i}")
        A("s_mov_b32 exec_lo, 0x00ff00ff\ns_mov_b32 exec_hi, 0x00ff00ff")
        for i in range(2): A(f"v_mul_f32 v{BF+4+i}, v{BF+4+i}, v{BF+2+i}")
        A(f"v_cvt_pk_bf16_f32 v{BF}, v{BF+4}, v{BF+5}\nv_min_u32 v{BF}, -2, v{BF}")
        self.lstore(f"buffer_store_dword v{BF}, v{s.XP}, {srd(R_ACT)}, s{S_A2} offen")
        self.stamp("apub")
        A("s_branch L_fin\nL_down:")
        for i in range(7): self.ldF()
        A(f"s_cmp_lt_u32 s{S_W}, 4\ns_waitcnt vmcnt(0)\ns_barrier\ns_cbranch_scc0 L_fin")
        n = 0
        for tl in range(2):
            for st in range(7):
                for hf in range(2):
                    a = [[s.A1, s.A6], [s.A2, s.A7]][tl][hf]
                    A(f"ds_read_b64_tr_b16 {vr(WF+28*tl+4*st+2*hf,2)}, v{a} offset:{8192*hf+1024*st}")
                    n += 1
                    if n % 8 == 0 and n >= 8: A("s_waitcnt lgkmcnt(4)")
        self.stamp("fgot")
        P = slot(0); D = slot(4); R = slot(8)
        A("L_apoll:")
        for u in range(4): A(f"buffer_load_dwordx4 {vr(P+4*u,4)}, v{s.A0}, {srd(R_ACT)}, 0 offen offset:{1024*u} sc1")
        A("s_waitcnt vmcnt(0) lgkmcnt(0)")
        self.sentinel(P, 16, 6)
        A("s_cbranch_vccz L_aok")
        self.spin_guard("L_apoll")
        A("L_aok:")
        self.stamp("aok")
        for u in range(4):
            for par in (1, 0):
                if 2*u + par == 7: continue
                for tl in range(2):
                    d = D + 8*tl + 4*par
                    A(f"v_mfma_f32_16x16x32_bf16 {vr(d,4)}, {vr(WF+28*tl+4*(2*u+par),4)}, {vr(P+4*u,4)}, {vr(d,4) if u else '0'}")
        for i in range(4): A(f"v_add_f32_dpp v{R+i}, v{D+4+i}, v{D+i} row_ror:8 row_mask:0xf bank_mask:0x3")
        for i in range(4): A(f"v_add_f32_dpp v{R+i}, v{D+8+i}, v{D+12+i} row_ror:8 row_mask:0xf bank_mask:0xc")
        for i in range(4): A(f"v_and_or_b32 v{R+i}, v{R+i}, -16, s{S_T4}")
        A(f"buffer_store_dwordx4 {vr(R,4)}, v{s.A3}, {srd(R_WS)}, s{S_A1} offen sc1")
        self.stamp("ypub")
        A("L_fin:\ns_mov_b64 exec, -1")

if __name__ == "__main__":
    import json
    out = sys.argv[1]
    kw = json.loads(sys.argv[2]) if len(sys.argv) > 2 else {}
    g = G(**kw)
    s = g.gen()
    hdr = open("cdna_kernels/" + NAME + ".s.ref").read().split("; Override launch")[0]
    open(out, "w").write(hdr + s)
    print(out, "lines", s.count("\n"), "nops", g.A.nops)
```

```python
NAME = "sequential_preLN__sliding_block_cached__moe_arch_mod__decode"
def gen(xmask=0xff, nstat=15, ngrp=1, stride=128, sleep=0, ld="sc1", st="sc1", late=0, nwv=8, depth=1, pre=False, full=False):
    L = []; A = L.append
    A(f"; @launch grid=(256,1,1) block=(512,1,1) lds=100000")
    A('.amdgcn_target "amdgcn-amd-amdhsa--gfx950"'); A(".text")
    A(f".globl {NAME}_kernel"); A(".p2align 8"); A(f".type {NAME}_kernel,@function"); A(f"{NAME}_kernel:")
    A("s_cmp_ge_u32 s2, 256"); A("s_cbranch_scc1 L_end")
    A("s_memrealtime s[30:31]")
    A("s_load_dwordx2 s[8:9], s[0:1], 96")
    A("v_and_b32 v2, 63, v0"); A("v_lshrrev_b32 v12, 6, v0"); A("s_nop 1"); A("v_readfirstlane_b32 s5, v12")
    A("s_waitcnt lgkmcnt(0)")
    A("s_load_dword s26, s[8:9], 0")
    A("s_mov_b64 s[32:33], 0"); A("s_mov_b64 s[34:35], 0"); A("s_mov_b32 s23, 0x4000")
    A("s_waitcnt lgkmcnt(0)")
    A("s_add_u32 s26, s26, 0x1234567")
    A("s_add_u32 s40, s30, 500"); A("s_and_b32 s40, s40, 0xfffffe00"); A("s_add_u32 s40, s40, 512")
    A("s_and_b32 s6, s2, 7"); A("s_lshr_b32 s7, s2, 3")
    PS = 160 * stride
    A("v_mov_b32 v4, 0x100000"); A("global_load_dword v14, v4, s[8:9] sc1"); A("s_waitcnt vmcnt(0)")
    A("s_cmp_lt_u32 s7, 20"); A("s_cbranch_scc1 L_cons")
    A("s_cmp_lt_u32 s7, 30"); A("s_cbranch_scc0 L_fin")
    A(f"s_cmp_lt_u32 s6, {ngrp}"); A("s_cbranch_scc0 L_fin")
    A("s_cmp_lt_u32 s5, 4"); A("s_cbranch_scc0 L_fin")
    for i in range(4): A(f"v_mov_b32 v{8+i}, s26")
    A("s_sub_u32 s10, s7, 20"); A("s_lshl_b32 s10, s10, 2"); A("s_add_u32 s10, s10, s5"); A(f"s_mul_i32 s10, s10, {4*stride}")
    A(f"s_mul_i32 s11, s6, {PS}"); A("s_add_u32 s10, s10, s11"); A("s_add_u32 s10, s10, 0x10000")
    A("v_and_b32 v3, 7, v2"); A("v_lshlrev_b32 v3, 4, v3"); A("v_lshrrev_b32 v4, 4, v2"); A(f"v_mul_u32_u24 v4, {stride}, v4"); A("v_add_u32 v3, v3, v4"); A("v_add_u32 v3, s10, v3")
    A("s_mov_b32 exec_lo, 0x00ff00ff"); A("s_mov_b32 exec_hi, 0x00ff00ff")
    A("L_w:"); A("s_memrealtime s[36:37]"); A("s_waitcnt lgkmcnt(0)"); A("s_sub_u32 s38, s36, s40"); A("s_cmp_lt_i32 s38, 0"); A("s_cbranch_scc1 L_w")
    A(f"global_store_dwordx4 v3, v[8:11], s[8:9] {st}")
    A("s_memrealtime s[32:33]")
    A("s_branch L_fin")
    A("L_cons:")
    A(f"s_lshr_b32 s10, {xmask}, s6"); A("s_and_b32 s10, s10, 1"); A("s_cbranch_scc0 L_fin")
    A(f"s_cmp_lt_u32 s5, {nwv}"); A("s_cbranch_scc0 L_fin")
    A("s_lshl_b32 s10, s7, 3"); A("s_add_u32 s10, s10, s5"); A(f"s_mul_i32 s10, s10, {stride}"); A("s_add_u32 s10, s10, 0x10000")
    A("v_and_b32 v3, 7, v2"); A("v_lshlrev_b32 v3, 4, v3"); A("v_lshrrev_b32 v4, 3, v2"); A(f"v_mul_u32_u24 v4, {PS}, v4"); A("v_add_u32 v3, v3, v4"); A("v_add_u32 v3, s10, v3")
    A(f"v_add_u32 v5, {8*PS}, v3")
    n1 = min(8, ngrp + nstat); n2 = ngrp + nstat - n1
    if late:
        A("s_add_u32 s40, s40, %d" % late)
        A("L_w2:"); A("s_memrealtime s[36:37]"); A("s_waitcnt lgkmcnt(0)"); A("s_sub_u32 s38, s36, s40"); A("s_cmp_lt_i32 s38, 0"); A("s_cbranch_scc1 L_w2")
    def ex(n):
        m = (1 << (8*n)) - 1
        A(f"s_mov_b32 exec_lo, {m & 0xffffffff}"); A(f"s_mov_b32 exec_hi, {m >> 32}")
    def issue(k):
        if ld == "atom": A(f"global_atomic_or_x2 v[{16+4*k}:{17+4*k}], v3, v[14:15], s[8:9] sc0 sc1")
        else: A(f"global_load_dwordx4 v[{16+4*k}:{19+4*k}], v3, s[8:9] {ld}")
    assert n2 == 0
    A("v_mov_b32 v14, 0"); A("v_mov_b32 v15, 0")
    ex(n1)
    if pre: A("global_load_dwordx4 v[16:19], v3, s[8:9] sc1"); A("s_waitcnt vmcnt(0)")
    if full:
        A("s_mov_b64 exec, -1")
        A("v_and_b32 v3, 15, v2"); A("v_lshlrev_b32 v3, 3, v3"); A("v_lshrrev_b32 v4, 4, v2"); A(f"v_mul_u32_u24 v4, {PS}, v4"); A("v_add_u32 v3, v3, v4"); A("v_add_u32 v3, s10, v3")
        ex(2 * n1)
    for k in range(depth - 1):
        issue(k)
        if sleep: A(f"s_sleep {sleep}")
    A("L_poll:")
    for k in range(depth):
        issue((k + depth - 1) % depth)
        A(f"s_waitcnt vmcnt({depth-1})")
        A(f"v_xor_b32 v6, s26, v{16+4*k}")
        for i in range(1, 2): A(f"v_bitop3_b32 v6, v6, v{16+4*k+i}, s26 bitop3:0xf6")
        A("v_cmp_ne_u32 vcc, 0, v6"); A("s_nop 1"); A("s_cbranch_vccz L_got")
        if sleep: A(f"s_sleep {sleep}")
    A("s_sub_u32 s23, s23, 1"); A("s_cmp_eq_u32 s23, 0"); A("s_cbranch_scc0 L_poll")
    A("L_got:")
    A("s_memrealtime s[34:35]")
    A("L_fin:")
    A("s_waitcnt vmcnt(0) lgkmcnt(0)")
    A("s_add_u32 s8, s8, 0x4000000"); A("s_addc_u32 s9, s9, 0")
    A("s_lshl_b32 s20, s2, 3"); A("s_add_u32 s20, s20, s5"); A("s_lshl_b32 s20, s20, 5"); A("s_mov_b64 exec, 1"); A("v_mov_b32 v1, s20")
    A("v_mov_b32 v8, s30"); A("v_mov_b32 v9, s31"); A("v_mov_b32 v10, s32"); A("v_mov_b32 v11, s33")
    A("v_mov_b32 v12, s34"); A("v_mov_b32 v13, s35"); A("v_mov_b32 v14, 0"); A("v_mov_b32 v15, 0x80000000")
    A("global_store_dwordx4 v1, v[8:11], s[8:9]"); A("global_store_dwordx4 v1, v[12:15], s[8:9] offset:16")
    A("L_end:"); A("s_endpgm")
    A('.section .rodata,"a"'); A(".p2align 6"); A(f".amdhsa_kernel {NAME}_kernel")
    A(f"  .amdhsa_next_free_vgpr 256"); A("  .amdhsa_next_free_sgpr 80"); A(f"  .amdhsa_accum_offset 256")
    A("  .amdhsa_group_segment_fixed_size 0"); A("  .amdhsa_kernarg_size 104"); A("  .amdhsa_user_sgpr_count 2")
    A("  .amdhsa_user_sgpr_kernarg_segment_ptr 1"); A("  .amdhsa_system_sgpr_workgroup_id_x 1"); A(".end_amdhsa_kernel")
    return "\n".join(L) + "\n"
if __name__ == "__main__":
    import sys, json
    cfgs = json.loads(sys.argv[1])
    for k, c in cfgs.items(): open(f"mb_{k}.s", "w").write(gen(**c))
    print(" ".join(f"mb_{k}.s" for k in cfgs)); print(", ".join(f'"work/mb_{k}.s"' for k in cfgs))
```

```python
NAME = "sequential_preLN__sliding_block_cached__moe_arch_mod__decode"
def gen(D=4, wbits=(4, 8, 16), tbits=(1, 2, 32, 64, 128), jitter=0, jmode="wg", lds=0, dirty=0, dpos=20, dfl="", nv=256, pad=0, fl="nt"):
    L = []; A = L.append
    A(f"; @launch grid=(256,1,1) block=(512,1,1) lds={lds}")
    A('.amdgcn_target "amdgcn-amd-amdhsa--gfx950"'); A(".text")
    A(f".globl {NAME}_kernel"); A(".p2align 8"); A(f".type {NAME}_kernel,@function"); A(f"{NAME}_kernel:")
    A("s_cmp_ge_u32 s2, 256"); A("s_cbranch_scc1 L_end")
    A("s_memrealtime s[30:31]")
    A("s_load_dwordx4 s[4:7], s[0:1], 8"); A("s_load_dwordx2 s[8:9], s[0:1], 96")
    A("s_and_b32 s10, s2, 7"); A("s_lshl_b32 s10, s10, 2"); A("s_lshr_b32 s11, s2, 3"); A("s_and_b32 s11, s11, 3"); A("s_add_u32 s38, s10, s11")
    A("s_lshr_b32 s11, s2, 5"); A("s_lshl_b32 s11, s11, 5"); A("s_add_u32 s10, s38, s11")
    A("s_lshl_b32 s10, s10, 20"); A("s_add_u32 s10, s10, 0xC0000")
    A("v_lshrrev_b32 v1, 6, v0"); A("v_and_b32 v2, 63, v0"); A("s_nop 1"); A("v_readfirstlane_b32 s3, v1")
    A("s_waitcnt lgkmcnt(0)")
    A("s_add_u32 s12, s4, s10"); A("s_addc_u32 s13, s5, 0"); A("s_mov_b32 s14, 0x40000"); A("s_mov_b32 s15, 0x20000")
    A("s_add_u32 s16, s6, s10"); A("s_addc_u32 s17, s7, 0"); A("s_mov_b32 s18, 0x40000"); A("s_mov_b32 s19, 0x20000")
    A("s_mov_b32 s20, 0")
    for i in range(3):
        A(f"s_bitcmp1_b32 s3, {i}"); A(f"s_cselect_b32 s21, {wbits[i]*1024}, 0"); A("s_xor_b32 s20, s20, s21")
    A("v_lshlrev_b32 v4, 4, v2"); A("v_mov_b32 v6, 0")
    A("s_mov_b64 s[32:33], 0"); A("s_mov_b64 s[34:35], 0"); A("s_mov_b64 s[60:61], 0")
    if jitter:
        if jmode == "wg": A("s_mul_i32 s22, s2, 0x9E3779B1"); A("s_lshr_b32 s22, s22, 28")
        else: A("s_and_b32 s22, s2, 7"); A("s_mul_i32 s22, s22, 0x9E3779B1"); A("s_lshr_b32 s22, s22, 28")
        A("L_j:"); A("s_cmp_eq_u32 s22, 0"); A("s_cbranch_scc1 L_jd"); A(f"s_sleep {jitter}"); A("s_sub_u32 s22, s22, 1"); A("s_branch L_j"); A("L_jd:")
    base = 32
    def ld(i):
        t = i % 32; r = base + (i % D) * 4
        srd = "s[16:19]" if i >= 32 else "s[12:15]"
        off = 0
        for b in range(5):
            if t >> b & 1: off ^= tbits[b]
        A(f"s_xor_b32 s21, s20, {off*1024}")
        A(f"buffer_load_dwordx4 v[{r}:{r+3}], v4, {srd}, s21 offen {fl}")
    for i in range(D): ld(i)
    for i in range(64):
        rem = min(D - 1, 63 - i)
        A(f"s_waitcnt vmcnt({rem})")
        r = base + (i % D) * 4
        A(f"v_xor_b32 v6, v6, v{r}"); A(f"v_xor_b32 v6, v6, v{r+1}"); A(f"v_xor_b32 v6, v6, v{r+2}"); A(f"v_xor_b32 v6, v6, v{r+3}")
        if i + D < 64: ld(i + D)
        if dirty and i == dpos:
            A("v_lshl_add_u32 v20, v0, 4, 0"); A("s_lshl_b32 s22, s2, 13"); A("v_add_u32 v20, s22, v20")
            A(f"s_cmp_lt_u32 s3, {dirty}"); A("s_cbranch_scc0 L_nd"); A(f"global_store_dwordx4 v20, v[8:11], s[8:9] {dfl}"); A("L_nd:")
        if i == 15: A("s_memrealtime s[32:33]")
        if i == 31: A("s_memrealtime s[34:35]")
        if i == 47: A("s_memrealtime s[60:61]")
    A("s_memrealtime s[62:63]")
    A("s_waitcnt vmcnt(0) lgkmcnt(0)")
    A("s_add_u32 s8, s8, 0x4000000"); A("s_addc_u32 s9, s9, 0")
    A("v_lshrrev_b32 v1, 6, v0"); A(f"s_mul_i32 s20, s2, 8"); A("v_add_u32 v1, s20, v1"); A("v_mul_u32_u24 v1, 48, v1")
    A("v_mov_b32 v8, s30"); A("v_mov_b32 v9, s31"); A("v_mov_b32 v10, s32"); A("v_mov_b32 v11, s33")
    A("v_mov_b32 v12, s34"); A("v_mov_b32 v13, s35"); A("v_mov_b32 v14, s60"); A("v_mov_b32 v15, s61")
    A("v_mov_b32 v16, s62"); A("v_mov_b32 v17, s63");
    A("v_and_b32 v18, 0, v6"); A("v_add_u32 v18, 0, v18"); A("v_mov_b32 v19, 0x80000000")
    A("s_mov_b64 exec, 1")
    A("global_store_dwordx4 v1, v[8:11], s[8:9]"); A("global_store_dwordx4 v1, v[12:15], s[8:9] offset:16"); A("global_store_dwordx4 v1, v[16:19], s[8:9] offset:32")
    A("L_end:"); A("s_endpgm")
    for _ in range(pad): A("s_nop 0")
    A('.section .rodata,"a"'); A(".p2align 6"); A(f".amdhsa_kernel {NAME}_kernel")
    A(f"  .amdhsa_next_free_vgpr {nv}"); A("  .amdhsa_next_free_sgpr 80"); A(f"  .amdhsa_accum_offset {nv}")
    A("  .amdhsa_group_segment_fixed_size 0"); A("  .amdhsa_kernarg_size 104"); A("  .amdhsa_user_sgpr_count 2")
    A("  .amdhsa_user_sgpr_kernarg_segment_ptr 1"); A("  .amdhsa_system_sgpr_workgroup_id_x 1"); A(".end_amdhsa_kernel")
    return "\n".join(L) + "\n"
if __name__ == "__main__":
    import sys, json
    cfgs = json.loads(sys.argv[1])
    for k, c in cfgs.items(): open(f"mb_{k}.s", "w").write(gen(**c))
    print(" ".join(f"mb_{k}.s" for k in cfgs)); print(", ".join(f'"work/mb_{k}.s"' for k in cfgs))
```

```python
import sys
from asmlib import Asm
NAME = "sequential_preLN__sliding_block_cached__moe_arch_mod__decode"

WS_EPOCH = 0x0
WS_XCT   = 0x1000
WS_GRP   = 0x10000
G_O, G_H, G_A = 0, 8192, 8192 + 10240
WS_SLAB  = 0x60000
WS_YP    = 0xC0000
WS_SREP  = 0x200000
WS_QPART = 0x100000
WS_SIZE  = 0x500000
WS_STAMP = 0x4000000
XS = 1312
L_XN    = 0
L_H     = 10496
L_QP    = 20992
L_RED   = 25088
L_SM    = 33792
L_SIG   = 33856
L_W     = 34816
L_TOT   = L_W + 81920
S_X, S_K, S_V, S_WQ, S_WO, S_WR, S_WG, S_WU, S_WD, S_OUT, S_WS = 16, 18, 20, 22, 24, 28, 30, 32, 34, 36, 40
S_EP, S_T4, S_LOC = 26, 27, 1
S_XT = 38
S_SIG = 0
S_GRP = 82
S_QH, S_QB = 84, 85
S_EJOB = 83
R_K, R_V, R_WQ, R_F, R_WS, R_ACT = 44, 48, 52, 56, 60, 64
S_C4K = 72
S_H, S_B, S_W, S_ROLE, S_IDX = 3, 4, 5, 6, 7
S_SPIN = 9
S_T0, S_T1, S_T2, S_T3 = 10, 11, 12, 13
S_M = 14
S_LM0 = 42
S_FSTEP = 43
S_FCUR = 8
S_MCUR = 23
S_A0, S_A1, S_A2, S_A3 = 68, 69, 70, 71
S_ST = 88
V_L = 1
V_K, V_V, V_F = 2, 3, 4
V_MASK = 8
V_SC = 12
V_ACC = 20
V_Q = 28
V_L16, V_G, V_C = 44, 46, 47
V_X = 48
V_RING = 128
DPPF = "row_mask:0xf bank_mask:0xf"
LOG2E = "0x3fb8aa3b"
def slot(t): return V_RING + 4 * t
def vr(a, n): return f"v[{a}:{a+n-1}]"
def srd(r): return f"s[{r}:{r+3}]"

class G:
    def __init__(self, D=4, D2=None, thr="none", stamps=False, qpos=16, qbar=22, vextra=4, sleep=1, npre=6, nf_in=0, f0=6, fstep=5, wo_lead=0, freeq=4, pfpos=20, pfflags='nt', qflags='sc1', patA=None, patB=None, x1=1, x2=2, k0=4, local=True, rot=True, fflags='', srep=False, etrig=None, wpos=(24,26,28,30), tlb=0, bmask=False, codepf=0, kfirst=0, klin=True, dbg='', qmap=0, wqlate=0, free2=False, qpub=12, pfw=18, pfg=22, pfc=10, wo_late=True, pfn=5, dbgout=False, cearly=2, mpoll=0, dot2=False, yatom=True, bsleep=0, katom=2, esleep=10, bpipe=0, bgap=2, ypipe=0, cdry=False, cord=0, wfl='', pfwn=20, wsched=(0,1,1,1,1), csched=None, osleep=None, wpost=0):
        self.A = Asm(); self.D = D; self.D2 = D2; self.thr = thr; self.stamps = stamps
        self.vm = []; self.done = 0; self.uid = 0; self.stamped = set()
        self.qpos = qpos; self.qbar = qbar; self.vextra = vextra; self.sleep = sleep; self.npre = npre
        self.nf_in = nf_in; self.f0 = f0; self.fstep = fstep; self.wo_lead = wo_lead; self.freeq = freeq; self.pfpos = pfpos; self.pfflags = pfflags; self.qflags = qflags; self.patA = patA; self.patB = patB; self.x1 = x1; self.x2 = x2; self.nthr = 0; self.k0 = k0; self.local = local; self.rot = rot; self.fflags = fflags; self.srep = srep; self.etrig = etrig; self.wpos = list(wpos); self.nfc = 0; self.tlb = tlb; self.bmask = bmask; self.codepf = codepf; self.kfirst = kfirst; self.klin = klin; self.dbg = dbg; self.qmap = qmap; self.wqlate = wqlate; self.free2 = free2; self.qpubpos = qpub; self.pfw = pfw; self.pfg = pfg; self.pfc = pfc; self.wo_late = wo_late; self.pfn = pfn; self.dbgout = dbgout; self.cearly = cearly; self.mpoll = mpoll; self.dot2 = dot2; self.yatom = yatom; self.bsleep = bsleep; self.katom = katom; self.esleep = esleep; self.bpipe = bpipe; self.bgap = bgap; self.ypipe = ypipe; self.cdry = cdry; self.cord = cord; self.wfl = wfl; self.pfwn = pfwn; self.wsched = list(wsched); self.csched = csched; self.osleep = osleep; self.wpost = wpost
    def issue(self, name, text):
        self.A(text); self.vm.append(name)
    def chk_stamps(self):
        if not self.stamps: return
        for nm in self.stamps:
            if nm.startswith("@") and nm not in self.stamped and nm[1:] in self.vm[:self.done]:
                self.stamped.add(nm); self.stamp(nm)
    def wait(self, name):
        i = len(self.vm) - 1 - self.vm[::-1].index(name)
        if i < self.done: return
        self.A(f"s_waitcnt vmcnt({len(self.vm) - 1 - i})"); self.done = i + 1
        self.chk_stamps()
    def throttle(self, X=0):
        self.nthr += 1
        da = (self.patA[self.nthr % len(self.patA)] if self.patA else self.D) + X
        if len(self.vm) - self.done > da - 1:
            self.A(f"s_waitcnt vmcnt({da-1})"); self.done = len(self.vm) - (da - 1)
            self.chk_stamps()
        if self.D2:
            db = (self.patB[self.nthr % len(self.patB)] if self.patB else self.D2) + X
            if len(self.vm) - self.done > db - 1:
                self.uid += 1
                self.A(f"s_cbranch_vccz L_thr{self.uid}\ns_waitcnt vmcnt({db-1})\nL_thr{self.uid}:")
    def setthr(self):
        if self.D2: self.A(f"s_mov_b64 vcc, s[80:81]")
    def stamp(self, name):
        if self.stamps and name in self.stamps:
            i = self.stamps.index(name)
            self.A(f"s_memrealtime s[{S_ST+2*i}:{S_ST+2*i+1}]")
    def spin_guard(self, lab, sleep=None):
        sleep = self.sleep if sleep is None else sleep
        if sleep: self.A(f"s_sleep {sleep}")
        self.A(f"s_sub_u32 s{S_SPIN}, s{S_SPIN}, 1\ns_cmp_eq_u32 s{S_SPIN}, 0\ns_cbranch_scc0 {lab}\ns_branch L_end")
    def rnd_pair(self, a, b, t):
        self.A(f"v_cvt_pk_bf16_f32 v{t}, v{a}, v{b}\nv_lshlrev_b32 v{a}, 16, v{t}\nv_and_b32 v{b}, 0xffff0000, v{t}")
    def rnd1(self, a):
        self.A(f"v_cvt_pk_bf16_f32 v{a}, v{a}, v{a}\nv_and_b32 v{a}, 0xffff0000, v{a}")
    def sentinel(self, base, n, t):
        A = self.A
        A(f"v_max3_u32 v{t}, v{base}, v{base+1}, v{base+2}")
        i = 3
        while i < n:
            if i + 1 < n: A(f"v_max3_u32 v{t}, v{t}, v{base+i}, v{base+i+1}"); i += 2
            else: A(f"v_max_u32 v{t}, v{t}, v{base+i}"); i += 1
        A(f"v_cmp_eq_u32 vcc, -1, v{t}")
    def tagcheck(self, base, n, t, stag, mask, src=None):
        A = self.A
        for i in range(n): A(f"v_xor_b32 v{base+i}, s{stag}, v{(base if src is None else src)+i}")
        if n == 2: A(f"v_or_b32 v{t}, v{base}, v{base+1}")
        else:
            A(f"v_or3_b32 v{t}, v{base}, v{base+1}, v{base+2}")
            i = 3
            while i < n:
                if i + 1 < n: A(f"v_or3_b32 v{t}, v{t}, v{base+i}, v{base+i+1}"); i += 2
                else: A(f"v_or_b32 v{t}, v{t}, v{base+i}"); i += 1
        A(f"v_and_b32 v{t}, {mask}, v{t}\nv_cmp_ne_u32 vcc, 0, v{t}")
    def allred(self, op, v, tmp):
        A = self.A
        for md in ("row_ror:8", "row_ror:4"): A(f"{op}_dpp v{v}, v{v}, v{v} {md} {DPPF}")
        for sw in ("v_permlane16_swap_b32", "v_permlane32_swap_b32"):
            A(f"v_mov_b32 v{tmp}, v{v}\n{sw} v{v}, v{tmp}\n{op} v{v}, v{v}, v{tmp}")
    def layernorm(self, src, f, t, out, keep=None, stats_only=False, dot2=None):
        A = self.A
        s1, s2, s3, s4 = out, out + 1, out + 2, out + 3
        if dot2 is not None:
            for i in range(5):
                A(f"v_dot2_f32_bf16 v{s1}, v{src+i}, v{dot2}, {'v%d' % s1 if i else '0'}")
                A(f"v_dot2_f32_bf16 v{s2}, v{src+i}, v{src+i}, {'v%d' % s2 if i else '0'}")
            A(f"s_mov_b32 s{S_T0}, 0\ns_nop 1")
        else:
            if src is not None:
                for i in range(5):
                    A(f"v_lshlrev_b32 v{f+2*i}, 16, v{src+i}\nv_and_b32 v{f+2*i+1}, 0xffff0000, v{src+i}")
            A(f"v_readfirstlane_b32 s{S_T0}, v{f}")
            for i in range(10): A(f"v_subrev_f32 v{t+i}, s{S_T0}, v{f+i}")
            s1, s2, s3, s4 = out, out + 1, out + 2, out + 3
            A(f"v_add_f32 v{s1}, v{t}, v{t+1}\nv_mul_f32 v{s2}, v{t}, v{t}\nv_add_f32 v{s3}, v{t+2}, v{t+3}\nv_mul_f32 v{s4}, v{t+1}, v{t+1}")
            for i in range(2, 10, 2):
                A(f"v_fmac_f32 v{s2}, v{t+i}, v{t+i}\nv_fmac_f32 v{s4}, v{t+i+1}, v{t+i+1}")
                if i >= 4: A(f"v_add_f32 v{s1}, v{s1}, v{t+i}\nv_add_f32 v{s3}, v{s3}, v{t+i+1}")
            A(f"v_add_f32 v{s1}, v{s1}, v{s3}\nv_add_f32 v{s2}, v{s2}, v{s4}")
        A(f"v_permlane32_swap_b32 v{s1}, v{s2}\nv_add_f32 v{s1}, v{s1}, v{s2}")
        for m in ("quad_perm:[1,0,3,2]", "quad_perm:[2,3,0,1]", "row_half_mirror", "row_mirror"):
            A(f"v_add_f32_dpp v{s1}, v{s1}, v{s1} {m} {DPPF}")
        A(f"v_add_f32_dpp v{s1}, v{s1}, v{s1} row_bcast:15 row_mask:0xa bank_mask:0xf")
        A(f"v_mul_f32 v{s1}, 0x3acccccd, v{s1}")
        A(f"v_readlane_b32 s{S_T1}, v{s1}, 31\nv_readlane_b32 s{S_T2}, v{s1}, 63")
        A(f"v_mov_b32 v{s2}, s{S_T1}\nv_add_f32 v{s1}, s{S_T0}, v{s2}\nv_fma_f32 v{s2}, -v{s2}, v{s2}, s{S_T2}\nv_max_f32 v{s2}, 0, v{s2}")
        self.rnd_pair(s1, s2, s3)
        A(f"v_add_f32 v{s2}, 0x3727c5ac, v{s2}")
        self.rnd1(s2)
        A(f"v_sqrt_f32 v{s2}, v{s2}")
        if stats_only:
            self.rnd1(s2); A(f"v_rcp_f32 v{s2}, v{s2}")
            return
        for i in range(10): A(f"v_sub_f32 v{t+i}, v{f+i}, v{s1}")
        self.rnd1(s2)
        A(f"v_rcp_f32 v{out+4}, v{s2}")
        if keep: A(f"v_mov_b32 v{keep[0]}, v{s1}\nv_mov_b32 v{keep[1]}, v{out+4}")
        for i in range(5): self.rnd_pair(t+2*i, t+2*i+1, out + 2 + (i & 1))
        for i in range(10): A(f"v_mul_f32 v{t+i}, v{t+i}, v{out+4}")
        for i in range(5): A(f"v_cvt_pk_bf16_f32 v{out+i}, v{t+2*i}, v{t+2*i+1}")
    def ldF(self, counted=None, fl="nt", flip=True):
        txt = f"buffer_load_dwordx4 v{V_F}, {srd(R_F)}, s{S_FCUR} offen {fl} lds"
        self.A(f"s_mov_b32 m0, s{S_MCUR}")
        self.A(f"s_add_u32 s{S_MCUR}, s{S_MCUR}, 1024")
        if counted:
            self.issue(counted, txt)
            if flip: self.A(f"v_xor_b32 v{V_F}, 64, v{V_F}")
        else: self.A(txt)
        self.A(f"s_add_u32 s{S_FCUR}, s{S_FCUR}, s{S_FSTEP}")

    def ldC(self, counted=None):
        if self.nfc == 5 and self.rot: self.A(f"s_mov_b32 s{S_FCUR}, s86\ns_mov_b32 s{S_MCUR}, s87")
        self.ldF(counted, fl=self.fflags, flip=False); self.nfc += 1

    def gen(self):
        A = self.A
        A(f"; @launch grid=(256,1,1) block=(512,1,1) lds={L_TOT}")
        A('.amdgcn_target "amdgcn-amd-amdhsa--gfx950"\n.text')
        A(f".globl {NAME}_kernel\n.p2align 8\n.type {NAME}_kernel,@function\n{NAME}_kernel:")
        A("s_cmp_ge_u32 s2, 256\ns_cbranch_scc1 L_end")
        A("s_load_dwordx16 s[16:31], s[0:1], 0\ns_load_dwordx8 s[32:39], s[0:1], 64\ns_load_dwordx2 s[40:41], s[0:1], 96")
        if self.stamps:
            for i in range(1, 7): A(f"s_mov_b64 s[{S_ST+2*i}:{S_ST+2*i+1}], 0")
        self.stamp("start")
        def codepf():
            A(f"""
            s_getpc_b64 s[{S_M}:{S_M+1}]
            L_pc:
            v_lshlrev_b32 v7, 7, v0
            v_min_u32 v7, L_end-L_pc-4, v7
            v_cmp_gt_u32 vcc, 128, v0
            s_cbranch_vccz L_nopf
            global_load_dword v{V_X+44}, v7, s[{S_M}:{S_M+1}]
            L_nopf:
            """)
        if self.codepf == 1: codepf()
        A(f"""
        v_lshrrev_b32 v6, 6, v0
        v_and_b32 v{V_L}, 63, v0
        s_and_b32 s{S_T0}, s2, 7
        v_readfirstlane_b32 s{S_W}, v6
        s_and_b32 s{S_H}, s2, 31
        s_lshr_b32 s{S_B}, s2, 5
        s_lshl_b32 s{S_T3}, s2, 20
        s_add_u32 s{S_T3}, s{S_T3}, 0xC0000
        v_lshlrev_b32 v7, 12, v6
        v_lshlrev_b32 v{V_L16}, 4, v{V_L}
        v_add_u32 v{V_V}, v7, v{V_L16}
        v_and_b32 v{V_K}, 3, v0
        v_lshl_add_u32 v{V_K}, v{V_K}, 4, v7
        v_bfe_u32 v5, v0, 2, 2
        v_lshl_add_u32 v{V_K}, v5, {8 if self.klin else 10}, v{V_K}
        v_bfe_u32 v{V_G}, v0, 4, 2
        v_lshl_add_u32 v{V_K}, v{V_G}, 6, v{V_K}
        v_mul_u32_u24 v{V_ACC}, 1280, v6
        v_lshl_add_u32 v{V_ACC+1}, v{V_L}, 2, v{V_ACC}
        v_add_u32 v{V_ACC}, v{V_ACC}, v{V_L16}
        v_and_b32 v{V_C}, 15, v0
        v_and_b32 v{V_ACC+4}, 1, v6
        v_lshlrev_b32 v{V_ACC+4}, 3, v{V_ACC+4}
        v_lshl_add_u32 v{V_ACC+4}, v{V_G}, 1, v{V_ACC+4}
        v_xor_b32 v{V_ACC+4}, v{V_ACC+4}, v{V_C}
        v_lshlrev_b32 v{V_ACC+4}, 4, v{V_ACC+4}
        v_lshl_add_u32 v{V_ACC+3}, v6, 2, v{V_G}
        v_lshrrev_b32 v{V_ACC+2}, 3, v0
        v_lshlrev_b32 v{V_ACC+2}, 13, v{V_ACC+2}
        v_and_b32 v5, 7, v0
        v_lshl_add_u32 v{V_ACC+2}, v5, 4, v{V_ACC+2}
        """)
        A(f"""
        s_and_b32 s{S_T1}, s{S_B}, 3
        s_mul_i32 s{S_T1}, s{S_T1}, {160*8192}
        s_lshl_b32 s{S_T2}, s{S_H}, 8
        s_add_u32 s{S_T1}, s{S_T1}, s{S_T2}
        s_lshr_b32 s{S_T2}, s{S_B}, 2
        s_lshl_b32 s{S_T2}, s{S_T2}, 7
        s_add_u32 s{S_T1}, s{S_T1}, s{S_T2}
        s_lshl_b32 s{S_LM0}, s{S_W}, 10
        s_add_u32 s{S_LM0}, s{S_LM0}, {L_W}
        s_mov_b32 m0, s{S_LM0}
        s_mov_b32 s{R_WQ+2}, {159*8192+128}
        s_mov_b32 s{R_WQ+3}, 0x20000
        s_mov_b32 s{R_K+2}, 0x40000
        s_mov_b32 s{R_K+3}, 0x20000
        s_mov_b32 s{S_A0}, 0x80000
        s_mov_b32 s{S_A1}, 0x100000
        """)
        self.stamp("prekarg")
        A("s_waitcnt lgkmcnt(0)")
        self.stamp("karg")
        if self.dbgout: A("v_mov_b32 v126, s38\nv_mov_b32 v127, s39")
        A(f"""
        s_load_dword s{S_EP}, s[{S_WS}:{S_WS+1}], {WS_EPOCH}
        s_add_u32 s{R_WQ}, s{S_WQ}, s{S_T1}
        s_addc_u32 s{R_WQ+1}, s{S_WQ+1}, 0
        s_add_u32 s{R_K}, s{S_K}, s{S_T3}
        s_addc_u32 s{R_K+1}, s{S_K+1}, 0
        """)
        XR = V_Q
        def ldK(t): self.issue(f"K{t}", f"buffer_load_dwordx4 {vr(slot(t),4)}, v{V_K}, {srd(R_K)}, {'s%d'%(S_C4K+(t>>2)) if t>=4 else '0'} offen offset:{(t&3)*(1024 if self.klin else 256)} nt")
        for t in range(self.kfirst): ldK(t)
        self.issue("x0", f"global_load_dwordx4 {vr(XR,4)}, v{V_ACC}, s[{S_X}:{S_X+1}]")
        self.issue("x1", f"global_load_dword v{XR+4}, v{V_ACC+1}, s[{S_X}:{S_X+1}] offset:1024")
        A(f"""
        s_mov_b32 s{R_WS}, s{S_WS}
        s_mov_b32 s{R_WS+1}, s{S_WS+1}
        s_mov_b32 s{R_WS+2}, {WS_SIZE}
        s_mov_b32 s{R_WS+3}, 0x20000
        s_lshl_b32 s{S_GRP}, s{S_T0}, 15
        s_add_u32 s{S_GRP}, s{S_GRP}, {WS_GRP}
        s_lshr_b32 s{S_IDX}, s2, 3
        """)
        self.issue("wq0", f"buffer_load_dwordx4 v{V_ACC+2}, {srd(R_WQ)}, 0 offen nt lds")
        A(f"s_add_u32 m0, s{S_LM0}, 8192")
        for _ in range(self.wqlate): ldK(self.kfirst); self.kfirst += 1
        self.issue("wq1", f"buffer_load_dwordx4 v{V_ACC+2}, {srd(R_WQ)}, s{S_A0} offen nt lds")
        A(f"s_add_u32 m0, s{S_LM0}, 16384")
        for _ in range(self.wqlate): ldK(self.kfirst); self.kfirst += 1
        self.issue("wq2", f"buffer_load_dwordx4 v{V_ACC+2}, {srd(R_WQ)}, s{S_A1} offen nt lds")
        def ldV(t): self.issue(f"V{t}", f"buffer_load_dwordx4 {vr(slot(t),4)}, v{V_V}, {srd(R_V)}, s{S_C4K+(t>>2)} offen offset:{(t&3)*1024} nt")
        for t in range(self.kfirst, self.k0): ldK(t)
        if self.codepf == 2: codepf()
        A(f"""
        s_add_u32 s{R_V}, s{S_V}, s{S_T3}
        s_addc_u32 s{R_V+1}, s{S_V+1}, 0
        s_mov_b32 s{R_V+2}, 0x40000
        s_mov_b32 s{R_V+3}, 0x20000
        s_add_u32 s{S_T1}, s{S_GRP}, {G_A}
        s_add_u32 s{R_ACT}, s{S_WS}, s{S_T1}
        s_addc_u32 s{R_ACT+1}, s{S_WS+1}, 0
        s_mov_b32 s{R_ACT+2}, {7*512}
        s_cmp_eq_u32 s{S_T0}, 7
        s_cselect_b32 s{R_ACT+2}, {5*512}, s{R_ACT+2}
        s_mov_b32 s{R_ACT+3}, 0x20000
        s_mov_b32 s{S_ROLE}, 3
        s_cmp_lt_u32 s{S_IDX}, 20
        s_cbranch_scc1 L_roleok
        s_mov_b32 s{S_ROLE}, 2
        s_sub_u32 s{S_IDX}, s{S_IDX}, 27
        s_cbranch_scc0 L_roleok
        s_add_u32 s{S_IDX}, s{S_IDX}, 7
        s_mul_i32 s{S_T1}, s{S_T0}, 7
        s_add_u32 s{S_T1}, s{S_T1}, s{S_IDX}
        s_cmp_lt_u32 s{S_T1}, 54
        s_cselect_b32 s{S_ROLE}, 1, 0
        L_roleok:
        s_mov_b32 s{S_SPIN}, 0x100000
        """)
        for i in range(8): A(f"s_mov_b32 s{S_C4K+i}, {i*32768}")
        if self.D2:
            A(f"s_getreg_b32 s80, hwreg(HW_REG_XCC_ID)\ns_and_b32 s80, s80, 1\ns_xor_b32 s80, s80, 1\ns_mov_b32 s81, 0")
            if self.thr == "role": A(f"s_cmp_eq_u32 s{S_ROLE}, 3\ns_cselect_b32 s80, 1, 0")
            if self.thr == "nonc": A(f"s_cmp_eq_u32 s{S_ROLE}, 1\ns_cselect_b32 s80, 0, 1")
            if self.thr == "evennonc": A(f"s_cmp_eq_u32 s{S_ROLE}, 1\ns_cselect_b32 s80, 0, s80")
            if self.thr == "both": A(f"s_cmp_eq_u32 s{S_ROLE}, 3\ns_cselect_b32 s80, s80, 0")
        A(f"""
        s_mov_b32 s{R_F+3}, 0x20000
        s_mov_b32 s{S_FCUR}, 0
        s_cmp_eq_u32 s{S_ROLE}, 3
        s_cbranch_scc1 L_rwo
        s_mov_b32 s{R_F+2}, {640*3456}
        s_cmp_eq_u32 s{S_ROLE}, 2
        s_cbranch_scc1 L_rdown
        s_mul_i32 s{S_LM0}, s{S_W}, 10240
        s_add_u32 s{S_LM0}, s{S_LM0}, {L_W}
        s_cmp_lt_u32 s{S_W}, 4
        s_cselect_b32 s{R_F}, s{S_WG}, s{S_WU}
        s_cselect_b32 s{R_F+1}, s{S_WG+1}, s{S_WU+1}
        s_mul_i32 s{S_T2}, s{S_T0}, 7
        s_add_u32 s{S_T2}, s{S_T2}, s{S_IDX}
        s_and_b32 s{S_T1}, s{S_W}, 3
        s_mul_i32 s{S_T1}, s{S_T1}, {160*3456}
        s_lshl_b32 s{S_T2}, s{S_T2}, 6
        s_add_u32 s{S_T1}, s{S_T1}, s{S_T2}
        s_mov_b32 s{S_FSTEP}, {16*3456}
        v_lshrrev_b32 v{V_F}, 2, v{V_L}
        v_mul_u32_u24 v{V_F}, 3456, v{V_F}
        v_bfe_u32 v7, v0, 5, 1
        v_lshlrev_b32 v7, 1, v7
        v_xor_b32 v7, v7, v0
        v_and_b32 v7, 3, v7
        s_branch L_rdone
        L_rdown:
        s_mov_b32 s{R_F}, s{S_WD}
        s_mov_b32 s{R_F+1}, s{S_WD+1}
        s_mul_i32 s{S_T1}, s{S_T0}, {224*1280}
        s_lshl_b32 s{S_T2}, s{S_IDX}, 8
        s_add_u32 s{S_T1}, s{S_T1}, s{S_T2}
        s_mov_b32 s{S_FSTEP}, {32*1280}
        s_lshl_b32 s{S_LM0}, s{S_W}, 13
        s_add_u32 s{S_LM0}, s{S_LM0}, {L_W}
        v_mul_u32_u24 v{V_F}, 1280, v{V_ACC+3}
        v_lshrrev_b32 v7, 4, v{V_ACC+4}
        s_branch L_rdone
        L_rwo:
        s_mov_b32 s{R_F}, s{S_WO}
        s_mov_b32 s{R_F+1}, s{S_WO+1}
        s_mov_b32 s{R_F+2}, {4096*1280}
        s_cmp_ge_u32 s{S_IDX}, 10
        s_cselect_b32 s{S_T1}, {16*163840-1280}, 0
        s_lshr_b32 s{S_T2}, s{S_W}, 2
        s_lshl_b32 s{S_T2}, s{S_T2}, 3
        s_add_u32 s{S_T2}, s{S_T2}, s{S_T0}
        s_mul_i32 s{S_T2}, s{S_T2}, 163840
        s_add_u32 s{S_T1}, s{S_T1}, s{S_T2}
        s_lshl_b32 s{S_T2}, s{S_IDX}, 7
        s_add_u32 s{S_T1}, s{S_T1}, s{S_T2}
        s_and_b32 s{S_T2}, s{S_W}, 3
        s_mul_i32 s{S_T2}, s{S_T2}, {32*1280}
        s_add_u32 s{S_T1}, s{S_T1}, s{S_T2}
        s_mov_b32 s{S_FSTEP}, {8*1280}
        s_lshl_b32 s{S_LM0}, s{S_W}, 12
        s_add_u32 s{S_LM0}, s{S_LM0}, {L_W}
        v_lshrrev_b32 v{V_F}, 3, v{V_L}
        v_mul_u32_u24 v{V_F}, 1280, v{V_F}
        v_bfe_u32 v7, v0, 4, 1
        v_lshlrev_b32 v7, 1, v7
        v_xor_b32 v7, v7, v5
        L_rdone:
        v_lshl_add_u32 v{V_F}, v7, 4, v{V_F}
        v_add_u32 v{V_F}, s{S_T1}, v{V_F}
        s_mov_b32 s{S_MCUR}, s{S_LM0}
        """)
        if self.rot:
            A(f"""
            s_add_u32 s{S_T1}, s{S_T0}, s{S_IDX}
            s_cmp_eq_u32 s{S_ROLE}, 1
            s_cselect_b32 s{S_T1}, s{S_T1}, 0
            s_and_b32 s{S_T1}, s{S_T1}, 1
            s_cselect_b32 s{S_FCUR}, {5*16*3456}, 0
            s_cselect_b32 s{S_T1}, 5120, 0
            s_cselect_b32 s86, 0, {5*16*3456}
            s_cselect_b32 s87, 0, 5120
            s_add_u32 s{S_MCUR}, s{S_LM0}, s{S_T1}
            s_add_u32 s87, s{S_LM0}, s87
            """)
        A(f"""
        v_and_b32 v7, 1, v0
        v_lshlrev_b32 v7, 4, v7
        v_mov_b32 v{V_ACC+4}, 0xffff
        v_lshlrev_b32 v7, v7, v{V_ACC+4}
        v_lshrrev_b32 v{V_ACC+4}, 1, v{V_C}
        """)
        for r in range(4): A(f"v_cmp_eq_u32 vcc, {r}, v{V_ACC+4}\nv_cndmask_b32 v{V_MASK+r}, 0, v7, vcc")
        self.stamp("prex")
        self.wait("x1")
        self.stamp("xgot")
        F0, T0 = V_X, V_X + 10
        n0 = len(A.L)
        A(f"ds_write_b128 v{V_ACC}, {vr(XR,4)} offset:{L_H}\nds_write_b32 v{V_ACC+1}, v{XR+4} offset:{L_H+1024}")
        self.layernorm(XR, F0, T0, XR + 8)
        XO = XR + 8
        A(f"""
        v_mul_u32_u24 v7, {XS}, v6
        v_add_u32 v{V_ACC}, v7, v{V_L16}
        v_lshl_add_u32 v{V_ACC+1}, v{V_L}, 2, v7
        ds_write_b128 v{V_ACC}, {vr(XO,4)} offset:{L_XN}
        ds_write_b32 v{V_ACC+1}, v{XO+4} offset:{L_XN+1024}
        v_bfe_u32 v{V_ACC}, v0, 2, 2
        v_lshlrev_b32 v{V_ACC}, 7, v{V_ACC}
        v_lshl_add_u32 v{V_ACC}, v{V_G}, 10, v{V_ACC}
        v_and_b32 v{V_ACC+1}, 3, v0
        v_lshl_add_u32 v{V_ACC}, v{V_ACC+1}, 3, v{V_ACC}
        v_lshl_add_u32 v{V_ACC}, v6, 5, v{V_ACC}
        v_and_b32 v{V_ACC+2}, 7, v0
        v_mul_u32_u24 v{V_ACC+1}, {XS}, v{V_ACC+2}
        v_lshl_add_u32 v{V_ACC+1}, v{V_G}, 4, v{V_ACC+1}
        s_and_b32 s{S_T2}, s{S_B}, 3
        s_mul_i32 s{S_T1}, s{S_T2}, 320
        v_add_u32 v{V_ACC+1}, s{S_T1}, v{V_ACC+1}
        v_lshlrev_b32 v{V_SC}, 6, v{V_ACC+2}
        v_lshl_add_u32 v{V_SC}, v{V_G}, 4, v{V_SC}
        v_lshl_add_u32 v{V_SC}, v6, 9, v{V_SC}
        v_lshl_add_u32 v{V_SC+1}, v6, 9, v{V_L16}
        v_bfe_u32 v{V_ACC+2}, v0, 2, 3
        v_lshlrev_b32 v{V_ACC+2}, 11, v{V_ACC+2}
        v_lshl_add_u32 v{V_ACC+2}, v6, 6, v{V_ACC+2}
        v_and_b32 v7, 3, v0
        v_lshl_add_u32 v{V_ACC+2}, v7, 4, v{V_ACC+2}
        s_lshl_b32 s{S_T1}, s{S_H}, 14
        s_lshl_b32 s{S_T2}, s{S_T2}, 9
        s_add_u32 s{S_T1}, s{S_T1}, s{S_T2}
        s_lshr_b32 s{S_T2}, s{S_B}, 2
        s_lshl_b32 s{S_T2}, s{S_T2}, 8
        s_add_u32 s{S_T1}, s{S_T1}, s{S_T2}
        s_add_u32 s{S_T1}, s{S_T1}, {WS_QPART}
        """)
        body = A.L[n0:]; del A.L[n0:]
        kn = self.k0
        step = len(body) // (self.npre + 1) if self.npre else 10**9
        for i, line in enumerate(body):
            if i and i % step == 0 and kn < self.k0 + self.npre: ldK(kn); kn += 1
            A(line)
        self.wait("wq2")
        A("s_waitcnt lgkmcnt(0)\ns_barrier")
        self.stamp("bar1")
        A(f"s_add_u32 s{S_EP}, s{S_EP}, 1\ns_and_b32 s{S_T4}, s{S_EP}, 15")
        A(f"""
        s_mov_b32 s{S_A2}, s{S_T1}
        s_getreg_b32 s{S_SIG}, hwreg(HW_REG_XCC_ID, 0, 4)
        s_lshl_b32 s{S_T2}, s{S_EP}, 4
        s_or_b32 s{S_SIG}, s{S_SIG}, s{S_T2}
        s_and_b32 s{S_XT}, s2, 7
        s_lshl_b32 s{S_XT}, s{S_XT}, 8
        s_add_u32 s{S_XT}, s{S_XT}, {WS_XCT}
        s_lshr_b32 s{S_T2}, s2, 3
        s_lshl_b32 s{S_T2}, s{S_T2}, 2
        v_mov_b32 v{V_SC+2}, s{S_T2}
        v_mov_b32 v{V_SC+3}, s{S_SIG}
        v_and_b32 v{V_SC+4}, 31, v0
        v_lshlrev_b32 v{V_SC+4}, 2, v{V_SC+4}
        s_cmp_eq_u32 s{S_W}, 7
        s_cbranch_scc0 L_nosig
        s_mov_b64 exec, 1
        buffer_store_dword v{V_SC+3}, v{V_SC+2}, {srd(R_WS)}, s{S_XT} offen
        s_mov_b64 exec, -1
        L_nosig:
        """)
        A(f"s_cmp_lt_u32 s{S_W}, 4\ns_cbranch_scc0 L_noq")
        for s in range(5):
            for hf in range(2): A(f"ds_read_b64_tr_b16 {vr(F0+4*s+2*hf,2)}, v{V_ACC} offset:{L_W+4096*s+512*hf}")
            A(f"ds_read_b128 {vr(F0+20+4*s,4)}, v{V_ACC+1} offset:{L_XN+64*s}")
        for s in range(5):
            A(f"s_waitcnt lgkmcnt({12-3*s})")
            A(f"v_mfma_f32_16x16x32_bf16 {vr(V_ACC+4,4)}, {vr(F0+4*s,4)}, {vr(F0+20+4*s,4)}, {vr(V_ACC+4,4) if s else '0'}")
        for i in range(4): A(f"v_and_or_b32 v{V_ACC+4+i}, v{V_ACC+4+i}, -16, s{S_T4}")
        A(f"ds_write_b128 v{V_SC}, {vr(V_ACC+4,4)} offset:{L_RED}\ns_mov_b32 exec_hi, 0\ns_waitcnt lgkmcnt(0)")
        A(f"ds_read_b128 {vr(V_ACC+4,4)}, v{V_SC+1} offset:{L_RED}\ns_waitcnt lgkmcnt(0)")
        A("s_mov_b64 exec, -1\nL_noq:")
        if self.tlb:
            A(f"""
            s_cmp_eq_u32 s{S_W}, 5
            s_cbranch_scc0 L_notlb
            s_load_dword s{S_T0}, s[{R_V}:{R_V+1}], 0x0
            v_readfirstlane_b32 s{S_T2}, v{V_F}
            s_and_b32 s{S_T2}, s{S_T2}, -4
            s_load_dword s{S_T1}, s[{R_F}:{R_F+1}], s{S_T2}
            s_load_dword s{S_T3}, s[{S_OUT}:{S_OUT+1}], 0x0
            s_waitcnt lgkmcnt(0)
            L_notlb:
            """)
        self.stamp("qpub")
        self.setthr()
        seq = []
        for t in range(kn, 32):
            if t in self.wpos and not self.wo_late: seq.append(("W", self.wpos.index(t)))
            seq.append(("K", t))
        self.qbar_done = False
        fpos = []
        for t in range(32):
            if t in fpos: seq.append(("F", t))
            if t == 12: seq.append(("T", 0))
            if t == 7: seq.append(("P", 0))
            if t == self.pfw and self.wo_late: seq.append(("R", 0))
            if t == self.pfg: seq.append(("R", 1))
            if t == self.pfc: seq.append(("R", 2))
            seq.append(("V", t))
        if self.pfg == 32: seq.append(("R", 1))
        self.pvdone = -1; self.smax_done = False
        pos = 0
        def ldFx(t):
            assert self.smax_done
            A(f"s_cmp_eq_u32 s{S_ROLE}, 3\ns_cbranch_scc1 L_nof{t}")
            self.ldF()
            A(f"L_nof{t}:")
        def ldW(i):
            assert self.qbar_done
            A(f"s_cmp_eq_u32 s{S_ROLE}, 3\ns_cbranch_scc0 L_now{i}")
            self.ldF(); A(f"v_xor_b32 v{V_F}, 64, v{V_F}")
            A(f"L_now{i}:")
            if i >= 4 - self.nf_in:
                A(f"s_cmp_eq_u32 s{S_ROLE}, 1\ns_cbranch_scc0 L_noc{i}")
                self.ldC()
                A(f"L_noc{i}:")
        def ldT(_):
            self.tail_setup()
        def nxt(D=0):
            nonlocal pos
            k, t = seq[pos]; pos += 1
            if k in "KVPWR": self.throttle(D)
            {"K": ldK, "V": ldV, "F": ldFx, "T": ldT, "W": ldW, "R": self.prefetch, "P": self.xct_load}[k](t)
        def until(item, D=0):
            while f"{item[0]}{item[1]}" not in self.vm: nxt(D)
        for i in range(self.freeq): nxt(self.x2)
        until(("K", self.qpubpos - self.D + 1))
        self.issue("xt0", f"buffer_load_dword v{V_SC+5}, v{V_SC+4}, {srd(R_WS)}, s{S_XT} offen sc1")
        A(f"""
        s_cmp_eq_u32 s{S_W}, 4
        s_cbranch_scc0 L_noclr
        s_lshr_b32 s{S_A2}, s2, 3
        s_mul_i32 s{S_A2}, s{S_A2}, 768
        s_add_u32 s{S_A2}, s{S_A2}, s{S_GRP}
        v_mov_b32 v{V_ACC+2}, v{V_L16}
        v_mov_b32 v{V_ACC+4}, -1
        v_mov_b32 v{V_ACC+5}, -1
        v_mov_b32 v{V_ACC+6}, -1
        v_mov_b32 v{V_ACC+7}, -1
        L_noclr:
        """)
        until(("K", self.qpubpos), 1)
        self.wait("xt0")
        A(f"v_cmp_ne_u32 s[{S_M}:{S_M+1}], s{S_SIG}, v{V_SC+5}\ns_cmp_eq_u64 s[{S_M}:{S_M+1}], 0\ns_cselect_b32 s{S_LOC}, {1 if self.local else 0}, 0")
        A(f"s_cmp_lt_u32 s{S_W}, 5\ns_cbranch_scc0 L_noq2\ns_cmp_eq_u32 s{S_W}, 4\ns_cselect_b32 exec_hi, 0xffff, 0")
        self.setloc()
        if self.stamps and "qloc" in self.stamps: A("s_cbranch_scc0 L_nqs"); self.stamp("qloc"); A("L_nqs:")
        self.lstore(f"buffer_store_dwordx4 {vr(V_ACC+4,4)}, v{V_ACC+2}, {srd(R_WS)}, s{S_A2} offen")
        A("s_mov_b64 exec, -1\nL_noq2:")
        nclr = len(self.vm)
        until(("K", self.qpos))
        A(f"""
        s_cmp_eq_u32 s{S_W}, 4
        s_cbranch_scc0 L_nocnt
        s_waitcnt vmcnt({len(self.vm) - nclr})
        s_mov_b64 exec, 1
        """)
        self.setloc()
        self.lstore(f"buffer_store_dword v{V_SC+3}, v{V_SC+2}, {srd(R_WS)}, s{S_XT} offen offset:128")
        A("s_mov_b64 exec, -1\nL_nocnt:")
        self.setthr()
        QA = V_X
        A(f"""
        v_lshlrev_b32 v{QA}, 2, v0
        s_lshl_b32 s{S_T1}, s{S_H}, 14
        s_lshl_b32 s{S_T2}, s{S_B}, 11
        s_add_u32 s{S_T1}, s{S_T1}, s{S_T2}
        s_add_u32 s{S_T1}, s{S_T1}, {WS_QPART}
        v_bfe_u32 v{QA+2}, v0, 2, 2
        v_lshlrev_b32 v{QA+2}, 9, v{QA+2}
        v_lshl_add_u32 v{QA+2}, v{V_G}, 7, v{QA+2}
        v_and_b32 v7, 3, v0
        v_lshl_add_u32 v{QA+2}, v7, 5, v{QA+2}
        """)
        qtxt = f"buffer_load_dword v{QA+4}, v{QA}, {srd(R_WS)}, s{S_T1} offen {self.qflags}"
        self.issue("qg", qtxt)
        for _ in range(self.D - 1): nxt(self.x1)
        nxt(self.x1)
        self.wait("qg")
        A("L_qchk:")
        A(f"v_xor_b32 v{QA+4}, s{S_T4}, v{QA+4}\nv_and_b32 v6, 15, v{QA+4}\nv_cmp_ne_u32 vcc, 0, v6")
        A("s_cbranch_vccz L_qok")
        A(qtxt + "\ns_waitcnt vmcnt(0)")
        self.spin_guard("L_qchk")
        A("L_qok:")
        self.setthr()
        self.stamp("qgot")
        A(f"ds_write_b32 v{QA}, v{QA+4} offset:{L_QP}")
        until(("K", self.qbar - 2))
        until(("K", self.qbar), self.x2)
        A("s_waitcnt lgkmcnt(0)\ns_barrier")
        self.stamp("qbar"); self.qbar_done = True
        for hf in range(2): A(f"ds_read_b128 {vr(V_ACC+4*hf,4)}, v{QA+2} offset:{L_QP+hf*16}")
        nxt(self.x1)
        A("s_waitcnt lgkmcnt(0)")
        for m in ("row_ror:8", "row_ror:4"):
            for i in range(8): A(f"v_add_f32_dpp v{V_ACC+i}, v{V_ACC+i}, v{V_ACC+i} {m} {DPPF}")
        for i in range(4): A(f"v_cvt_pk_bf16_f32 v{V_ACC+i}, v{V_ACC+2*i}, v{V_ACC+2*i+1}")
        nxt(self.x1)
        for u in range(4):
            A(f"s_mov_b32 s{S_M}, {0x000F000F << (4*u)}\ns_mov_b32 s{S_M+1}, {0x000F000F << (4*u)}")
            for r in range(4): A(f"v_cndmask_b32 v{V_Q+4*u+r}, 0, v{V_ACC+r}, s[{S_M}:{S_M+1}]")
        def extract(T):
            a = V_ACC + 4 * (T & 1)
            A(f"v_mov_b32_dpp v{V_SC+T}, v{a} quad_perm:[0,0,0,0] {DPPF}")
            for q in range(1, 4): A(f"v_add_f32_dpp v{V_SC+T}, v{a+q}, v{V_SC+T} quad_perm:[{q},{q},{q},{q}] {DPPF}")
        for T in range(8):
            a = V_ACC + 4 * (T & 1)
            until(("K", 4*T+3))
            while len(self.vm) - 1 - self.vm.index(f"K{4*T+3}") < self.D - 1:
                k, t = seq[pos]
                if k == "V": assert t < 4 * T, (t, T)
                nxt()
            self.wait(f"K{4*T+3}")
            for u in range(4):
                A(f"v_mfma_f32_16x16x32_bf16 {vr(a,4)}, {vr(V_Q+4*u,4)}, {vr(slot(4*T+u),4)}, {vr(a,4) if u else '0'}")
            if T: extract(T - 1)
        nxt()
        extract(7)
        t0 = V_ACC
        for a in range(4):
            x, y = V_SC + 2*a, V_SC + 2*a + 1
            self.rnd_pair(x, y, t0 + a)
            A(f"v_mul_f32 v{x}, 0x3db504f3, v{x}\nv_mul_f32 v{y}, 0x3db504f3, v{y}")
            self.rnd_pair(x, y, t0 + a)
        m, tm, l = V_Q, V_Q + 2, V_Q + 1
        A(f"v_max3_f32 v{m}, v{V_SC}, v{V_SC+1}, v{V_SC+2}\nv_max3_f32 v{tm}, v{V_SC+3}, v{V_SC+4}, v{V_SC+5}")
        A(f"v_max3_f32 v{m}, v{m}, v{V_SC+6}, v{V_SC+7}\nv_max_f32 v{m}, v{m}, v{tm}")
        self.allred("v_max_f32", m, tm)
        for i in range(8): A(f"v_sub_f32 v{t0+i}, v{V_SC+i}, v{m}")
        for i in range(8): A(f"v_mul_f32 v{t0+i}, {LOG2E}, v{t0+i}")
        for i in range(8): A(f"v_exp_f32 v{t0+i}, v{t0+i}")
        for i in range(4): A(f"v_add_f32 v{t0+i}, v{t0+i}, v{t0+4+i}")
        A(f"v_add_f32 v{t0}, v{t0}, v{t0+2}\nv_add_f32 v{t0+1}, v{t0+1}, v{t0+3}\nv_add_f32 v{l}, v{t0}, v{t0+1}")
        self.allred("v_add_f32", l, tm)
        A(f"""
        s_lshl_b32 s{S_T1}, s{S_W}, 3
        v_mov_b32 v7, s{S_T1}
        ds_write_b64 v7, {vr(m,2)} offset:{L_SM}
        v_and_b32 v7, 7, v0
        v_lshlrev_b32 v7, 3, v7
        """)
        for i in range(self.vextra):
            if seq[pos][0] == "V": nxt(self.x2)
        A(f"s_waitcnt lgkmcnt(0)\ns_barrier\nds_read_b64 {vr(m,2)}, v7 offset:{L_SM}")
        self.stamp("smax"); self.smax_done = True
        nxt(self.x1)
        A("s_waitcnt lgkmcnt(0)")
        A(f"v_max_f32_dpp v{tm}, v{m}, v{m} quad_perm:[1,0,3,2] {DPPF}")
        for md in ("quad_perm:[2,3,0,1]", "row_half_mirror"): A(f"v_max_f32_dpp v{tm}, v{tm}, v{tm} {md} {DPPF}")
        A(f"v_sub_f32 v{m}, v{m}, v{tm}\nv_mul_f32 v{m}, {LOG2E}, v{m}\nv_exp_f32 v{m}, v{m}")
        for i in range(8): A(f"v_sub_f32 v{V_SC+i}, v{V_SC+i}, v{tm}")
        A(f"v_mul_f32 v{l}, v{l}, v{m}")
        for i in range(8): A(f"v_mul_f32 v{V_SC+i}, {LOG2E}, v{V_SC+i}")
        for md in ("quad_perm:[1,0,3,2]", "quad_perm:[2,3,0,1]", "row_half_mirror"):
            A(f"v_add_f32_dpp v{l}, v{l}, v{l} {md} {DPPF}")
        for i in range(8): A(f"v_exp_f32 v{V_SC+i}, v{V_SC+i}")
        A(f"v_rcp_f32 v{l}, v{l}")
        nxt(self.x1)
        for i in range(8): A(f"v_mul_f32 v{V_SC+i}, v{V_SC+i}, v{l}")
        for i in range(8): A(f"v_cvt_pk_bf16_f32 v{V_SC+i}, v{V_SC+i}, v{V_SC+i}")
        if self.klin:
            A(f"v_bfe_u32 v7, v0, 2, 2\nv_lshlrev_b32 v7, 6, v7\nv_lshl_add_u32 v7, v{V_G}, 4, v7")
            for i in range(8): A(f"ds_bpermute_b32 v{V_SC+i}, v7, v{V_SC+i}")
            A("s_waitcnt lgkmcnt(0)")
        oacc = V_ACC
        def mkA(t):
            a = V_Q + 4 * (t & 1)
            for r in range(4): A(f"v_and_b32_dpp v{a+r}, v{V_SC+(t>>2)}, v{V_MASK+r} row_newbcast:{4*(t&3)} {DPPF}")
        def pvstep(t):
            if t < 31: mkA(t + 1)
            self.wait(f"V{t}")
            A(f"v_mfma_f32_16x16x32_bf16 {vr(oacc,4)}, {vr(V_Q+4*(t&1),4)}, {vr(slot(t),4)}, {vr(oacc,4) if t else '0'}")
        mkA(0)
        t = 0
        while True:
            until(("V", t))
            while pos < len(seq) and len(self.vm) - 1 - self.vm.index(f"V{t}") < self.D - 1: nxt()
            if pos == len(seq) and self.wo_late: break
            pvstep(t); t += 1
            if t == 32: break
        if self.wo_late:
            save = (list(self.vm), self.done, set(self.stamped))
            A(f"s_cmp_eq_u32 s{S_ROLE}, 3\ns_cbranch_scc1 L_pvwo")
            if self.cearly: A(f"s_cmp_eq_u32 s{S_ROLE}, 1\ns_cbranch_scc1 L_pvc")
            for variant in (0, 2, 1):
                if variant == 2 and not self.cearly: continue
                self.vm, self.done, self.stamped = list(save[0]), save[1], set(save[2])
                if variant: A("L_pvwo:" if variant == 1 else "L_pvc:")
                nw = 0
                cs = self.csched or [0] + [1] * self.cearly + [0] * 4
                for tt in range(t, 32):
                    if variant == 1:
                        for _ in range(self.wsched[tt - t]):
                            if nw < 4 - self.wpost: self.ldF(f"W{nw}", fl=self.wfl); nw += 1
                    if variant == 2:
                        for _ in range(cs[tt - t]): self.ldC(f"W{nw}"); nw += 1
                    pvstep(tt)
                if variant == 1:
                    while nw < 4 - self.wpost: self.ldF(f"W{nw}", fl=self.wfl); nw += 1
                else: A("s_branch L_pvdone")
            A("L_pvdone:")
        self.stamp("pv")
        if "notail" not in self.dbg: self.tail()
        if self.dbgout:
            self.stamp("end")
            A("s_waitcnt vmcnt(0) lgkmcnt(0)\ns_mov_b64 exec, 1")
            A(f"s_cmp_eq_u32 s{S_ROLE}, 2\ns_cbranch_scc1 L_end")
            A(f"s_not_b32 s{S_T0}, s{S_ST}\nv_mov_b32 v6, s{S_T0}\nglobal_atomic_umax v[126:127], v6, off offset:28")
            for i in range(7): A(f"v_mov_b32 v6, s{S_ST+2*i}\nglobal_atomic_umax v[126:127], v6, off offset:{4*i}")
        elif self.stamps:
            self.stamp("end")
            A(f"""
            s_waitcnt vmcnt(0) lgkmcnt(0)
            s_add_u32 s{S_WS}, s{S_WS}, {WS_STAMP}
            s_addc_u32 s{S_WS+1}, s{S_WS+1}, 0
            s_lshl_b32 s{S_T1}, s2, 3
            s_add_u32 s{S_T1}, s{S_T1}, s{S_W}
            s_lshl_b32 s{S_T1}, s{S_T1}, 6
            v_mov_b32 v6, s{S_T1}
            """)
            for i in range(14): A(f"v_mov_b32 v{slot(0)+i}, s{S_ST+i}")
            A(f"v_mov_b32 v{slot(0)+14}, s{S_ROLE}\nv_mov_b32 v{slot(0)+15}, 0x80000000\ns_mov_b64 exec, 1")
            for i in range(4): A(f"global_store_dwordx4 v6, {vr(slot(i),4)}, s[{S_WS}:{S_WS+1}] offset:{16*i}")
        A("L_end:\ns_endpgm")
        A('.section .rodata,"a"\n.p2align 6')
        A(f".amdhsa_kernel {NAME}_kernel")
        A("""
        .amdhsa_next_free_vgpr 256
        .amdhsa_next_free_sgpr 102
        .amdhsa_accum_offset 256
        .amdhsa_group_segment_fixed_size 0
        .amdhsa_kernarg_size 104
        .amdhsa_user_sgpr_count 2
        .amdhsa_user_sgpr_kernarg_segment_ptr 1
        .amdhsa_system_sgpr_workgroup_id_x 1
        .amdhsa_float_denorm_mode_32 3
        .end_amdhsa_kernel
        """)
        txt = A.finish()
        import re
        out = []
        for l in txt.split("\n"):
            if "nowq" in self.dbg and f"s_mov_b32 s{R_WQ+2}," in l: l = f"s_mov_b32 s{R_WQ+2}, 0x100000\nv_mov_b32 v{V_ACC+2}, 0x200000"
            if "nox" in self.dbg.split() and "global_load" in l and f"s[{S_X}:{S_X+1}]" in l and "v59" not in l: l = f"buffer_load_dword v{V_Q}, v{V_ACC+2}, {srd(R_WQ)}, 0 offen"
            if "now" in self.dbg.split() and "L_now" in l and "cbranch" in l: l = l.replace("s_cbranch_scc0", "s_branch")
            if "nost" in self.dbg and "store" in l and "sc1" in l: l = "s_nop 0"
            if "nost" in self.dbg and ("s_cbranch_vccz L_qok" in l or "s_cbranch_vccz L_xok" in l): l = l.replace("s_cbranch_vccz", "s_branch")
            if "xnont" in self.dbg and "global_load" in l and f"s[{S_X}:{S_X+1}]" in l: l = l.replace(" nt", "")
            if "noclr" in self.dbg and "buffer_store_dwordx4 v[12:15]" in l: l = "s_nop 0"
            if "noxct" in self.dbg and "global_store_dword v5, v7" in l: l = "s_nop 0"
            if "noxct" in self.dbg and "s_cbranch_vccz L_xok" in l: l = l.replace("s_cbranch_vccz", "s_branch")
            if "qplain" in self.dbg and "buffer_store_dwordx4 v[24:27]" in l: l = l.replace(" sc1", "")
            if "noatom" in self.dbg and "s_atomic_add" in l: l = "s_nop 0"
            if "noatom" in self.dbg and "s_cbranch_scc1 L_xok" in l: l = "s_branch L_xok"
            if "noatom" in self.dbg and "s_cmp_eq_u32 s1, s0" in l: l = "s_cmp_eq_u32 s0, s0"
            if "kvhx" in self.dbg and "s_lshl_b32 s13, s2, 20" in l: l = "s_lshl_b32 s13, s10, 2\ns_lshr_b32 s12, s3, 3\ns_add_u32 s13, s13, s12\ns_lshl_b32 s12, s4, 5\ns_add_u32 s13, s13, s12\ns_lshl_b32 s13, s13, 20"
            if "nof" in self.dbg.split() and f"v_add_u32 v{V_F}, s{S_T1}, v{V_F}" in l: l = l + f"\ns_cmp_eq_u32 s{S_ROLE}, 3\ns_cselect_b32 s{S_T1}, 0, 0x400000\nv_add_u32 v{V_F}, s{S_T1}, v{V_F}"
            if "nobar" in self.dbg and "s_barrier" in l: l = "s_nop 0"
            out.append(l)
        return "\n".join(out)

    OW, OR, OS = V_X, V_X+1, V_X+2
    A0, A1, A2, A3, A4, A5, A6, A7 = [V_X+3+i for i in range(8)]
    XP = V_X + 11; XC = V_X + 12; L4 = V_X + 13; WR = V_X + 16
    B1, B2, B3 = V_X + 21, V_X + 22, V_X + 23; Z = V_X + 14
    WF = V_X + 24

    def lstore(self, txt):
        self.uid += 1
        self.A(f"s_cbranch_scc1 L_ls{self.uid}\n{txt} sc1\ns_branch L_le{self.uid}\nL_ls{self.uid}:\n{txt}\nL_le{self.uid}:")
    def setloc(self):
        self.A(f"s_cmp_eq_u32 s{S_LOC}, 1")

    def xct_load(self, _):
        A = self.A; s = self
        A(f"v_and_b32 v{s.L4}, 31, v0\nv_lshlrev_b32 v{s.L4}, 2, v{s.L4}")
        self.issue("xct", f"buffer_load_dword v{s.XC}, v{s.L4}, {srd(R_WS)}, s{S_XT} offen offset:128 sc1")

    def prefetch(self, k):
        A = self.A
        if k == 0:
            A(f"""
            s_mul_i32 s{S_T0}, s{S_H}, 163840
            s_mul_i32 s{S_T1}, s{S_B}, 20480
            s_add_u32 s{S_T0}, s{S_T0}, s{S_T1}
            s_mul_i32 s{S_T1}, s{S_W}, 2560
            s_add_u32 s{S_T0}, s{S_T0}, s{S_T1}
            s_add_u32 s{S_M}, s{S_WO}, s{S_T0}
            s_addc_u32 s{S_M+1}, s{S_WO+1}, 0
            v_lshlrev_b32 v6, 7, v{V_L}
            s_mov_b64 exec, 0xfffff
            """)
        elif k == 1:
            A(f"""
            s_and_b32 s{S_T0}, s2, 7
            s_mul_i32 s{S_T0}, s{S_T0}, 448
            s_and_b32 s{S_T0}, s{S_T0}, -128
            s_min_u32 s{S_T0}, s{S_T0}, {3456-512}
            s_lshr_b32 s{S_T1}, s2, 3
            s_lshl_b32 s{S_T1}, s{S_T1}, 2
            s_and_b32 s{S_T2}, s{S_W}, 3
            s_add_u32 s{S_T1}, s{S_T1}, s{S_T2}
            s_lshr_b32 s{S_T2}, s{S_T1}, 4
            s_mul_i32 s{S_T2}, s{S_T2}, {80*3456}
            s_and_b32 s{S_T1}, s{S_T1}, 15
            s_mul_i32 s{S_T1}, s{S_T1}, {self.pfn*3456}
            s_add_u32 s{S_T0}, s{S_T0}, s{S_T1}
            s_add_u32 s{S_T0}, s{S_T0}, s{S_T2}
            s_add_u32 s{S_T0}, s{S_T0}, {(80-16*self.pfn)*3456}
            s_cmp_lt_u32 s{S_W}, 4
            s_cselect_b32 s{S_M}, s{S_WG}, s{S_WU}
            s_cselect_b32 s{S_M+1}, s{S_WG+1}, s{S_WU+1}
            s_add_u32 s{S_M}, s{S_M}, s{S_T0}
            s_addc_u32 s{S_M+1}, s{S_M+1}, 0
            v_lshrrev_b32 v6, 2, v{V_L}
            v_mul_u32_u24 v6, 3456, v6
            v_and_b32 v7, 3, v0
            v_lshl_add_u32 v6, v7, 7, v6
            s_mov_b64 exec, {(1 << (4*self.pfn)) - 1}
            """)
        else:
            A(f"""
            s_getpc_b64 s[{S_M}:{S_M+1}]
            L_pc:
            s_lshr_b32 s{S_T0}, s2, 3
            s_and_b32 s{S_T0}, s{S_T0}, 15
            s_lshl_b32 s{S_T0}, s{S_T0}, 3
            s_add_u32 s{S_T0}, s{S_T0}, s{S_W}
            s_lshl_b32 s{S_T0}, s{S_T0}, 7
            s_min_u32 s{S_T0}, s{S_T0}, L_end-L_pc-4
            v_mov_b32 v6, s{S_T0}
            s_mov_b64 exec, 1
            """)
        self.issue(f"pf{k}", f"global_load_dword v45, v6, s[{S_M}:{S_M+1}]")
        A("s_mov_b64 exec, -1")

    def tail_setup(self):
        A = self.A; s = self
        self.wait("xct")
        A(f"""
        L_xchk:
        v_xor_b32 v6, s{S_SIG}, v{s.XC}
        v_cmp_lt_u32 vcc, 15, v6
        s_cbranch_vccz L_xok
        buffer_load_dword v{s.XC}, v{s.L4}, {srd(R_WS)}, s{S_XT} offen offset:128 sc1
        s_waitcnt vmcnt(0)
        """)
        self.spin_guard("L_xchk", 2)
        A(f"""
        L_xok:
        v_cmp_ne_u32 vcc, 0, v6
        s_cmp_eq_u64 vcc, 0
        s_cselect_b32 s{S_LOC}, {1 if self.local else 0}, 0
        v_lshlrev_b32 v{s.L4}, 2, v{V_L}
        v_lshlrev_b32 v{s.OW}, 5, v{V_C}
        v_lshl_add_u32 v{s.OW}, v{V_G}, 4, v{s.OW}
        s_lshl_b32 s{S_T1}, s{S_W}, 9
        v_add_u32 v{s.OW}, s{S_T1}, v{s.OW}
        v_bfe_u32 v7, v0, 5, 1
        v_lshlrev_b32 v{s.OR}, 3, v{V_L}
        v_lshrrev_b32 v6, 2, v{V_L}
        v_lshlrev_b32 v{s.OS}, 7, v6
        v_and_b32 v6, 3, v0
        v_lshl_add_u32 v{s.OS}, v6, 2, v{s.OS}
        s_lshr_b32 s{S_T1}, s{S_H}, 3
        s_lshl_b32 s{S_T1}, s{S_T1}, 7
        s_add_u32 s{S_T1}, s{S_T1}, s{S_B}
        s_lshl_b32 s{S_T1}, s{S_T1}, 4
        v_add_u32 v{s.OS}, s{S_T1}, v{s.OS}
        s_mul_i32 s{S_A3}, s{S_W}, 1280
        s_add_u32 s{S_A3}, s{S_A3}, s{S_GRP}
        s_add_u32 s{S_A3}, s{S_A3}, {G_H}
        v_and_b32 v5, 7, v0
        v_bfe_u32 v6, v0, 3, 1
        s_and_b32 s{S_T0}, s2, 7
        s_and_b32 s{S_T1}, s{S_W}, 3
        s_cmp_eq_u32 s{S_ROLE}, 3
        s_cbranch_scc0 L_tsffn
        """)
        A(f"""
        v_lshlrev_b32 v{s.A0}, 4, v5
        v_lshl_add_u32 v{s.A0}, v6, 9, v{s.A0}
        v_lshl_add_u32 v{s.A0}, v{V_G}, 7, v{s.A0}
        s_cmp_ge_u32 s{S_IDX}, 10
        s_cselect_b32 s{S_A0}, 4096, 0
        s_add_u32 s{S_A0}, s{S_A0}, s{S_GRP}
        v_bfe_u32 v{s.A1}, v0, 3, 2
        v_xor_b32 v{s.A1}, s{S_T1}, v{s.A1}
        v_lshlrev_b32 v{s.A1}, 5, v{s.A1}
        v_and_b32 v{s.A2}, 3, v0
        v_lshl_add_u32 v{s.A1}, v{s.A2}, 3, v{s.A1}
        v_bfe_u32 v{s.A4}, v0, 2, 2
        v_lshl_add_u32 v{s.A1}, v{s.A4}, 7, v{s.A1}
        v_lshl_add_u32 v{s.A1}, v{V_G}, 10, v{s.A1}
        v_add_u32 v{s.A1}, {L_W}, v{s.A1}
        v_lshlrev_b32 v{s.A3}, 4, v5
        v_lshl_add_u32 v{s.A3}, v{V_G}, 7, v{s.A3}
        s_mul_i32 s{S_A1}, s{S_T0}, 20480
        s_lshl_b32 s{S_T2}, s{S_IDX}, 11
        s_add_u32 s{S_A1}, s{S_A1}, s{S_T2}
        s_cmp_ge_u32 s{S_IDX}, 10
        s_cselect_b32 s{S_T2}, {7*20480}, 0
        s_add_u32 s{S_A1}, s{S_A1}, s{S_T2}
        s_lshl_b32 s{S_T2}, s{S_T1}, 9
        s_add_u32 s{S_A1}, s{S_A1}, s{S_T2}
        s_add_u32 s{S_A1}, s{S_A1}, {WS_SLAB}
        v_mul_u32_u24 v{s.A4}, 20480, v{V_G}
        v_lshl_add_u32 v{s.A4}, v{V_C}, 3, v{s.A4}
        s_lshl_b32 s{S_T2}, s{S_IDX}, 10
        s_lshl_b32 s{S_T3}, s{S_W}, 7
        s_add_u32 s{S_T2}, s{S_T2}, s{S_T3}
        s_add_u32 s{S_T2}, s{S_T2}, {WS_SLAB}
        v_add_u32 v{s.A4}, s{S_T2}, v{s.A4}
        v_add_u32 v{s.B1}, {4*20480}, v{s.A4}
        v_bfe_u32 v{s.B2}, v0, 2, 2
        v_lshl_add_u32 v{s.B2}, v7, 2, v{s.B2}
        v_mul_u32_u24 v{s.B2}, 20480, v{s.B2}
        v_bfe_u32 v5, v0, 4, 1
        v_lshl_add_u32 v5, v5, 2, v{s.A2}
        v_lshl_add_u32 v{s.B2}, v5, 4, v{s.B2}
        v_add_u32 v{s.B2}, s{S_T2}, v{s.B2}
        v_mul_u32_u24 v{s.B3}, 1280, v5
        v_lshl_add_u32 v{s.B3}, v7, 2, v{s.B3}
        v_lshrrev_b32 v5, 1, v{V_C}
        v_lshlrev_b32 v{s.A6}, 4, v5
        v_mul_u32_u24 v{s.A5}, 1280, v5
        v_and_b32 v5, 1, v0
        v_lshl_add_u32 v{s.A5}, v5, 2, v{s.A5}
        s_lshl_b32 s{S_T2}, s{S_IDX}, 6
        s_lshl_b32 s{S_T3}, s{S_W}, 3
        s_add_u32 s{S_T2}, s{S_T2}, s{S_T3}
        v_add_u32 v{s.A5}, s{S_T2}, v{s.A5}
        v_add_u32 v{s.B3}, s{S_T2}, v{s.B3}
        v_lshl_add_u32 v{s.A7}, v7, 1, v{s.A5}
        s_add_u32 s{S_A2}, s{S_GRP}, {G_H}
        s_mov_b32 s84, {8*20480}
        ds_read_b32 v{s.XP}, v{s.B3} offset:{L_H}
        v_mov_b32 v{s.Z}, 0
        v_mov_b32 v{s.Z+1}, 0
        s_cmp_eq_u32 s{S_W}, s{S_T0}
        s_cselect_b32 s{S_EJOB}, 1, 0
        s_branch L_tsdone
        L_tsffn:
        s_cmp_eq_u32 s{S_ROLE}, 2
        s_cbranch_scc1 L_tsdown
        """)
        A(f"""
        s_lshl_b32 s{S_T2}, s{S_W}, 3
        v_mov_b32 v{s.A0}, s{S_T2}
        v_lshlrev_b32 v{s.A1}, 3, v5
        s_mul_i32 s{S_T2}, s{S_W}, {XS}
        v_add_u32 v{s.A2}, s{S_T2}, v{V_L16}
        v_add_u32 v{s.A3}, s{S_T2}, v{s.L4}
        s_mul_i32 s{S_T2}, s{S_W}, 1056
        v_add_u32 v{s.A5}, s{S_T2}, v{V_L16}
        v_lshlrev_b32 v{s.A6}, 4, v5
        v_mul_u32_u24 v6, {4*1056}, v6
        v_add_u32 v{s.A6}, v{s.A6}, v6
        v_bfe_u32 v6, v0, 4, 1
        v_lshl_add_u32 v{s.A6}, v6, 3, v{s.A6}
        v_lshl_add_u32 v{s.A6}, v7, 8, v{s.A6}
        s_lshr_b32 s{S_T2}, s{S_T1}, 1
        s_lshl_b32 s{S_T2}, s{S_T2}, 7
        s_and_b32 s{S_T3}, s{S_T1}, 1
        s_lshl_b32 s{S_T3}, s{S_T3}, 9
        s_add_u32 s{S_T2}, s{S_T2}, s{S_T3}
        v_add_u32 v{s.A6}, s{S_T2}, v{s.A6}
        v_mul_u32_u24 v{s.A4}, {XS}, v5
        v_lshl_add_u32 v{s.A4}, v{V_G}, 4, v{s.A4}
        s_mul_i32 s{S_T2}, s{S_T1}, 320
        v_add_u32 v{s.A4}, s{S_T2}, v{s.A4}
        v_bfe_u32 v{s.A7}, v0, 2, 2
        v_lshlrev_b32 v{s.A7}, 6, v{s.A7}
        v_and_b32 v6, 3, v0
        v_lshl_add_u32 v{s.A7}, v6, 3, v{s.A7}
        v_lshl_add_u32 v{s.A7}, v{V_G}, 9, v{s.A7}
        v_bfe_u32 v6, v0, 4, 1
        v_lshl_add_u32 v{s.A7}, v6, 5, v{s.A7}
        v_add_u32 v{s.A7}, s{S_LM0}, v{s.A7}
        v_xor_b32 v{s.XC}, 32, v{s.A7}
        v_lshlrev_b32 v{s.XP}, 4, v5
        v_lshl_add_u32 v{s.XP}, v{V_G}, 2, v{s.XP}
        s_lshl_b32 s{S_A2}, s{S_IDX}, 9
        s_lshl_b32 s{S_T2}, s{S_T1}, 7
        s_add_u32 s{S_A2}, s{S_A2}, s{S_T2}
        s_branch L_tsdone
        L_tsdown:
        v_lshlrev_b32 v{s.A0}, 4, v5
        v_lshl_add_u32 v{s.A0}, v6, 9, v{s.A0}
        v_lshl_add_u32 v{s.A0}, v{V_G}, 7, v{s.A0}
        s_lshl_b32 s{S_T2}, s{S_T1}, 2
        v_bfe_u32 v{s.A1}, v0, 1, 1
        v_add_u32 v{s.A1}, s{S_T2}, v{s.A1}
        v_bfe_u32 v{s.A2}, v0, 2, 2
        v_lshlrev_b32 v{s.A3}, 1, v{s.A2}
        v_xor_b32 v{s.A1}, v{s.A1}, v{s.A3}
        v_lshlrev_b32 v{s.A1}, 4, v{s.A1}
        v_lshl_add_u32 v{s.A1}, v{s.A2}, 8, v{s.A1}
        v_and_b32 v{s.A2}, 1, v0
        v_lshl_add_u32 v{s.A1}, v{s.A2}, 3, v{s.A1}
        v_lshl_add_u32 v{s.A1}, v{V_G}, 14, v{s.A1}
        v_add_u32 v{s.A1}, {L_W}, v{s.A1}
        v_xor_b32 v{s.A2}, 32, v{s.A1}
        v_xor_b32 v{s.A6}, 128, v{s.A1}
        v_xor_b32 v{s.A7}, 160, v{s.A1}
        v_mov_b32 v{s.A3}, v{s.A0}
        s_mul_i32 s{S_A1}, s{S_T0}, 20480
        s_lshl_b32 s{S_T2}, s{S_IDX}, 12
        s_add_u32 s{S_A1}, s{S_A1}, s{S_T2}
        s_lshl_b32 s{S_T2}, s{S_T1}, 10
        s_add_u32 s{S_A1}, s{S_A1}, s{S_T2}
        s_add_u32 s{S_A1}, s{S_A1}, {WS_YP}
        L_tsdone:
        """)
        self.setthr()

    def wofrags(self):
        for st in range(8):
            for hf in range(2): self.A(f"ds_read_b64_tr_b16 {vr(self.WF+4*st+2*hf,2)}, v{self.A1} offset:{4096*st+512*hf}")
            if st == 6: self.A("s_waitcnt lgkmcnt(8)")
    def red_lanes(self, P):
        A = self.A
        A(f"v_permlane32_swap_b32 v{P}, v{P+2}\nv_permlane32_swap_b32 v{P+1}, v{P+3}")
        A(f"v_add_f32 v{P}, v{P}, v{P+2}\nv_add_f32 v{P+1}, v{P+1}, v{P+3}")
        for md in ("row_ror:8", "row_ror:4"):
            for i in range(2): A(f"v_add_f32_dpp v{P+i}, v{P+i}, v{P+i} {md} {DPPF}")
    def red_rows(self, P):
        A = self.A
        A(f"v_permlane32_swap_b32 v{P}, v{P+1}\nv_add_f32 v{P+2}, v{P}, v{P+1}\nv_add_f32 v{P}, v{P}, v{P+1}")
        A(f"v_permlane16_swap_b32 v{P}, v{P+2}\nv_add_f32 v{P}, v{P}, v{P+2}")
    def gather(self, lab, addrs, MK, P, sbase, katom):
        A = self.A; n = len(addrs)
        def fetch(atom):
            for i, (a, m) in enumerate(zip(addrs, MK)):
                self.uid += 1
                A(f"s_mov_b64 exec, s[{m}:{m+1}]\ns_cbranch_execz L_g{self.uid}")
                if atom: A(f"global_atomic_or_x2 {vr(P+2*i,2)}, v{a}, {vr(self.Z,2)}, s[{sbase}:{sbase+1}] sc0 sc1")
                else: A(f"global_load_dwordx2 {vr(P+2*i,2)}, v{a}, s[{sbase}:{sbase+1}] sc1")
                A(f"L_g{self.uid}:")
        both = 0 < katom < 4 * n
        if both:
            A(f"L_{lab}ld:"); fetch(False); A(f"s_branch L_{lab}chk")
        A(f"L_{lab}at:"); fetch(katom > 0)
        A(f"L_{lab}chk:\ns_waitcnt vmcnt(0)")
        for i, m in enumerate(MK):
            A(f"s_mov_b64 exec, s[{m}:{m+1}]\nv_xor_b32 v{P+2*i}, s{S_T4}, v{P+2*i}\nv_xor_b32 v{P+2*i+1}, s{S_T4}, v{P+2*i+1}")
            A(f"v_bitop3_b32 v6, v{P+2*i}, v{P+2*i+1}, 15 bitop3:0xa8\nv_cmp_ne_u32 s[{m}:{m+1}], 0, v6")
        A("s_mov_b64 exec, -1")
        if n == 4:
            A(f"s_or_b64 s[54:55], s[{MK[0]}:{MK[0]+1}], s[{MK[1]}:{MK[1]+1}]\ns_or_b64 s[54:55], s[54:55], s[{MK[2]}:{MK[2]+1}]\ns_or_b64 s[54:55], s[54:55], s[{MK[3]}:{MK[3]+1}]")
        else: A(f"s_or_b64 s[54:55], s[{MK[0]}:{MK[0]+1}], s[{MK[1]}:{MK[1]+1}]")
        A(f"s_cbranch_scc0 L_{lab}ok")
        A(f"s_sub_u32 s{S_SPIN}, s{S_SPIN}, 1\ns_cbranch_scc1 L_end")
        for m in MK:
            A(f"s_quadmask_b64 s[{m}:{m+1}], s[{m}:{m+1}]\ns_wqm_b32 s{m}, s{m}\ns_bitreplicate_b64_b32 s[{m}:{m+1}], s{m}\ns_bitreplicate_b64_b32 s[{m}:{m+1}], s{m}")
        if both:
            A(f"s_bcnt1_i32_b64 s54, s[{MK[0]}:{MK[0]+1}]")
            for m in MK[1:]: A(f"s_bcnt1_i32_b64 s55, s[{m}:{m+1}]\ns_add_u32 s54, s54, s55")
            A(f"s_cmp_le_u32 s54, {16*katom}\ns_cbranch_scc0 L_{lab}ld")
        A(f"s_branch L_{lab}at\nL_{lab}ok:")
    def hpoll(self, lab, HR, sleep=None):
        A = self.A; s = self
        A(f"L_{lab}poll:")
        A(f"buffer_load_dwordx4 {vr(HR,4)}, v{V_L16}, {srd(R_WS)}, s{S_A3} offen sc1")
        A(f"buffer_load_dword v{HR+4}, v{s.L4}, {srd(R_WS)}, s{S_A3} offen offset:1024 sc1")
        A("s_waitcnt vmcnt(0)")
        self.sentinel(HR, 5, 6)
        A(f"s_cbranch_vccz L_{lab}ok")
        self.spin_guard(f"L_{lab}poll", sleep)
        A(f"L_{lab}ok:")

    def tail(self):
        A = self.A; s = self
        oacc = V_ACC; P = slot(0); WF = s.WF
        A(f"""
        s_cmp_eq_u32 s{S_W}, 0
        s_mov_b32 exec_hi, 0
        s_nop 4
        ds_write_b128 v{s.OW}, {vr(oacc,4)} offset:{L_QP}
        s_mov_b64 exec, -1
        s_waitcnt lgkmcnt(0)
        s_barrier
        s_cbranch_scc0 L_noopub
        """)
        for i in range(4): A(f"ds_read2st64_b64 {vr(P+4*i,4)}, v{s.OR} offset0:{L_QP//512+2*i} offset1:{L_QP//512+2*i+1}")
        self.setloc()
        A("s_waitcnt lgkmcnt(2)")
        A(f"v_pk_add_f32 {vr(P,2)}, {vr(P,2)}, {vr(P+2,2)}\nv_pk_add_f32 {vr(P+4,2)}, {vr(P+4,2)}, {vr(P+6,2)}\nv_pk_add_f32 {vr(P,2)}, {vr(P,2)}, {vr(P+4,2)}")
        A("s_waitcnt lgkmcnt(0)")
        A(f"v_pk_add_f32 {vr(P+8,2)}, {vr(P+8,2)}, {vr(P+10,2)}\nv_pk_add_f32 {vr(P+12,2)}, {vr(P+12,2)}, {vr(P+14,2)}")
        A(f"v_pk_add_f32 {vr(P,2)}, {vr(P,2)}, {vr(P+8,2)}\nv_pk_add_f32 {vr(P,2)}, {vr(P,2)}, {vr(P+12,2)}")
        A(f"v_cvt_pk_bf16_f32 v{P}, v{P}, v{P+1}\nv_min_u32 v{P}, -2, v{P}")
        self.lstore(f"buffer_store_dword v{P}, v{s.OS}, {srd(R_WS)}, s{S_GRP} offen")
        A("L_noopub:")
        self.stamp("opub")
        A(f"s_cmp_eq_u32 s{S_ROLE}, 3\ns_cbranch_scc0 L_ffn")
        def opoll():
            for u in range(4): A(f"buffer_load_dwordx4 {vr(P+4*u,4)}, v{s.A0}, {srd(R_WS)}, s{S_A0} offen offset:{1024*u} sc1")
        if self.wo_late and self.osleep is not None:
            A(f"""
            s_cmp_lt_u32 s{S_W}, 4
            s_cbranch_scc0 L_hi
            s_cmp_eq_u32 s{S_W}, 0
            s_cbranch_scc1 L_w0
            s_waitcnt vmcnt(0)
            L_w0:
            s_waitcnt vmcnt(1)
            s_barrier
            s_branch L_low
            L_hi:
            s_sleep {self.osleep}
            """)
            opoll()
            A("s_waitcnt vmcnt(4)\ns_barrier")
            self.stamp("wogot")
            self.wofrags()
            A("s_branch L_ochk")
        elif self.wo_late and self.wpost:
            A("s_barrier")
            for i in range(self.wpost): self.ldF(f"Wp{i}", fl=self.wfl)
            A(f"s_cmp_lt_u32 s{S_W}, 4\ns_cbranch_scc0 L_hi\ns_waitcnt vmcnt(0)\ns_barrier\ns_branch L_low\nL_hi:\ns_sleep 3")
            opoll()
            A("s_waitcnt vmcnt(4)\ns_barrier")
            self.stamp("wogot")
            self.wofrags()
            A("s_branch L_ochk")
        elif self.wo_late:
            A(f"""
            s_cmp_eq_u32 s{S_W}, 0
            s_cbranch_scc1 L_w0
            s_waitcnt vmcnt(0)
            L_w0:
            s_waitcnt vmcnt(1)
            s_cmp_lt_u32 s{S_W}, 4
            s_barrier
            s_cbranch_scc1 L_low
            """)
            self.stamp("wogot")
            opoll()
            self.wofrags()
            A("s_branch L_ochk")
        else: A(f"s_cmp_lt_u32 s{S_W}, 4\ns_cbranch_scc1 L_low")
        A("L_opoll:")
        for u in range(4): A(f"buffer_load_dwordx4 {vr(P+4*u,4)}, v{s.A0}, {srd(R_WS)}, s{S_A0} offen offset:{1024*u} sc1")
        A("L_ochk:\ns_waitcnt vmcnt(0) lgkmcnt(0)")
        self.sentinel(P, 16, 6)
        A("s_cbranch_vccz L_ook")
        self.spin_guard("L_opoll")
        A("L_ook:")
        self.stamp("ook")
        D = slot(4)
        for u in range(4):
            for par in range(2):
                d = D + 4*par
                A(f"v_mfma_f32_16x16x32_bf16 {vr(d,4)}, {vr(WF+4*(2*u+par),4)}, {vr(P+4*u,4)}, {vr(d,4) if u else '0'}")
        if self.srep:
            R = slot(6)
            for i in range(4): A(f"v_add_f32_dpp v{R+i}, v{D+4+i}, v{D+i} row_ror:8 row_mask:0xf bank_mask:0x3")
            for i in range(4): A(f"v_add_f32_dpp v{R+i}, v{D+i}, v{D+4+i} row_ror:8 row_mask:0xf bank_mask:0xc")
            for i in range(4): A(f"v_and_or_b32 v{R+i}, v{R+i}, -16, s{S_T4}")
            nst = self.srep // 2
            for r in range(nst):
                A(f"buffer_store_dwordx4 {vr(R,4)}, v{s.A3}, {srd(R_WS)}, s{S_A1} offen sc1")
                if r < nst - 1: A(f"s_add_u32 s{S_A1}, s{S_A1}, {2*16*20480}")
        else:
            for i in range(4): A(f"v_add_f32_dpp v{D+i}, v{D+4+i}, v{D+i} row_ror:8 {DPPF}")
            A("s_mov_b32 exec_lo, 0x00ff00ff\ns_mov_b32 exec_hi, 0x00ff00ff")
            for i in range(4): A(f"v_and_or_b32 v{D+i}, v{D+i}, -16, s{S_T4}")
            A(f"buffer_store_dwordx4 {vr(D,4)}, v{s.A3}, {srd(R_WS)}, s{S_A1} offen sc1")
            A("s_mov_b64 exec, -1")
        self.stamp("slab")
        P = slot(8); HV = P + 20
        A("L_low:")
        MK = [44, 46, 48, 50]
        A(f"v_lshlrev_b32 v{P+8}, 16, v{s.XP}\nv_and_b32 v{P+9}, 0xffff0000, v{s.XP}\ns_barrier")
        if self.bsleep: A(f"s_sleep {self.bsleep}")
        def bl(R):
            A(f"buffer_load_dwordx4 {vr(R,4)}, v{s.B2}, {srd(R_WS)}, 0 offen sc1\nbuffer_load_dwordx4 {vr(R+4,4)}, v{s.B2}, {srd(R_WS)}, s84 offen sc1")
        A("L_redpoll:")
        bl(P)
        A("s_waitcnt vmcnt(0)")
        self.tagcheck(P, 8, 6, S_T4, 15)
        A("s_cbranch_vccz L_redok")
        if not self.bpipe: self.spin_guard("L_redpoll")
        else:
            d = self.bpipe; SET = [slot(14) + 8 * k for k in range(d)]
            A("s_wqm_b64 exec, vcc")
            for k in range(d - 1): bl(SET[k]); A(f"s_sleep {self.bgap}")
            A("L_redpipe:")
            for k in range(d):
                bl(SET[(k + d - 1) % d])
                A(f"s_waitcnt vmcnt({2*(d-1)})")
                self.tagcheck(P, 8, 6, S_T4, 15, src=SET[k])
                A("s_wqm_b64 exec, vcc\ns_cbranch_execz L_redok")
                if self.bgap > 1: A(f"s_sleep {self.bgap - 1}")
            self.spin_guard("L_redpipe")
        A("L_redok:")
        if self.bpipe: A("s_mov_b64 exec, -1")
        self.stamp("redok")
        for hh in (0, 2): A(f"v_pk_add_f32 {vr(P+hh,2)}, {vr(P+hh,2)}, {vr(P+4+hh,2)}")
        self.setloc()
        self.red_lanes(P)
        self.rnd_pair(P, P + 1, P + 2)
        A(f"""
        v_add_f32 v{P}, v{P}, v{P+8}
        v_add_f32 v{P+1}, v{P+1}, v{P+9}
        s_mov_b32 exec_lo, 0x000f000f
        s_mov_b32 exec_hi, 0x000f000f
        v_cvt_pk_bf16_f32 v{P}, v{P}, v{P+1}
        v_min_u32 v{P}, -2, v{P}
        """)
        self.lstore(f"buffer_store_dword v{P}, v{s.B3}, {srd(R_WS)}, s{S_A2} offen")
        A(f"s_mov_b64 exec, -1")
        self.stamp("hpub")
        HR = slot(14); HO = slot(16); F1 = slot(18); T1 = slot(21)
        A(f"""
        s_mul_i32 s{S_T1}, s{S_W}, 1280
        v_add_u32 v{s.B2}, s{S_T1}, v{V_L16}
        v_add_u32 v{s.A3}, s{S_T1}, v{s.L4}
        global_load_dwordx4 {vr(s.WR,4)}, v{V_L16}, s[{S_WR}:{S_WR+1}]
        global_load_dword v{s.WR+4}, v{s.L4}, s[{S_WR}:{S_WR+1}] offset:1024
        s_mov_b64 exec, 1
        global_load_dword v{s.XC}, v{s.A5}, s[{S_OUT}:{S_OUT+1}]
        s_mov_b64 exec, -1
        s_waitcnt vmcnt(0)
        """)
        self.hpoll("e", HR, 2)
        A(f"ds_write_b128 v{s.B2}, {vr(HR,4)} offset:{L_XN}\nds_write_b32 v{s.A3}, v{HR+4} offset:{L_XN+1024}")
        self.layernorm(HR, F1, T1, HO, keep=(F1+10, F1+11))
        for i in range(5):
            A(f"v_lshlrev_b32 v{F1+2*i}, 16, v{HO+i}\nv_and_b32 v{F1+2*i+1}, 0xffff0000, v{HO+i}")
            A(f"v_lshlrev_b32 v{T1+2*i}, 16, v{s.WR+i}\nv_and_b32 v{T1+2*i+1}, 0xffff0000, v{s.WR+i}")
        A(f"v_mul_f32 v6, v{F1}, v{T1}")
        for i in range(1, 10): A(f"v_fmac_f32 v6, v{F1+i}, v{T1+i}")
        for md in ("quad_perm:[1,0,3,2]", "quad_perm:[2,3,0,1]"): A(f"v_add_f32_dpp v6, v6, v6 {md} {DPPF}")
        self.allred("v_add_f32", 6, F1)
        self.rnd1(6)
        A(f"v_mul_f32 v6, 0xbfb8aa3b, v6\nv_exp_f32 v6, v6\nv_add_f32 v6, 1.0, v6\nv_rcp_f32 v6, v6")
        self.rnd1(6)
        A(f"""
        v_mov_b32 v{F1+8}, v6
        s_lshl_b32 s{S_T1}, s{S_W}, 4
        v_mov_b32 v7, s{S_T1}
        ds_write_b128 v7, {vr(F1+8,4)} offset:{L_RED}
        s_cmp_eq_u32 s{S_EJOB}, 0
        s_waitcnt lgkmcnt(0)
        s_barrier
        s_cbranch_scc1 L_fin
        ds_read_b128 {vr(F1,4)}, v{s.A6} offset:{L_RED}
        ds_read_u16 v{HV}, v{s.A7} offset:{L_XN}
        s_add_u32 s52, s{S_WS}, {WS_YP - WS_SLAB}
        s_addc_u32 s53, s{S_WS+1}, 0
        s_mov_b64 s[{MK[0]}:{MK[0]+1}], -1
        s_mov_b64 s[{MK[1]}:{MK[1]+1}], -1
        s_waitcnt lgkmcnt(0)
        v_lshlrev_b32 v{HV}, 16, v{HV}
        v_sub_f32 v{T1}, v{HV}, v{F1+2}
        """)
        self.rnd1(T1)
        A(f"v_mul_f32 v{T1}, v{T1}, v{F1+3}")
        self.rnd1(T1)
        self.stamp("erdy")
        def yl(R):
            for i, a in enumerate((s.A4, s.B1)): A(f"global_atomic_or_x2 {vr(R+2*i,2)}, v{a}, {vr(s.Z,2)}, s[52:53] sc0 sc1")
        if self.ypipe == 0: self.gather("y", [s.A4, s.B1], MK[:2], P, 52, 99 if self.yatom else 0)
        else:
            d = self.ypipe; SET = [slot(24) + 4 * k for k in range(d)]
            for k in range(d - 1): yl(SET[k]); A(f"s_sleep {self.esleep}")
            A("L_ypipe:")
            for k in range(d):
                yl(SET[(k + d - 1) % d])
                A(f"s_waitcnt vmcnt({2*(d-1)})")
                self.tagcheck(P, 4, 6, S_T4, 15, src=SET[k])
                A("s_cbranch_vccz L_yok")
                if d > 1 and self.esleep > 1: A(f"s_sleep {self.esleep - 1}")
            self.spin_guard("L_ypipe")
            A("L_yok:")
        self.stamp("yok")
        A(f"v_pk_add_f32 {vr(P,2)}, {vr(P,2)}, {vr(P+2,2)}")
        self.red_rows(P)
        self.rnd1(P)
        A(f"v_mul_f32 v{P}, v{P}, v{F1}")
        self.rnd1(P)
        A(f"v_add_f32 v{P}, v{P}, v{T1}")
        self.rnd1(P)
        A(f"""
        v_add_f32 v{P+1}, v{P}, v{HV}
        v_add_f32 v{P}, v{P}, v{HV}
        s_nop 1
        v_permlane32_swap_b32 v{P}, v{P+1}
        s_mov_b64 exec, 0xffff
        v_cvt_pk_bf16_f32 v{P}, v{P}, v{P+1}
        global_store_dword v{s.A5}, v{P}, s[{S_OUT}:{S_OUT+1}]
        s_or_b32 s{S_T1}, s2, s{S_W}
        s_cbranch_scc1 L_fin
        v_mov_b32 v6, {WS_EPOCH}
        v_mov_b32 v7, s{S_EP}
        s_mov_b64 exec, 1
        global_store_dword v6, v7, s[{S_WS}:{S_WS+1}] sc1
        s_branch L_fin
        L_ffn:
        s_cmp_eq_u32 s{S_ROLE}, 0
        s_cbranch_scc1 L_fin
        s_cmp_eq_u32 s{S_ROLE}, 2
        s_barrier
        s_cbranch_scc1 L_down
        """)
        HR = slot(4); HO = slot(6); F1 = slot(8); T1 = slot(11)
        A(f"buffer_load_dwordx4 {vr(HR,4)}, v{V_L16}, {srd(R_WS)}, s{S_A3} offen sc1")
        A(f"buffer_load_dword v{HR+4}, v{s.L4}, {srd(R_WS)}, s{S_A3} offen offset:1024 sc1")
        while self.nfc < 10: self.ldC()
        BF = slot(16); DA = V_ACC; CS = slot(24)
        for i in range(4): A(f"v_mov_b32 v{BF+i}, 0x3f803f80")
        A(f"v_mov_b32 v{CS+8}, 0x3f803f80")
        A("s_waitcnt vmcnt(0)")
        self.stamp("fgot")
        hl = [f"buffer_load_dwordx4 {vr(HR,4)}, v{V_L16}, {srd(R_WS)}, s{S_A3} offen sc1", f"buffer_load_dword v{HR+4}, v{s.L4}, {srd(R_WS)}, s{S_A3} offen offset:1024 sc1"]
        A("\n".join(hl))
        def csum(st):
            for tl in range(2):
                A(f"v_mfma_f32_16x16x32_bf16 {vr(DA+4*tl,4)}, {vr(WF+20*tl+4*st,4)}, {vr(BF,4)}, {vr(DA+4*tl,4) if st else '0'}")
        for st in range(5):
            for tl in range(2):
                for hf in range(2): A(f"ds_read_b64_tr_b16 {vr(WF+20*tl+4*st+2*hf,2)}, v{s.XC if tl else s.A7} offset:{2048*st+256*hf}")
            if st >= 2: A("s_waitcnt lgkmcnt(8)"); csum(st - 2)
        A("s_waitcnt lgkmcnt(4)"); csum(3); A("s_waitcnt lgkmcnt(0)"); csum(4)
        def redw(base):
            for i in range(4): A(f"v_mov_b32_dpp v{DA+i}, v{DA+4+i} quad_perm:[0,1,2,3] row_mask:0xf bank_mask:0xc")
            A(f"ds_write_b128 v{s.A5}, {vr(DA,4)} offset:{base}")
        def redr(B, base):
            for i in range(4): A(f"ds_read_b64 {vr(B+2*i,2)}, v{s.A6} offset:{base+1056*i}")
        def reds(B):
            A(f"v_pk_add_f32 {vr(B,2)}, {vr(B,2)}, {vr(B+2,2)}\nv_pk_add_f32 {vr(B+4,2)}, {vr(B+4,2)}, {vr(B+6,2)}\nv_pk_add_f32 {vr(B,2)}, {vr(B,2)}, {vr(B+4,2)}")
        redw(L_H)
        if self.cdry: A("s_mov_b32 s44, 1\ns_waitcnt vmcnt(0)\ns_branch L_hok\nL_cagain:\ns_mov_b64 exec, -1\ns_cmp_eq_u32 s44, 0\ns_cbranch_scc1 L_fin\ns_mov_b32 s44, 0\ns_branch L_hpoll")
        A("s_branch L_hchk\nL_hpoll:\n" + "\n".join(hl) + "\nL_hchk:\ns_waitcnt vmcnt(0)")
        self.sentinel(HR, 5, 6)
        A(f"s_cbranch_vccz L_hok")
        self.spin_guard(f"L_hpoll")
        A(f"L_hok:")
        self.stamp("hok")
        A(f"ds_write_b128 v{s.A2}, {vr(HR,4)} offset:{L_XN}\nds_write_b32 v{s.A3}, v{HR+4} offset:{L_XN+1024}")
        n0 = len(A.L)
        self.layernorm(HR, F1, T1, HO, stats_only=True, dot2=(CS + 8 if self.dot2 else None))
        st_lines = A.L[n0:]; del A.L[n0:]
        npre_, nmid, per = (12, 10, [2, 2, 2, 2, 2, 2, 2, 2, 2, 2]) if self.dot2 else (11, 20, [3, 3, 3, 2, 1, 1, 1, 1, 2, 2])
        if self.cord == 1: nmid, per = 3, [1, 1, 1, 1, 2, 3, 3, 3, 3, 3]
        if self.cord == 2: nmid, per = 6, [1, 2, 2, 3, 3, 3, 2, 2, 2, 2]
        for l in st_lines[:npre_]: A(l)
        A("s_waitcnt lgkmcnt(0)\ns_barrier")
        self.stamp("lnbar")
        for st in range(5): A(f"ds_read_b128 {vr(BF+4*st,4)}, v{s.A4} offset:{L_XN+64*st}")
        redr(CS, L_H)
        rest = st_lines[npre_:]
        for l in rest[:nmid]: A(l)
        rest = rest[nmid:]
        mf = []
        for st in range(5):
            for tl in range(2):
                mf.append((f"s_waitcnt lgkmcnt({8-st})\n" if tl == 0 else "") + f"v_mfma_f32_16x16x32_bf16 {vr(DA+4*tl,4)}, {vr(WF+20*tl+4*st,4)}, {vr(BF+4*st,4)}, {vr(DA+4*tl,4) if st else '0'}")
        for mi, (m_, k) in enumerate(zip(mf, per)):
            A(m_)
            if mi == 0: self.stamp("cm0")
            for l in rest[:k]: A(l)
            rest = rest[k:]
        for l in rest: A(l)
        A(f"s_cmp_lt_u32 s{S_W}, 4")
        redw(L_RED)
        A(f"ds_write_b64 v{s.A0}, {vr(HO,2)} offset:{L_SM}")
        self.stamp("cmf")
        A("s_waitcnt lgkmcnt(0)\ns_barrier\ns_cbranch_scc0 " + ("L_cagain" if self.cdry else "L_fin"))
        self.stamp("cbar")
        redr(BF, L_RED)
        A(f"ds_read_b64 {vr(BF+8,2)}, v{s.A1} offset:{L_SM}")
        reds(CS)
        self.setloc()
        A("s_waitcnt lgkmcnt(1)"); reds(BF); A("s_waitcnt lgkmcnt(0)")
        for i in range(2): A(f"v_fma_f32 v{BF+i}, -v{BF+8}, v{CS+i}, v{BF+i}")
        for i in range(2): A(f"v_mul_f32 v{BF+i}, v{BF+i}, v{BF+9}")
        for i in range(2): A(f"v_mul_f32 v{BF+4+i}, 0xbfb8aa3b, v{BF+i}")
        for i in range(2): A(f"v_exp_f32 v{BF+4+i}, v{BF+4+i}")
        for i in range(2): A(f"v_mul_f32_dpp v{BF+2+i}, v{BF+i}, v{BF+i} row_ror:8 {DPPF}")
        for i in range(2): A(f"v_add_f32 v{BF+4+i}, 1.0, v{BF+4+i}")
        for i in range(2): A(f"v_rcp_f32 v{BF+4+i}, v{BF+4+i}")
        A("s_mov_b32 exec_lo, 0x00ff00ff\ns_mov_b32 exec_hi, 0x00ff00ff")
        for i in range(2): A(f"v_mul_f32 v{BF+4+i}, v{BF+4+i}, v{BF+2+i}")
        A(f"v_cvt_pk_bf16_f32 v{BF}, v{BF+4}, v{BF+5}\nv_min_u32 v{BF}, -2, v{BF}")
        if self.cdry: A("s_cmp_eq_u32 s44, 1\ns_cbranch_scc1 L_cagain"); self.setloc()
        self.lstore(f"buffer_store_dword v{BF}, v{s.XP}, {srd(R_ACT)}, s{S_A2} offen")
        self.stamp("apub")
        A("s_branch L_fin\nL_down:")
        for i in range(7): self.ldF()
        A(f"s_cmp_lt_u32 s{S_W}, 4\ns_waitcnt vmcnt(0)\ns_barrier\ns_cbranch_scc0 L_fin")
        n = 0
        for tl in range(2):
            for st in range(7):
                for hf in range(2):
                    a = [[s.A1, s.A6], [s.A2, s.A7]][tl][hf]
                    A(f"ds_read_b64_tr_b16 {vr(WF+28*tl+4*st+2*hf,2)}, v{a} offset:{8192*hf+1024*st}")
                    n += 1
                    if n % 8 == 0 and n >= 8: A("s_waitcnt lgkmcnt(4)")
        self.stamp("fgot")
        P = slot(0); D = slot(4); R = slot(8)
        A("L_apoll:")
        for u in range(4): A(f"buffer_load_dwordx4 {vr(P+4*u,4)}, v{s.A0}, {srd(R_ACT)}, 0 offen offset:{1024*u} sc1")
        A("s_waitcnt vmcnt(0) lgkmcnt(0)")
        self.sentinel(P, 16, 6)
        A("s_cbranch_vccz L_aok")
        self.spin_guard("L_apoll")
        A("L_aok:")
        self.stamp("aok")
        for u in range(4):
            for par in (1, 0):
                if 2*u + par == 7: continue
                for tl in range(2):
                    d = D + 8*tl + 4*par
                    A(f"v_mfma_f32_16x16x32_bf16 {vr(d,4)}, {vr(WF+28*tl+4*(2*u+par),4)}, {vr(P+4*u,4)}, {vr(d,4) if u else '0'}")
        for i in range(4): A(f"v_add_f32_dpp v{R+i}, v{D+4+i}, v{D+i} row_ror:8 row_mask:0xf bank_mask:0x3")
        for i in range(4): A(f"v_add_f32_dpp v{R+i}, v{D+8+i}, v{D+12+i} row_ror:8 row_mask:0xf bank_mask:0xc")
        for i in range(4): A(f"v_and_or_b32 v{R+i}, v{R+i}, -16, s{S_T4}")
        A(f"buffer_store_dwordx4 {vr(R,4)}, v{s.A3}, {srd(R_WS)}, s{S_A1} offen sc1")
        self.stamp("ypub")
        A("L_fin:\ns_mov_b64 exec, -1")

if __name__ == "__main__":
    import json
    out = sys.argv[1]
    kw = json.loads(sys.argv[2]) if len(sys.argv) > 2 else {}
    g = G(**kw)
    s = g.gen()
    hdr = open("cdna_kernels/" + NAME + ".s.ref").read().split("; Override launch")[0]
    open(out, "w").write(hdr + s)
    print(out, "lines", s.count("\n"), "nops", g.A.nops)
```
